```python
import torch

def _softmax(x, axis=-1):
    return torch.softmax(x, dim=axis)
def _gelu(x):
    return torch.nn.functional.gelu(x, approximate="tanh")
def _silu(x):
    return torch.nn.functional.silu(x)
def _sigmoid(x):
    return torch.sigmoid(x)
def _layernorm(x, axis=-1, eps=1e-5):
    m = x.mean(dim=axis, keepdim=True)
    v = x.var(dim=axis, keepdim=True, unbiased=False)
    return (x - m) / torch.sqrt(v + eps)
def _scatter_add(tgt, idx, src, axis=0):
    return tgt.clone().index_add_(axis, idx, src)
def _segment_sum(src, seg, n):
    out = torch.zeros((n,) + src.shape[1:], dtype=src.dtype)
    return out.index_add_(0, seg, src)
def _pad(x, pw):
    flat = tuple(v for pair in reversed(pw) for v in pair)
    return torch.nn.functional.pad(x, flat)

kernel_name = 'standalone__sliding_block_cached__sampling'

def setup_inputs():

    _w = (lambda a: (lambda t: t.to(torch.bfloat16) if t.is_floating_point() else t)(torch.as_tensor(a)))
    B, Sq, D = 16, 4, 512
    Hq, Hkv, Sk, Dh = 32, 8, 4096, 128
    assert Hq % Hkv == 0, (Hq, Hkv)
    return {
        "x": _w((lambda *s: torch.randn(*s, dtype=torch.bfloat16) * 0.8)(B, Sq, D)),
        "k_cache": _w((lambda *s: torch.randn(*s, dtype=torch.bfloat16) * 0.8)(B, Hkv, Sk, Dh)),
        "v_cache": _w((lambda *s: torch.randn(*s, dtype=torch.bfloat16) * 0.05)(B, Hkv, Sk, Dh)),
        "wq": _w((lambda *s: torch.randn(*s, dtype=torch.bfloat16) * 0.8)(D, Hq * Dh) * (D ** -0.5)),
        "wo": _w((lambda *s: torch.randn(*s, dtype=torch.bfloat16) * 0.05)(Hq * Dh, D) * ((Hq * Dh) ** -0.5)),
    }

def reference(x, k_cache, v_cache, wq, wo):
    B, Sq, D = x.shape
    Hq, Dh = 32, 128
    Hkv, Sk = k_cache.shape[1], k_cache.shape[2]
    W = min(4096, max(256, Sk // 4))
    rep = Hq // Hkv
    q = (lambda x, *d: x.permute(*d))((x @ wq).reshape(B, Sq, Hq, Dh), 0, 2, 1, 3)
    k = (lambda x, n, axis: torch.repeat_interleave(x, n, dim=axis))(k_cache[:, :, Sk - W:, :], rep, axis=1)
    v = (lambda x, n, axis: torch.repeat_interleave(x, n, dim=axis))(v_cache[:, :, Sk - W:, :], rep, axis=1)
    scores = torch.einsum("bhqd,bhkd->bhqk", q, k) * (Dh ** -0.5)
    p = _softmax(scores, axis=-1)
    o = torch.einsum("bhqk,bhkd->bhqd", p, v)
    return (lambda x, *d: x.permute(*d))(o, 0, 2, 1, 3).reshape(B, Sq, Hq * Dh) @ wo
```

```python
class Asm:
    def __init__(self):
        self.lines = []
        self.lbl = 0
    def __call__(self, s):
        for l in s.strip('\n').split('\n'):
            self.lines.append(l)
    def i(self, s):
        self.lines.append('    ' + s)
    def label(self, name):
        self.lines.append(name + ':')
    def newlabel(self, base='L'):
        self.lbl += 1
        return f'{base}_{self.lbl}'
    def comment(self, s):
        self.lines.append('    ; ' + s)
    def text(self):
        return '\n'.join(self.lines) + '\n'

HEADER = """; Kernarg layout for this problem (64 bytes, ptrs only, base s[0:1]):
"""

def kernel_begin(a, name):
    a(f""".globl {name}
.p2align 8
.type {name},@function
{name}:""")

def kernel_desc(name, vgpr, sgpr=102, accum=None, wgy=False):
    if accum is None:
        accum = (vgpr + 3) // 4 * 4
    s = f""".p2align 6
.amdhsa_kernel {name}
  .amdhsa_next_free_vgpr {vgpr}
  .amdhsa_next_free_sgpr {sgpr}
  .amdhsa_accum_offset {accum}
  .amdhsa_group_segment_fixed_size 0
  .amdhsa_kernarg_size 64
  .amdhsa_user_sgpr_count 2
  .amdhsa_user_sgpr_kernarg_segment_ptr 1
  .amdhsa_system_sgpr_workgroup_id_x 1
"""
    if wgy:
        s += "  .amdhsa_system_sgpr_workgroup_id_y 1\n"
    s += ".end_amdhsa_kernel\n"
    return s
```

```python
import re

REG_RE = re.compile(r'\b([vas])(\d+)\b|\b([vas])\[(\d+):(\d+)\]|\b(vcc|exec|m0|scc)(_lo|_hi)?\b')

def regs_of(tok):
    out = []
    for m in REG_RE.finditer(tok):
        if m.group(1):
            out.append((m.group(1), int(m.group(2))))
        elif m.group(3):
            for r in range(int(m.group(4)), int(m.group(5)) + 1):
                out.append((m.group(3), r))
        else:
            out.append((m.group(6), 0))
    return out

TRANS = ('v_exp_f32', 'v_log_f32', 'v_rcp_f32', 'v_rsq_f32', 'v_sqrt_f32', 'v_sin_f32', 'v_cos_f32', 'v_rcp_iflag_f32')

def split_ops(s):
    ops = []; depth = 0; cur = ''
    for ch in s:
        if ch == '[': depth += 1
        if ch == ']': depth -= 1
        if ch == ',' and depth == 0:
            ops.append(cur.strip()); cur = ''
        else:
            cur += ch
    if cur.strip(): ops.append(cur.strip())
    return ops

class Ins:
    __slots__ = ('op', 'kind', 'w', 'r', 'srcc', 'passes', 'dpp', 'text', 'storedata', 'nstates')

def parse(line):
    t = line.split(';')[0].strip()
    if not t or t.endswith(':') or t.startswith('.'):
        return None
    parts = t.split(None, 1)
    op = parts[0]
    rest = parts[1] if len(parts) > 1 else ''
    ins = Ins(); ins.op = op; ins.text = t; ins.w = []; ins.r = []; ins.srcc = []; ins.passes = 0; ins.dpp = False; ins.storedata = []; ins.nstates = 1
    ops = split_ops(rest)
    mo = re.search(r'offset:(-?\d+)', t)
    if mo:
        ov = int(mo.group(1))
        if op.startswith('buffer_'): assert 0 <= ov < 4096, 'MUBUF offset out of range: ' + t
        elif op.startswith('global_'): assert -4096 <= ov < 4096, 'global offset out of range: ' + t
        elif op.startswith('ds_'): assert 0 <= ov < 65536, 'ds offset out of range: ' + t
    for mo in re.finditer(r'offset[01]:(\d+)', t):
        assert int(mo.group(1)) < 256, 'ds offset0/1 out of range: ' + t
    base = re.sub(r'_(e32|e64|dpp|sdwa)$', '', op)
    if op == 's_nop':
        ins.kind = 'nop'; ins.nstates = int(ops[0], 0) + 1; return ins
    if op.startswith('v_mfma'):
        ins.kind = 'mfma'
        ins.w = regs_of(ops[0]); ins.r = regs_of(ops[1]) + regs_of(ops[2]); ins.srcc = regs_of(ops[3])
        if '32x32x16' in op or '32x32x8' in op: ins.passes = 8
        elif '16x16x32' in op or '16x16x16' in op: ins.passes = 4
        elif '4x4x4' in op: ins.passes = 2
        else: raise ValueError('mfma passes unknown ' + op)
        return ins
    if op.startswith('v_'):
        ins.kind = 'trans' if base in TRANS else 'valu'
        if 'dpp' in op or 'row_' in t or 'quad_perm' in t or 'wave_' in t: ins.dpp = True
        if base.startswith('v_cmp'):
            ins.w = regs_of(ops[0]);
            for o in ops[1:]: ins.r += regs_of(o)
            if base.startswith('v_cmpx'): ins.w.append(('exec', 0))
        elif base in ('v_readfirstlane_b32', 'v_readlane_b32'):
            ins.kind = 'readlane'
            ins.w = regs_of(ops[0])
            for o in ops[1:]: ins.r += regs_of(o)
        elif base.startswith('v_permlane') and 'swap' in base:
            ins.kind = 'permlane'
            ins.w = regs_of(ops[0]) + regs_of(ops[1]); ins.r = regs_of(ops[0]) + regs_of(ops[1])
        elif base in ('v_add_co_u32', 'v_sub_co_u32', 'v_addc_co_u32', 'v_subb_co_u32', 'v_subrev_co_u32', 'v_div_scale_f32', 'v_mad_u64_u32'):
            ins.w = regs_of(ops[0]) + regs_of(ops[1])
            for o in ops[2:]: ins.r += regs_of(o)
        else:
            ins.w = regs_of(ops[0])
            for o in ops[1:]: ins.r += regs_of(o.split(' ')[0] if not o.startswith('-') and not o.startswith('|') and not o.startswith('abs') else o)
            if base in ('v_fmac_f32', 'v_mac_f32', 'v_writelane_b32', 'v_pk_fmac_f16', 'v_dot2c_f32_bf16') or ins.dpp:
                ins.r += regs_of(ops[0])
            if base == 'v_cndmask_b32' and len(ops) == 3:
                ins.r.append(('vcc', 0))
        return ins
    if op.startswith('buffer_') or op.startswith('global_') or op.startswith('flat_') or op.startswith('scratch_'):
        ins.kind = 'vmem'
        islds = re.search(r'\blds\b', t) is not None
        if 'load' in op and not islds:
            ins.w = regs_of(ops[0])
            for o in ops[1:]: ins.r += regs_of(o.split(' ')[0])
        elif 'load' in op and islds:
            for o in ops: ins.r += regs_of(o.split(' ')[0])
            ins.r.append(('m0', 0)); ins.kind = 'vmem_lds'
        elif 'store' in op:
            if op.startswith('buffer_'):
                data = regs_of(ops[0])
                for o in ops: ins.r += regs_of(o.split(' ')[0])
            else:
                data = regs_of(ops[1])
                for o in ops: ins.r += regs_of(o.split(' ')[0])
            if 'x4' in op or 'x3' in op: ins.storedata = data
        elif 'atomic' in op:
            for o in ops: ins.r += regs_of(o.split(' ')[0])
            if re.search(r'\bsc0\b', t):
                ins.w = regs_of(ops[0])
        elif op.startswith('buffer_wbl2') or op.startswith('buffer_inv'):
            pass
        else:
            raise ValueError('vmem op? ' + t)
        return ins
    if op.startswith('ds_'):
        ins.kind = 'ds'
        if op.startswith('ds_read') or op.startswith('ds_bpermute') or op.startswith('ds_permute') or op.startswith('ds_swizzle') or '_rtn' in op:
            ins.w = regs_of(ops[0])
            for o in ops[1:]: ins.r += regs_of(o.split(' ')[0])
        else:
            for o in ops: ins.r += regs_of(o.split(' ')[0])
        return ins
    if op.startswith('s_'):
        ins.kind = 'salu'
        if op.startswith('s_cmp') or op.startswith('s_cbranch') or op.startswith('s_branch') or op in ('s_waitcnt', 's_barrier', 's_endpgm', 's_sleep', 's_setprio', 's_sethalt'):
            for o in ops: ins.r += regs_of(o)
            ins.kind = 'sctl'
            return ins
        if op.startswith('s_load') or op.startswith('s_buffer_load') or op in ('s_memrealtime', 's_memtime'):
            ins.kind = 'smem'
        ins.w = regs_of(ops[0]) if ops else []
        for o in ops[1:]: ins.r += regs_of(o)
        if 'saveexec' in op: ins.w.append(('exec', 0)); ins.r.append(('exec', 0))
        return ins
    raise ValueError('cannot parse: ' + line)

def isv(r): return r[0] in ('v', 'a')
def iss(r): return r[0] in ('s', 'vcc')

def required(p, c):
    n = 0
    pw = set(p.w);
    pvw = {r for r in pw if isv(r)}
    psw = {r for r in pw if iss(r)}
    cr = set(c.r); cw = set(c.w)
    pv = p.kind in ('valu', 'trans', 'permlane', 'readlane')
    cv = c.kind in ('valu', 'trans', 'permlane', 'readlane')
    if pv:
        if c.kind == 'mfma' and pvw & (cr | set(c.srcc)): n = max(n, 2)
        if c.kind == 'readlane' and pvw & cr: n = max(n, 1)
        if c.kind == 'permlane' and pvw & cr: n = max(n, 2)
        if cv and c.dpp and pvw & cr: n = max(n, 2)
        if p.kind == 'trans' and cv and pvw & cr: n = max(n, 1)
        if p.kind == 'trans' and c.kind == 'mfma' and pvw & (cr | set(c.srcc)): n = max(n, 2)
        if psw:
            if cv and psw & cr: n = max(n, 2 if c.kind != 'readlane' else 4)
            if c.kind in ('vmem', 'vmem_lds') and psw & cr: n = max(n, 5)
            if c.kind in ('salu', 'sctl', 'smem') and psw & cr: n = max(n, 1)
        if ('exec', 0) in pw:
            if cv and c.dpp: n = max(n, 5)
            if c.kind in ('readlane', 'permlane'): n = max(n, 4)
            if c.kind == 'mfma': n = max(n, 4)
            if cv and ('exec', 0) in cr: n = max(n, 2)
        if ('sdwa' in p.op or 'op_sel' in p.text) and cv and pvw & (cr | cw): n = max(n, 1)
    if p.kind == 'mfma':
        tbl_v = {2: 5, 4: 8, 8: 12, 16: 20}; tbl_c = {2: 4, 4: 6, 8: 10, 16: 18}; tbl_war = {2: 1, 4: 3, 8: 7, 16: 15}
        if cv and pvw & (cr | cw): n = max(n, tbl_v[p.passes])
        if c.kind in ('vmem', 'vmem_lds', 'ds') and pvw & (cr | cw): n = max(n, tbl_v[p.passes])
        if c.kind == 'mfma':
            if pvw & cr: n = max(n, tbl_v[p.passes])
            if pvw & set(c.srcc):
                if not (p.w == c.srcc and p.passes == c.passes and p.passes >= 4): n = max(n, tbl_c[p.passes])
            elif pvw & cw:
                n = max(n, tbl_c[p.passes])
        if cv and set(p.srcc) & cw: n = max(n, tbl_war[p.passes])
        if c.kind in ('vmem', 'ds') and set(p.srcc) & cw: n = max(n, tbl_war[p.passes])
    if p.storedata:
        if set(p.storedata) & cw: n = max(n, 2 if cv else 1)
    if p.kind == 'salu' and ('m0', 0) in pw and (c.kind == 'vmem_lds' or 'addtid' in c.op): n = max(n, 1)
    if p.kind == 'salu' and ('exec', 0) in pw and c.kind == 'mfma': n = max(n, 0)
    return n

MAXW = 20

def fix(lines, verbose=False):
    out = []
    hist = []
    inserted = 0
    for line in lines:
        ins = parse(line)
        if ins is None:
            out.append(line)
            continue
        need = 0
        dist = 0
        for p in reversed(hist):
            if dist >= MAXW: break
            if ins.kind != 'nop':
                req = required(p, ins)
                if req > dist: need = max(need, req - dist)
            dist += p.nstates
        while need > 0:
            k = min(need, 16)
            nop = parse(f's_nop {k-1}')
            out.append(f'    s_nop {k-1}')
            hist.append(nop); need -= k; inserted += k
        out.append(line)
        hist.append(ins)
        if len(hist) > 64: hist = hist[-40:]
    return out, inserted
```

```python
import sys
from asmlib import *
import hazard

WS_Q = 0
WS_OP = 1 << 20
WS_ML = 4 << 20
WS_PART = 8 << 20
SCALE = 0.08838834764831845 * 1.4426950408889634
import struct
def f2u(x): return struct.unpack('<I', struct.pack('<f', x))[0]

def load_ptrs(a):
    a.i("s_load_dwordx16 s[16:31], s[0:1], 0")

def srd(a, d, lo, hi, size, add=None):
    if add is None:
        a.i(f"s_mov_b32 s{d}, s{lo}"); a.i(f"s_mov_b32 s{d+1}, s{hi}")
    else:
        a.i(f"s_add_u32 s{d}, s{lo}, {add}"); a.i(f"s_addc_u32 s{d+1}, s{hi}, 0")
    a.i(f"s_mov_b32 s{d+2}, {size}"); a.i(f"s_mov_b32 s{d+3}, 0x20000")

def vr(b, n=4): return f"v[{b}:{b+n-1}]"
def ar(b, n=4): return f"a[{b}:{b+n-1}]"

NT = "nt"

def gen_qproj(a):
    name = "qproj_kernel"
    kernel_begin(a, name)
    a.i("s_cmp_ge_u32 s2, 256"); a.i("s_cbranch_scc1 Lq_end")
    load_ptrs(a)
    a.i("v_lshrrev_b32 v1, 6, v0"); a.i("v_and_b32 v2, 63, v0")
    a.i("v_readfirstlane_b32 s3, v1")
    a.i("s_lshr_b32 s4, s2, 3"); a.i("s_and_b32 s4, s4, 3")
    a.i("s_and_b32 s5, s2, 7"); a.i("s_lshr_b32 s6, s2, 5"); a.i("s_lshl_b32 s6, s6, 3"); a.i("s_or_b32 s5, s5, s6")
    a.i("v_lshrrev_b32 v3, 4, v2")
    a.i("v_and_b32 v4, 15, v2")
    a.i("v_lshlrev_b32 v5, 10, v4"); a.i("v_lshl_add_u32 v5, v3, 4, v5")
    a.i("v_lshlrev_b32 v6, 16, v3"); a.i("v_lshl_add_u32 v6, v4, 3, v6")
    a.i("s_lshl_b32 s7, s4, 14"); a.i("s_lshl_b32 s8, s3, 8"); a.i("s_add_u32 s7, s7, s8")
    a.i("s_lshl_b32 s9, s3, 20"); a.i("s_lshl_b32 s10, s5, 7"); a.i("s_add_u32 s9, s9, s10")
    a.i("s_waitcnt lgkmcnt(0)")
    srd(a, 32, 16, 17, 65536)
    srd(a, 36, 22, 23, 4 << 20)
    srd(a, 40, 30, 31, 512 << 10)
    XA = 8; WB = 24; T = 88; ACC = 120
    for s in range(4):
        a.i(f"buffer_load_dwordx4 {vr(XA+4*s)}, v5, s[32:35], s7 offen offset:{s*64}")
    for s in range(4):
        for i in range(8):
            a.i(f"buffer_load_dwordx2 {vr(WB+16*s+2*i,2)}, v6, s[36:39], s9 offen {NT}")
            a.i("s_add_u32 s9, s9, 8192")
        if s < 3: a.i(f"s_add_u32 s9, s9, {24*8192}")
    a.i("s_mov_b32 s11, 0x05040100"); a.i("s_mov_b32 s12, 0x07060302")
    for r in range(16): a.i(f"v_mov_b32 v{ACC+r}, 0")
    for s in range(4):
        a.i(f"s_waitcnt vmcnt({24-8*s})")
        tb = T + (s & 1) * 16
        L = lambda i, w: WB + 16*s + 2*i + w
        for e in range(4):
            w = e >> 1; sel = 's11' if (e & 1) == 0 else 's12'
            for p in range(4):
                a.i(f"v_perm_b32 v{tb+4*e+p}, v{L(2*p+1,w)}, v{L(2*p,w)}, {sel}")
        for e in range(4):
            a.i(f"v_mfma_f32_16x16x32_bf16 {vr(ACC+4*e)}, {vr(XA+4*s)}, {vr(tb+4*e)}, {vr(ACC+4*e)}")
    a.i("v_lshlrev_b32 v7, 2, v2"); a.i("s_lshl_b32 s8, s3, 12"); a.i("v_add_u32 v8, s8, v7")
    for e in range(4):
        for r in range(4):
            a.i(f"ds_write_b32 v8, v{ACC+4*e+r} offset:{(e*4+r)*256}")
    a.i("s_waitcnt lgkmcnt(0)"); a.i("s_barrier")
    a.i("s_lshl_b32 s8, s3, 8"); a.i("v_add_u32 v8, s8, v7")
    for w in range(4):
        for e in range(4):
            a.i(f"ds_read_b32 v{24+4*w+e}, v8 offset:{w*4096+e*1024}")
    a.i("s_waitcnt lgkmcnt(0)")
    for e in range(4):
        a.i(f"v_add_f32 v{24+e}, v{24+e}, v{28+e}"); a.i(f"v_add_f32 v{32+e}, v{32+e}, v{36+e}")
    for e in range(4):
        a.i(f"v_add_f32 v{24+e}, v{24+e}, v{32+e}")
    a.i("v_cvt_pk_bf16_f32 v40, v24, v25"); a.i("v_cvt_pk_bf16_f32 v41, v26, v27")
    a.i("v_lshlrev_b32 v9, 15, v3"); a.i("v_lshl_add_u32 v9, v4, 3, v9")
    a.i("s_lshl_b32 s8, s4, 17"); a.i("s_lshl_b32 s10, s3, 13"); a.i("s_add_u32 s8, s8, s10"); a.i("s_lshl_b32 s10, s5, 7"); a.i("s_add_u32 s8, s8, s10")
    a.i("buffer_store_dwordx2 v[40:41], v9, s[40:43], s8 offen")
    a.label("Lq_end"); a.i("s_endpgm")
    return kernel_desc(name, 136)

def gen_attn(a, NW=8):
    name = "attn_kernel"
    NK = 512 // NW; NTL = NK // 16; NG = NK // 32
    kernel_begin(a, name)
    a.i("s_cmp_ge_u32 s2, 256"); a.i("s_cbranch_scc1 La_end")
    load_ptrs(a)
    a.i("v_lshrrev_b32 v1, 6, v0"); a.i("v_and_b32 v2, 63, v0")
    a.i("v_readfirstlane_b32 s3, v1")
    a.i("s_lshr_b32 s4, s2, 1")
    a.i("s_and_b32 s5, s2, 1")
    a.i("v_lshrrev_b32 v3, 4, v2"); a.i("v_and_b32 v4, 15, v2")
    a.i("s_lshl_b32 s6, s4, 12"); a.i("s_lshl_b32 s7, s5, 9"); a.i("s_add_u32 s6, s6, s7")
    a.i(f"s_mul_i32 s7, s3, {NK}"); a.i("s_add_u32 s6, s6, s7"); a.i("s_add_u32 s6, s6, 3072"); a.i("s_lshl_b32 s6, s6, 8")
    a.i("v_lshlrev_b32 v5, 8, v4"); a.i("v_lshl_add_u32 v5, v3, 4, v5")
    a.i("v_lshlrev_b32 v6, 10, v3"); a.i("v_lshl_add_u32 v6, v4, 4, v6")
    a.i("v_and_b32 v7, 3, v4"); a.i("v_lshlrev_b32 v7, 13, v7"); a.i("v_lshrrev_b32 v8, 2, v4"); a.i("v_lshl_add_u32 v7, v8, 8, v7"); a.i("v_lshl_add_u32 v7, v3, 4, v7")
    a.i("s_lshr_b32 s8, s4, 3"); a.i("s_lshl_b32 s8, s8, 15"); a.i("s_and_b32 s9, s4, 7"); a.i("s_lshl_b32 s9, s9, 10"); a.i("s_add_u32 s8, s8, s9")
    a.i("s_waitcnt lgkmcnt(0)")
    srd(a, 32, 18, 19, NK*256, add="s6")
    srd(a, 36, 20, 21, NK*256, add="s6")
    srd(a, 40, 30, 31, 512 << 10)
    QF = 12; KF = QF + 16; VF = KF + NTL*16; SA = VF + NG*32; T = SA + NTL*4; ACC = T + 32; PF = ACC + 36; ONE = PF + NG*4
    nreg = ONE + 4
    for s in range(4):
        a.i(f"buffer_load_dwordx4 {vr(QF+4*s)}, v7, s[40:43], s8 offen offset:{s*64}")
    for t in range(NTL):
        a.i(f"s_mov_b32 s9, {t*4096}")
        for s in range(4):
            a.i(f"buffer_load_dwordx4 {vr(KF+16*t+4*s)}, v5, s[32:35], s9 offen offset:{s*64} {NT}")
    for u in range(NG):
        for i in range(8):
            if i % 4 == 0: a.i(f"s_mov_b32 s9, {u*8192 + (i>>2)*4096}")
            a.i(f"buffer_load_dwordx4 {vr(VF+32*u+4*i)}, v6, s[36:39], s9 offen offset:{(i&3)*256} {NT}")
    for r in range(NTL*4): a.i(f"v_mov_b32 v{SA+r}, 0")
    for r in range(36): a.i(f"v_mov_b32 v{ACC+r}, 0")
    for r in range(4): a.i(f"v_mov_b32 v{ONE+r}, 0x3f803f80")
    a.i("s_mov_b32 s11, 0x05040100"); a.i("s_mov_b32 s12, 0x07060302")
    a.i(f"s_mov_b32 s13, {f2u(SCALE):#x}")
    nv = NG*8
    for t in range(NTL):
        a.i(f"s_waitcnt vmcnt({nv + (NTL-1-t)*4})")
        for s in range(4):
            a.i(f"v_mfma_f32_16x16x32_bf16 {vr(SA+4*t)}, {vr(KF+16*t+4*s)}, {vr(QF+4*s)}, {vr(SA+4*t)}")
    a.i(f"v_max_f32 v8, v{SA}, v{SA+1}")
    for r in range(2, NTL*4): a.i(f"v_max_f32 v8, v8, v{SA+r}")
    a.i("v_mov_b32 v9, v8"); a.i("v_permlane16_swap_b32 v8, v9"); a.i("v_max_f32 v8, v8, v9")
    a.i("v_mov_b32 v9, v8"); a.i("v_permlane32_swap_b32 v8, v9"); a.i("v_max_f32 v8, v8, v9")
    a.i("v_lshlrev_b32 v10, 2, v4"); a.i("s_lshl_b32 s9, s3, 6"); a.i("v_add_u32 v11, s9, v10")
    a.i("ds_write_b32 v11, v8")
    a.i("s_waitcnt lgkmcnt(0)"); a.i("s_barrier")
    for w in range(NW): a.i(f"ds_read_b32 v{T+w}, v10 offset:{w*64}")
    a.i("s_waitcnt lgkmcnt(0)")
    a.i(f"v_max_f32 v8, v{T}, v{T+1}")
    for w in range(2, NW): a.i(f"v_max_f32 v8, v8, v{T+w}")
    a.i("v_mul_f32 v8, s13, v8")
    for r in range(NTL*4):
        a.i(f"v_fma_f32 v{SA+r}, v{SA+r}, s13, -v8")
    for r in range(NTL*4):
        a.i(f"v_exp_f32 v{SA+r}, v{SA+r}")
    for u in range(NG):
        for p in range(4):
            a.i(f"v_cvt_pk_bf16_f32 v{PF+4*u+p}, v{SA+8*u+2*p}, v{SA+8*u+2*p+1}")
    for u in range(NG):
        a.i(f"s_waitcnt vmcnt({(NG-1-u)*8})")
        L = lambda i, w: VF + 32*u + 4*i + w
        for e in range(8):
            w = e >> 1; sel = 's11' if (e & 1) == 0 else 's12'
            for p in range(4):
                a.i(f"v_perm_b32 v{T+4*e+p}, v{L(2*p+1,w)}, v{L(2*p,w)}, {sel}")
        for e in range(8):
            a.i(f"v_mfma_f32_16x16x32_bf16 {vr(ACC+4*e)}, {vr(PF+4*u)}, {vr(T+4*e)}, {vr(ACC+4*e)}")
        a.i(f"v_mfma_f32_16x16x32_bf16 {vr(ACC+32)}, {vr(PF+4*u)}, {vr(ONE)}, {vr(ACC+32)}")
    a.i("v_lshlrev_b32 v10, 4, v2"); a.i(f"s_mul_i32 s9, s3, 9216"); a.i("s_add_u32 s9, s9, 1024"); a.i("v_add_u32 v11, s9, v10")
    for e in range(9):
        a.i(f"ds_write_b128 v11, {vr(ACC+4*e)} offset:{e*1024}")
    a.i("s_waitcnt lgkmcnt(0)"); a.i("s_barrier")
    a.i(f"s_lshl_b32 s9, s2, 13"); a.i(f"s_add_u32 s9, s9, {WS_OP}")
    srd(a, 44, 30, 31, 8192, add="s9")
    a.i(f"s_lshl_b32 s9, s2, 7"); a.i(f"s_add_u32 s9, s9, {WS_ML}")
    srd(a, 48, 30, 31, 128, add="s9")
    def reduce_acc(esreg_expr_off, dstbase):
        pass
    assert NW <= 8
    for rep in range(8 // NW):
        a.i(f"s_add_u32 s14, s3, {rep*NW}")
        a.i("s_lshl_b32 s9, s14, 10"); a.i("s_add_u32 s9, s9, 1024"); a.i("v_add_u32 v11, s9, v10")
        for w in range(NW):
            a.i(f"ds_read_b128 {vr(KF+4*w)}, v11 offset:{w*9216}") if w*9216 < 65536 else None
        a.i("s_waitcnt lgkmcnt(0)")
        for w in range(1, NW):
            for r in range(4): a.i(f"v_add_f32 v{KF+r}, v{KF+r}, v{KF+4*w+r}")
        a.i("v_lshlrev_b32 v9, 11, v3"); a.i("v_lshl_add_u32 v9, v4, 5, v9"); a.i("s_lshl_b32 s9, s14, 2")
        for r in range(4):
            a.i(f"buffer_store_dword v{KF+r}, v9, s[44:47], s9 offen offset:{r*512}")
    a.i("s_cmp_lg_u32 s3, 0"); a.i("s_cbranch_scc1 La_end")
    a.i(f"v_add_u32 v11, {1024 + 8*1024}, v10")
    for w in range(NW):
        a.i(f"ds_read_b128 {vr(KF+4*w)}, v11 offset:{w*9216}")
    a.i("s_waitcnt lgkmcnt(0)")
    for w in range(1, NW):
        for r in range(4): a.i(f"v_add_f32 v{KF+r}, v{KF+r}, v{KF+4*w+r}")
    a.i("v_cmp_eq_u32 vcc, 0, v4"); a.i("s_and_saveexec_b64 s[52:53], vcc")
    a.i("v_lshlrev_b32 v9, 5, v3")
    for r in range(4):
        a.i(f"buffer_store_dword v{KF+r}, v9, s[48:51], 0 offen offset:{r*8+4}")
    a.i("s_mov_b64 exec, s[52:53]")
    a.i("v_cmp_eq_u32 vcc, 0, v3"); a.i("s_and_saveexec_b64 s[52:53], vcc")
    a.i("v_lshlrev_b32 v9, 3, v4")
    a.i("buffer_store_dword v8, v9, s[48:51], 0 offen")
    a.label("La_end"); a.i("s_endpgm")
    lds = 1024 + NW*9216
    return kernel_desc(name, nreg), lds

def gen_c1(a):
    name = "c1_kernel"
    kernel_begin(a, name)
    a.i("s_cmp_ge_u32 s2, 256"); a.i("s_cbranch_scc1 Lc_end")
    load_ptrs(a)
    a.i("v_lshrrev_b32 v1, 6, v0"); a.i("v_and_b32 v2, 63, v0")
    a.i("v_readfirstlane_b32 s3, v1")
    a.i("s_lshr_b32 s4, s2, 3")
    a.i("s_and_b32 s5, s2, 7")
    a.i("v_lshrrev_b32 v3, 4, v2"); a.i("v_and_b32 v4, 15, v2")
    a.i("v_lshlrev_b32 v6, 13, v3"); a.i("v_lshl_add_u32 v6, v4, 3, v6")
    a.i("s_lshl_b32 s9, s4, 17"); a.i("s_lshl_b32 s10, s5, 7"); a.i("s_add_u32 s9, s9, s10")
    a.i("v_lshrrev_b32 v7, 2, v4"); a.i("v_lshlrev_b32 v7, 17, v7")
    a.i("v_and_b32 v8, 3, v4"); a.i("v_lshl_add_u32 v7, v8, 9, v7"); a.i("v_lshl_add_u32 v7, v3, 5, v7")
    a.i("s_lshl_b32 s6, s3, 19")
    a.i("s_lshr_b32 s7, s4, 2"); a.i("s_lshl_b32 s7, s7, 14"); a.i("s_add_u32 s6, s6, s7")
    a.i("s_and_b32 s7, s4, 3"); a.i("s_lshl_b32 s7, s7, 11"); a.i("s_add_u32 s6, s6, s7")
    a.i("v_lshrrev_b32 v10, 2, v4"); a.i("v_lshlrev_b32 v10, 11, v10"); a.i("v_lshl_add_u32 v10, v8, 3, v10")
    a.i("s_lshl_b32 s8, s3, 13"); a.i("s_lshr_b32 s7, s4, 2"); a.i("s_lshl_b32 s7, s7, 8"); a.i("s_add_u32 s8, s8, s7")
    a.i("s_and_b32 s7, s4, 3"); a.i("s_lshl_b32 s7, s7, 5"); a.i("s_add_u32 s8, s8, s7")
    a.i("s_waitcnt lgkmcnt(0)")
    srd(a, 32, 24, 25, 4 << 20)
    srd(a, 36, 30, 31, 2 << 20, add=str(WS_OP))
    srd(a, 40, 30, 31, 32768, add=str(WS_ML))
    srd(a, 44, 30, 31, 4 << 20, add=str(WS_PART))
    WB = 16; O0 = 80; O1 = 112; T = 144; ACC = 176; AF = 192
    a.i("buffer_load_dwordx2 v[12:13], v10, s[40:43], s8 offen")
    a.i("buffer_load_dwordx2 v[14:15], v10, s[40:43], s8 offen offset:128")
    for s in range(4):
        for hf in range(2):
            a.i(f"buffer_load_dwordx4 {vr(O0+8*s+4*hf)}, v7, s[36:39], s6 offen offset:{s*128+hf*16}")
    a.i("s_add_u32 s6, s6, 8192")
    for s in range(4):
        for hf in range(2):
            a.i(f"buffer_load_dwordx4 {vr(O1+8*s+4*hf)}, v7, s[36:39], s6 offen offset:{s*128+hf*16}")
    for s in range(4):
        for i in range(8):
            a.i(f"buffer_load_dwordx2 {vr(WB+16*s+2*i,2)}, v6, s[32:35], s9 offen {NT}")
            a.i("s_add_u32 s9, s9, 1024")
        if s < 3: a.i(f"s_add_u32 s9, s9, {24*1024}")
    a.i("s_mov_b32 s11, 0x05040100"); a.i("s_mov_b32 s12, 0x07060302")
    for r in range(16): a.i(f"v_mov_b32 v{ACC+r}, 0")
    a.i("s_waitcnt vmcnt(48)")
    a.i("v_max_f32 v8, v12, v14"); a.i("v_sub_f32 v12, v12, v8"); a.i("v_sub_f32 v14, v14, v8")
    a.i("v_exp_f32 v12, v12"); a.i("v_exp_f32 v14, v14")
    a.i("v_mul_f32 v13, v13, v12"); a.i("v_fmac_f32 v13, v15, v14"); a.i("v_rcp_f32 v13, v13")
    a.i("v_mul_f32 v12, v12, v13"); a.i("v_mul_f32 v14, v14, v13")
    a.i("s_waitcnt vmcnt(32)")
    for r in range(32):
        a.i(f"v_mul_f32 v{O0+r}, v{O0+r}, v12"); a.i(f"v_fmac_f32 v{O0+r}, v{O1+r}, v14")
    for s in range(4):
        for p in range(4):
            a.i(f"v_cvt_pk_bf16_f32 v{AF+4*s+p}, v{O0+8*s+2*p}, v{O0+8*s+2*p+1}")
    for s in range(4):
        a.i(f"s_waitcnt vmcnt({24-8*s})")
        tb = T + (s & 1) * 16
        L = lambda i, w: WB + 16*s + 2*i + w
        for e in range(4):
            w = e >> 1; sel = 's11' if (e & 1) == 0 else 's12'
            for p in range(4):
                a.i(f"v_perm_b32 v{tb+4*e+p}, v{L(2*p+1,w)}, v{L(2*p,w)}, {sel}")
        for e in range(4):
            a.i(f"v_mfma_f32_16x16x32_bf16 {vr(ACC+4*e)}, {vr(AF+4*s)}, {vr(tb+4*e)}, {vr(ACC+4*e)}")
    for r in range(4):
        for e in range(4): a.i(f"v_mov_b32 v{T+4*r+e}, v{ACC+4*e+r}")
    a.i("v_lshlrev_b32 v9, 13, v3"); a.i("v_lshl_add_u32 v9, v4, 4, v9")
    a.i("s_lshl_b32 s6, s4, 17"); a.i("s_lshl_b32 s7, s3, 15"); a.i("s_add_u32 s6, s6, s7"); a.i("s_lshl_b32 s7, s5, 8"); a.i("s_add_u32 s6, s6, s7")
    for r in range(4):
        if r == 2: a.i("s_add_u32 s6, s6, 4096")
        a.i(f"buffer_store_dwordx4 {vr(T+4*r)}, v9, s[44:47], s6 offen offset:{(r&1)*2048}")
    a.label("Lc_end"); a.i("s_endpgm")
    return kernel_desc(name, 208)

def gen_c2(a):
    name = "c2_kernel"
    kernel_begin(a, name)
    a.i("s_cmp_ge_u32 s2, 128"); a.i("s_cbranch_scc1 Ld_end")
    load_ptrs(a)
    a.i("s_lshl_b32 s3, s2, 6"); a.i("v_add_u32 v1, s3, v0")
    a.i("v_lshlrev_b32 v2, 4, v1"); a.i("v_lshlrev_b32 v3, 3, v1")
    a.i("s_waitcnt lgkmcnt(0)")
    srd(a, 32, 30, 31, 4 << 20, add=str(WS_PART))
    srd(a, 36, 26, 27, 65536)
    a.i("s_mov_b32 s4, 0")
    for h in range(32):
        a.i(f"buffer_load_dwordx4 {vr(4+4*h)}, v2, s[32:35], s4 offen")
        a.i("s_add_u32 s4, s4, 131072")
    for h in range(1, 32):
        a.i(f"s_waitcnt vmcnt({31-h})")
        for r in range(4): a.i(f"v_add_f32 v{4+r}, v{4+r}, v{4+4*h+r}")
    a.i("v_cvt_pk_bf16_f32 v8, v4, v5"); a.i("v_cvt_pk_bf16_f32 v9, v6, v7")
    a.i("buffer_store_dwordx2 v[8:9], v3, s[36:39], 0 offen")
    a.label("Ld_end"); a.i("s_endpgm")
    return kernel_desc(name, 136)

def main(out, NW=8):
    a = Asm()
    body = Asm()
    d = []
    d.append(gen_qproj(body))
    da, lds = gen_attn(body, NW); d.append(da)
    d.append(gen_c1(body)); d.append(gen_c2(body))
    a(HEADER + f"""; @launch kernel=qproj_kernel grid=(256,1,1) block=(256,1,1) lds=16384
; @launch kernel=attn_kernel grid=(256,1,1) block=({NW*64},1,1) lds={lds}
; @launch kernel=c1_kernel grid=(256,1,1) block=(256,1,1) lds=0
; @launch kernel=c2_kernel grid=(128,1,1) block=(64,1,1) lds=0""")
    a('.amdgcn_target "amdgcn-amd-amdhsa--gfx950"\n.text')
    lines, n = hazard.fix(body.lines)
    print("inserted nop states:", n)
    a.lines += lines
    a('.section .rodata,"a"')
    for x in d: a(x)
    open(out, "w").write(a.text())

if __name__ == "__main__":
    main(sys.argv[1] if len(sys.argv) > 1 else "base.s", int(sys.argv[2]) if len(sys.argv) > 2 else 8)
```

```python
import sys
from asmlib import *
import hazard

WS_Q = 0
WS_OP = 1 << 20
WS_ML = 4 << 20
WS_PART = 8 << 20
SCALE = 0.08838834764831845 * 1.4426950408889634
import struct
def f2u(x): return struct.unpack('<I', struct.pack('<f', x))[0]

def load_ptrs(a):
    a.i("s_load_dwordx16 s[16:31], s[0:1], 0")

def srd(a, d, lo, hi, size, add=None):
    if add is None:
        a.i(f"s_mov_b32 s{d}, s{lo}"); a.i(f"s_mov_b32 s{d+1}, s{hi}")
    else:
        a.i(f"s_add_u32 s{d}, s{lo}, {add}"); a.i(f"s_addc_u32 s{d+1}, s{hi}, 0")
    a.i(f"s_mov_b32 s{d+2}, {size}"); a.i(f"s_mov_b32 s{d+3}, 0x20000")

def vr(b, n=4): return f"v[{b}:{b+n-1}]"
def ar(b, n=4): return f"a[{b}:{b+n-1}]"

NT = ""

def gen_qproj(a):
    name = "qproj_kernel"
    kernel_begin(a, name)
    a.i("s_cmp_ge_u32 s2, 256"); a.i("s_cbranch_scc1 Lq_end")
    load_ptrs(a)
    a.i("v_lshrrev_b32 v1, 6, v0"); a.i("v_and_b32 v2, 63, v0")
    a.i("v_readfirstlane_b32 s3, v1")
    a.i("s_lshr_b32 s4, s2, 3"); a.i("s_and_b32 s4, s4, 3")
    a.i("s_and_b32 s5, s2, 7"); a.i("s_lshr_b32 s6, s2, 5"); a.i("s_lshl_b32 s6, s6, 3"); a.i("s_or_b32 s5, s5, s6")
    a.i("v_lshrrev_b32 v3, 4, v2")
    a.i("v_and_b32 v4, 15, v2")
    a.i("v_lshlrev_b32 v5, 10, v4"); a.i("v_lshl_add_u32 v5, v3, 4, v5")
    a.i("v_lshlrev_b32 v6, 16, v3"); a.i("v_lshl_add_u32 v6, v4, 3, v6")
    a.i("s_lshl_b32 s7, s4, 14"); a.i("s_lshl_b32 s8, s3, 8"); a.i("s_add_u32 s7, s7, s8")
    a.i("s_lshl_b32 s9, s3, 20"); a.i("s_lshl_b32 s10, s5, 7"); a.i("s_add_u32 s9, s9, s10")
    a.i("s_waitcnt lgkmcnt(0)")
    srd(a, 32, 16, 17, 65536)
    srd(a, 36, 22, 23, 4 << 20)
    srd(a, 40, 30, 31, 512 << 10)
    XA = 8; WB = 24; T = 88; ACC = 120
    for s in range(4):
        a.i(f"buffer_load_dwordx4 {vr(XA+4*s)}, v5, s[32:35], s7 offen offset:{s*64}")
    for s in range(4):
        for i in range(8):
            a.i(f"buffer_load_dwordx2 {vr(WB+16*s+2*i,2)}, v6, s[36:39], s9 offen {NT}")
            a.i("s_add_u32 s9, s9, 8192")
        if s < 3: a.i(f"s_add_u32 s9, s9, {24*8192}")
    a.i("s_mov_b32 s11, 0x05040100"); a.i("s_mov_b32 s12, 0x07060302")
    for r in range(16): a.i(f"v_mov_b32 v{ACC+r}, 0")
    for s in range(4):
        a.i(f"s_waitcnt vmcnt({24-8*s})")
        tb = T + (s & 1) * 16
        L = lambda i, w: WB + 16*s + 2*i + w
        for e in range(4):
            w = e >> 1; sel = 's11' if (e & 1) == 0 else 's12'
            for p in range(4):
                a.i(f"v_perm_b32 v{tb+4*e+p}, v{L(2*p+1,w)}, v{L(2*p,w)}, {sel}")
        for e in range(4):
            a.i(f"v_mfma_f32_16x16x32_bf16 {vr(ACC+4*e)}, {vr(XA+4*s)}, {vr(tb+4*e)}, {vr(ACC+4*e)}")
    a.i("v_lshlrev_b32 v7, 2, v2"); a.i("s_lshl_b32 s8, s3, 12"); a.i("v_add_u32 v8, s8, v7")
    for e in range(4):
        for r in range(4):
            a.i(f"ds_write_b32 v8, v{ACC+4*e+r} offset:{(e*4+r)*256}")
    a.i("s_waitcnt lgkmcnt(0)"); a.i("s_barrier")
    a.i("s_lshl_b32 s8, s3, 8"); a.i("v_add_u32 v8, s8, v7")
    for w in range(4):
        for e in range(4):
            a.i(f"ds_read_b32 v{24+4*w+e}, v8 offset:{w*4096+e*1024}")
    a.i("s_waitcnt lgkmcnt(0)")
    for e in range(4):
        a.i(f"v_add_f32 v{24+e}, v{24+e}, v{28+e}"); a.i(f"v_add_f32 v{32+e}, v{32+e}, v{36+e}")
    for e in range(4):
        a.i(f"v_add_f32 v{24+e}, v{24+e}, v{32+e}")
    a.i("v_cvt_pk_bf16_f32 v40, v24, v25"); a.i("v_cvt_pk_bf16_f32 v41, v26, v27")
    a.i("v_lshlrev_b32 v9, 15, v3"); a.i("v_lshl_add_u32 v9, v4, 3, v9")
    a.i("s_lshl_b32 s8, s4, 17"); a.i("s_lshl_b32 s10, s3, 13"); a.i("s_add_u32 s8, s8, s10"); a.i("s_lshl_b32 s10, s5, 7"); a.i("s_add_u32 s8, s8, s10")
    a.i("buffer_store_dwordx2 v[40:41], v9, s[40:43], s8 offen")
    a.label("Lq_end"); a.i("s_endpgm")
    return kernel_desc(name, 136)

def gen_attn(a, NW=8):
    name = "attn_kernel"
    NK = 512 // NW; NTL = NK // 16; NG = NK // 32
    kernel_begin(a, name)
    a.i("s_cmp_ge_u32 s2, 256"); a.i("s_cbranch_scc1 La_end")
    load_ptrs(a)
    a.i("v_lshrrev_b32 v1, 6, v0"); a.i("v_and_b32 v2, 63, v0")
    a.i("v_readfirstlane_b32 s3, v1")
    a.i("s_lshr_b32 s4, s2, 1")
    a.i("s_and_b32 s5, s2, 1")
    a.i("v_lshrrev_b32 v3, 4, v2"); a.i("v_and_b32 v4, 15, v2")
    a.i("s_lshl_b32 s6, s4, 12"); a.i("s_lshl_b32 s7, s5, 9"); a.i("s_add_u32 s6, s6, s7")
    a.i(f"s_mul_i32 s7, s3, {NK}"); a.i("s_add_u32 s6, s6, s7"); a.i("s_add_u32 s6, s6, 3072"); a.i("s_lshl_b32 s6, s6, 8")
    a.i("v_lshlrev_b32 v5, 8, v4"); a.i("v_lshl_add_u32 v5, v3, 4, v5")
    a.i("v_lshlrev_b32 v6, 10, v3"); a.i("v_lshl_add_u32 v6, v4, 4, v6")
    a.i("v_and_b32 v7, 3, v4"); a.i("v_lshlrev_b32 v7, 13, v7"); a.i("v_lshrrev_b32 v8, 2, v4"); a.i("v_lshl_add_u32 v7, v8, 8, v7"); a.i("v_lshl_add_u32 v7, v3, 4, v7")
    a.i("s_lshr_b32 s8, s4, 3"); a.i("s_lshl_b32 s8, s8, 15"); a.i("s_and_b32 s9, s4, 7"); a.i("s_lshl_b32 s9, s9, 10"); a.i("s_add_u32 s8, s8, s9")
    a.i("s_waitcnt lgkmcnt(0)")
    srd(a, 32, 18, 19, NK*256, add="s6")
    srd(a, 36, 20, 21, NK*256, add="s6")
    srd(a, 40, 30, 31, 512 << 10)
    QF = 12; KF = QF + 16; VF = KF + NTL*16; SA = VF + NG*32; T = SA + NTL*4; ACC = T + 32; PF = ACC + 36; ONE = PF + NG*4
    nreg = ONE + 4
    for s in range(4):
        a.i(f"buffer_load_dwordx4 {vr(QF+4*s)}, v7, s[40:43], s8 offen offset:{s*64}")
    for t in range(NTL):
        a.i(f"s_mov_b32 s9, {t*4096}")
        for s in range(4):
            a.i(f"buffer_load_dwordx4 {vr(KF+16*t+4*s)}, v5, s[32:35], s9 offen offset:{s*64} {NT}")
    for u in range(NG):
        for i in range(8):
            if i % 4 == 0: a.i(f"s_mov_b32 s9, {u*8192 + (i>>2)*4096}")
            a.i(f"buffer_load_dwordx4 {vr(VF+32*u+4*i)}, v6, s[36:39], s9 offen offset:{(i&3)*256} {NT}")
    for r in range(NTL*4): a.i(f"v_mov_b32 v{SA+r}, 0")
    for r in range(36): a.i(f"v_mov_b32 v{ACC+r}, 0")
    for r in range(4): a.i(f"v_mov_b32 v{ONE+r}, 0x3f803f80")
    a.i("s_mov_b32 s11, 0x05040100"); a.i("s_mov_b32 s12, 0x07060302")
    a.i(f"s_mov_b32 s13, {f2u(SCALE):#x}")
    nv = NG*8
    for t in range(NTL):
        a.i(f"s_waitcnt vmcnt({nv + (NTL-1-t)*4})")
        for s in range(4):
            a.i(f"v_mfma_f32_16x16x32_bf16 {vr(SA+4*t)}, {vr(KF+16*t+4*s)}, {vr(QF+4*s)}, {vr(SA+4*t)}")
    a.i(f"v_max_f32 v8, v{SA}, v{SA+1}")
    for r in range(2, NTL*4): a.i(f"v_max_f32 v8, v8, v{SA+r}")
    a.i("v_mov_b32 v9, v8"); a.i("v_permlane16_swap_b32 v8, v9"); a.i("v_max_f32 v8, v8, v9")
    a.i("v_mov_b32 v9, v8"); a.i("v_permlane32_swap_b32 v8, v9"); a.i("v_max_f32 v8, v8, v9")
    a.i("v_lshlrev_b32 v10, 2, v4"); a.i("s_lshl_b32 s9, s3, 6"); a.i("v_add_u32 v11, s9, v10")
    a.i("ds_write_b32 v11, v8")
    a.i("s_waitcnt lgkmcnt(0)"); a.i("s_barrier")
    for w in range(NW): a.i(f"ds_read_b32 v{T+w}, v10 offset:{w*64}")
    a.i("s_waitcnt lgkmcnt(0)")
    a.i(f"v_max_f32 v8, v{T}, v{T+1}")
    for w in range(2, NW): a.i(f"v_max_f32 v8, v8, v{T+w}")
    a.i("v_mul_f32 v8, s13, v8")
    for r in range(NTL*4):
        a.i(f"v_fma_f32 v{SA+r}, v{SA+r}, s13, -v8")
    for r in range(NTL*4):
        a.i(f"v_exp_f32 v{SA+r}, v{SA+r}")
    for u in range(NG):
        for p in range(4):
            a.i(f"v_cvt_pk_bf16_f32 v{PF+4*u+p}, v{SA+8*u+2*p}, v{SA+8*u+2*p+1}")
    for u in range(NG):
        a.i(f"s_waitcnt vmcnt({(NG-1-u)*8})")
        L = lambda i, w: VF + 32*u + 4*i + w
        for e in range(8):
            w = e >> 1; sel = 's11' if (e & 1) == 0 else 's12'
            for p in range(4):
                a.i(f"v_perm_b32 v{T+4*e+p}, v{L(2*p+1,w)}, v{L(2*p,w)}, {sel}")
        for e in range(8):
            a.i(f"v_mfma_f32_16x16x32_bf16 {vr(ACC+4*e)}, {vr(PF+4*u)}, {vr(T+4*e)}, {vr(ACC+4*e)}")
        a.i(f"v_mfma_f32_16x16x32_bf16 {vr(ACC+32)}, {vr(PF+4*u)}, {vr(ONE)}, {vr(ACC+32)}")
    a.i("v_lshlrev_b32 v10, 4, v2"); a.i(f"s_mul_i32 s9, s3, 9216"); a.i("s_add_u32 s9, s9, 1024"); a.i("v_add_u32 v11, s9, v10")
    for e in range(9):
        a.i(f"ds_write_b128 v11, {vr(ACC+4*e)} offset:{e*1024}")
    a.i("s_waitcnt lgkmcnt(0)"); a.i("s_barrier")
    a.i(f"s_lshl_b32 s9, s2, 13"); a.i(f"s_add_u32 s9, s9, {WS_OP}")
    srd(a, 44, 30, 31, 8192, add="s9")
    a.i(f"s_lshl_b32 s9, s2, 7"); a.i(f"s_add_u32 s9, s9, {WS_ML}")
    srd(a, 48, 30, 31, 128, add="s9")
    def reduce_acc(esreg_expr_off, dstbase):
        pass
    assert NW <= 8
    for rep in range(8 // NW):
        a.i(f"s_add_u32 s14, s3, {rep*NW}")
        a.i("s_lshl_b32 s9, s14, 10"); a.i("s_add_u32 s9, s9, 1024"); a.i("v_add_u32 v11, s9, v10")
        for w in range(NW):
            a.i(f"ds_read_b128 {vr(KF+4*w)}, v11 offset:{w*9216}") if w*9216 < 65536 else None
        a.i("s_waitcnt lgkmcnt(0)")
        for w in range(1, NW):
            for r in range(4): a.i(f"v_add_f32 v{KF+r}, v{KF+r}, v{KF+4*w+r}")
        a.i("v_lshlrev_b32 v9, 11, v3"); a.i("v_lshl_add_u32 v9, v4, 5, v9"); a.i("s_lshl_b32 s9, s14, 2")
        for r in range(4):
            a.i(f"buffer_store_dword v{KF+r}, v9, s[44:47], s9 offen offset:{r*512}")
    a.i("s_cmp_lg_u32 s3, 0"); a.i("s_cbranch_scc1 La_end")
    a.i(f"v_add_u32 v11, {1024 + 8*1024}, v10")
    for w in range(NW):
        a.i(f"ds_read_b128 {vr(KF+4*w)}, v11 offset:{w*9216}")
    a.i("s_waitcnt lgkmcnt(0)")
    for w in range(1, NW):
        for r in range(4): a.i(f"v_add_f32 v{KF+r}, v{KF+r}, v{KF+4*w+r}")
    a.i("v_cmp_eq_u32 vcc, 0, v4"); a.i("s_and_saveexec_b64 s[52:53], vcc")
    a.i("v_lshlrev_b32 v9, 5, v3")
    for r in range(4):
        a.i(f"buffer_store_dword v{KF+r}, v9, s[48:51], 0 offen offset:{r*8+4}")
    a.i("s_mov_b64 exec, s[52:53]")
    a.i("v_cmp_eq_u32 vcc, 0, v3"); a.i("s_and_saveexec_b64 s[52:53], vcc")
    a.i("v_lshlrev_b32 v9, 3, v4")
    a.i("buffer_store_dword v8, v9, s[48:51], 0 offen")
    a.label("La_end"); a.i("s_endpgm")
    lds = 1024 + NW*9216
    return kernel_desc(name, nreg), lds

def gen_c1(a):
    name = "c1_kernel"
    kernel_begin(a, name)
    a.i("s_cmp_ge_u32 s2, 256"); a.i("s_cbranch_scc1 Lc_end")
    load_ptrs(a)
    a.i("v_lshrrev_b32 v1, 6, v0"); a.i("v_and_b32 v2, 63, v0")
    a.i("v_readfirstlane_b32 s3, v1")
    a.i("s_lshr_b32 s4, s2, 3")
    a.i("s_and_b32 s5, s2, 7")
    a.i("v_lshrrev_b32 v3, 4, v2"); a.i("v_and_b32 v4, 15, v2")
    a.i("v_lshlrev_b32 v6, 13, v3"); a.i("v_lshl_add_u32 v6, v4, 3, v6")
    a.i("s_lshl_b32 s9, s4, 17"); a.i("s_lshl_b32 s10, s5, 7"); a.i("s_add_u32 s9, s9, s10")
    a.i("v_lshrrev_b32 v7, 2, v4"); a.i("v_lshlrev_b32 v7, 17, v7")
    a.i("v_and_b32 v8, 3, v4"); a.i("v_lshl_add_u32 v7, v8, 9, v7"); a.i("v_lshl_add_u32 v7, v3, 5, v7")
    a.i("s_lshl_b32 s6, s3, 19")
    a.i("s_lshr_b32 s7, s4, 2"); a.i("s_lshl_b32 s7, s7, 14"); a.i("s_add_u32 s6, s6, s7")
    a.i("s_and_b32 s7, s4, 3"); a.i("s_lshl_b32 s7, s7, 11"); a.i("s_add_u32 s6, s6, s7")
    a.i("v_lshrrev_b32 v10, 2, v4"); a.i("v_lshlrev_b32 v10, 11, v10"); a.i("v_lshl_add_u32 v10, v8, 3, v10")
    a.i("s_lshl_b32 s8, s3, 13"); a.i("s_lshr_b32 s7, s4, 2"); a.i("s_lshl_b32 s7, s7, 8"); a.i("s_add_u32 s8, s8, s7")
    a.i("s_and_b32 s7, s4, 3"); a.i("s_lshl_b32 s7, s7, 5"); a.i("s_add_u32 s8, s8, s7")
    a.i("s_waitcnt lgkmcnt(0)")
    srd(a, 32, 24, 25, 4 << 20)
    srd(a, 36, 30, 31, 2 << 20, add=str(WS_OP))
    srd(a, 40, 30, 31, 32768, add=str(WS_ML))
    srd(a, 44, 30, 31, 4 << 20, add=str(WS_PART))
    WB = 16; O0 = 80; O1 = 112; T = 144; ACC = 176; AF = 192
    a.i("buffer_load_dwordx2 v[12:13], v10, s[40:43], s8 offen")
    a.i("buffer_load_dwordx2 v[14:15], v10, s[40:43], s8 offen offset:128")
    for s in range(4):
        for hf in range(2):
            a.i(f"buffer_load_dwordx4 {vr(O0+8*s+4*hf)}, v7, s[36:39], s6 offen offset:{s*128+hf*16}")
    a.i("s_add_u32 s6, s6, 8192")
    for s in range(4):
        for hf in range(2):
            a.i(f"buffer_load_dwordx4 {vr(O1+8*s+4*hf)}, v7, s[36:39], s6 offen offset:{s*128+hf*16}")
    for s in range(4):
        for i in range(8):
            a.i(f"buffer_load_dwordx2 {vr(WB+16*s+2*i,2)}, v6, s[32:35], s9 offen {NT}")
            a.i("s_add_u32 s9, s9, 1024")
        if s < 3: a.i(f"s_add_u32 s9, s9, {24*1024}")
    a.i("s_mov_b32 s11, 0x05040100"); a.i("s_mov_b32 s12, 0x07060302")
    for r in range(16): a.i(f"v_mov_b32 v{ACC+r}, 0")
    a.i("s_waitcnt vmcnt(48)")
    a.i("v_max_f32 v8, v12, v14"); a.i("v_sub_f32 v12, v12, v8"); a.i("v_sub_f32 v14, v14, v8")
    a.i("v_exp_f32 v12, v12"); a.i("v_exp_f32 v14, v14")
    a.i("v_mul_f32 v13, v13, v12"); a.i("v_fmac_f32 v13, v15, v14"); a.i("v_rcp_f32 v13, v13")
    a.i("v_mul_f32 v12, v12, v13"); a.i("v_mul_f32 v14, v14, v13")
    a.i("s_waitcnt vmcnt(32)")
    for r in range(32):
        a.i(f"v_mul_f32 v{O0+r}, v{O0+r}, v12"); a.i(f"v_fmac_f32 v{O0+r}, v{O1+r}, v14")
    for s in range(4):
        for p in range(4):
            a.i(f"v_cvt_pk_bf16_f32 v{AF+4*s+p}, v{O0+8*s+2*p}, v{O0+8*s+2*p+1}")
    for s in range(4):
        a.i(f"s_waitcnt vmcnt({24-8*s})")
        tb = T + (s & 1) * 16
        L = lambda i, w: WB + 16*s + 2*i + w
        for e in range(4):
            w = e >> 1; sel = 's11' if (e & 1) == 0 else 's12'
            for p in range(4):
                a.i(f"v_perm_b32 v{tb+4*e+p}, v{L(2*p+1,w)}, v{L(2*p,w)}, {sel}")
        for e in range(4):
            a.i(f"v_mfma_f32_16x16x32_bf16 {vr(ACC+4*e)}, {vr(AF+4*s)}, {vr(tb+4*e)}, {vr(ACC+4*e)}")
    for r in range(4):
        for e in range(4): a.i(f"v_mov_b32 v{T+4*r+e}, v{ACC+4*e+r}")
    a.i("v_lshlrev_b32 v9, 13, v3"); a.i("v_lshl_add_u32 v9, v4, 4, v9")
    a.i("s_lshl_b32 s6, s4, 17"); a.i("s_lshl_b32 s7, s3, 15"); a.i("s_add_u32 s6, s6, s7"); a.i("s_lshl_b32 s7, s5, 8"); a.i("s_add_u32 s6, s6, s7")
    for r in range(4):
        if r == 2: a.i("s_add_u32 s6, s6, 4096")
        a.i(f"buffer_store_dwordx4 {vr(T+4*r)}, v9, s[44:47], s6 offen offset:{(r&1)*2048}")
    a.label("Lc_end"); a.i("s_endpgm")
    return kernel_desc(name, 208)

def gen_c2(a):
    name = "c2_kernel"
    kernel_begin(a, name)
    a.i("s_cmp_ge_u32 s2, 128"); a.i("s_cbranch_scc1 Ld_end")
    load_ptrs(a)
    a.i("s_lshl_b32 s3, s2, 6"); a.i("v_add_u32 v1, s3, v0")
    a.i("v_lshlrev_b32 v2, 4, v1"); a.i("v_lshlrev_b32 v3, 3, v1")
    a.i("s_waitcnt lgkmcnt(0)")
    srd(a, 32, 30, 31, 4 << 20, add=str(WS_PART))
    srd(a, 36, 26, 27, 65536)
    a.i("s_mov_b32 s4, 0")
    for h in range(32):
        a.i(f"buffer_load_dwordx4 {vr(4+4*h)}, v2, s[32:35], s4 offen")
        a.i("s_add_u32 s4, s4, 131072")
    for h in range(1, 32):
        a.i(f"s_waitcnt vmcnt({31-h})")
        for r in range(4): a.i(f"v_add_f32 v{4+r}, v{4+r}, v{4+4*h+r}")
    a.i("v_cvt_pk_bf16_f32 v8, v4, v5"); a.i("v_cvt_pk_bf16_f32 v9, v6, v7")
    a.i("buffer_store_dwordx2 v[8:9], v3, s[36:39], 0 offen")
    a.label("Ld_end"); a.i("s_endpgm")
    return kernel_desc(name, 136)

def main(out, NW=8):
    a = Asm()
    body = Asm()
    d = []
    d.append(gen_qproj(body))
    da, lds = gen_attn(body, NW); d.append(da)
    d.append(gen_c1(body)); d.append(gen_c2(body))
    a(HEADER + f"""; @launch kernel=qproj_kernel grid=(256,1,1) block=(256,1,1) lds=16384
; @launch kernel=attn_kernel grid=(256,1,1) block=({NW*64},1,1) lds={lds}
; @launch kernel=c1_kernel grid=(256,1,1) block=(256,1,1) lds=0
; @launch kernel=c2_kernel grid=(128,1,1) block=(64,1,1) lds=0""")
    a('.amdgcn_target "amdgcn-amd-amdhsa--gfx950"\n.text')
    lines, n = hazard.fix(body.lines)
    print("inserted nop states:", n)
    a.lines += lines
    a('.section .rodata,"a"')
    for x in d: a(x)
    open(out, "w").write(a.text())

if __name__ == "__main__":
    main(sys.argv[1] if len(sys.argv) > 1 else "base.s", int(sys.argv[2]) if len(sys.argv) > 2 else 8)
```

```python
import sys, re
import gen_base as gb
from asmlib import *
import hazard
NAME = "standalone__sliding_block_cached__sampling_kernel"

def strip(lines, drop_prefix):
    return lines

def grid_barrier(a, k, nwg):
    L = f"Lgb{k}"
    a.i("s_waitcnt vmcnt(0) lgkmcnt(0)")
    a.i("s_barrier")
    a.i("v_readfirstlane_b32 s60, v255")
    a.i("s_cmp_lg_u32 s60, 0")
    a.i(f"s_cbranch_scc1 {L}_skip")
    a.i("buffer_wbl2 sc1")
    a.i("s_waitcnt vmcnt(0)")
    a.i("s_load_dwordx2 s[62:63], s[0:1], 48")
    a.i("s_waitcnt lgkmcnt(0)")
    a.i(f"v_mov_b32 v250, {4*k}"); a.i("v_mov_b32 v251, 1")
    a.i("s_mov_b64 s[64:65], exec"); a.i("s_mov_b64 exec, 1")
    a.i("global_atomic_add v250, v251, s[62:63] sc1")
    a.i("s_mov_b32 s66, 0")
    a.label(f"{L}_spin")
    a.i("global_load_dword v252, v250, s[62:63] sc1")
    a.i("s_waitcnt vmcnt(0)")
    a.i("v_readfirstlane_b32 s61, v252")
    a.i("s_add_u32 s66, s66, 1")
    a.i("s_cmp_gt_u32 s66, 200000")
    a.i(f"s_cbranch_scc1 {L}_out")
    a.i(f"s_cmp_lt_u32 s61, {nwg}")
    a.i(f"s_cbranch_scc1 {L}_spin")
    a.label(f"{L}_out")
    a.i("s_mov_b64 exec, s[64:65]")
    a.i("buffer_inv sc1")
    a.i("s_waitcnt vmcnt(0)")
    a.label(f"{L}_skip")
    a.i("s_barrier")

def body_of(fn, *args):
    t = Asm()
    fn(t, *args)
    lines = t.lines
    lines = lines[4:]
    return lines

def main(out):
    a = Asm(); body = Asm()
    kernel_begin(body, NAME)
    body.i("s_cmp_ge_u32 s2, 256"); body.i("s_cbranch_scc1 L_end")
    body.i("v_mov_b32 v254, v0"); body.i("v_lshrrev_b32 v255, 6, v0")
    body.i("s_nop 1"); body.i("v_readfirstlane_b32 s60, v255"); body.i("s_cmp_ge_u32 s60, 4"); body.i("s_cbranch_scc1 Lp1_skip")
    l = body_of(gb.gen_qproj)
    l = [x for x in l if 's_endpgm' not in x and 'Lq_end' not in x and 's_cmp_ge_u32 s2, 256' not in x]
    body.lines += l
    body.i("s_branch Lp1_done")
    body.label("Lp1_skip"); body.i("s_barrier")
    body.label("Lp1_done")
    grid_barrier(body, 0, 256)
    body.i("v_mov_b32 v0, v254")
    l = body_of(gb.gen_attn, 8)
    l = [x for x in l if 's_endpgm' not in x and 's_cmp_ge_u32 s2, 256' not in x and x.strip() != 's_cbranch_scc1 La_end' ] if False else l
    l2 = []
    first = True
    for x in l:
        if 's_endpgm' in x or 's_cmp_ge_u32 s2, 256' in x: continue
        if x.strip() == 's_cbranch_scc1 La_end' and first:
            first = False; continue
        l2.append(x)
    body.lines += l2
    body.i("s_mov_b64 exec, -1")
    grid_barrier(body, 1, 256)
    body.i("v_mov_b32 v0, v254")
    body.i("v_readfirstlane_b32 s60, v255"); body.i("s_cmp_ge_u32 s60, 4"); body.i("s_cbranch_scc1 Lp3_skip")
    l = body_of(gb.gen_c1)
    l = [x for x in l if 's_endpgm' not in x and 'Lc_end' not in x and 's_cmp_ge_u32 s2, 256' not in x]
    body.lines += l
    body.label("Lp3_skip")
    grid_barrier(body, 2, 256)
    body.i("v_mov_b32 v0, v254")
    body.i("v_readfirstlane_b32 s60, v255"); body.i("s_cmp_ge_u32 s60, 1"); body.i("s_cbranch_scc1 L_end")
    l = body_of(gb.gen_c2)
    l = [x for x in l if 's_endpgm' not in x and 'Ld_end' not in x]
    l = [x.replace('Ld_end', 'L_end') if 'cbranch' in x else x for x in l]
    body.lines += [x for x in body_of(gb.gen_c2) if 's_endpgm' not in x and not x.startswith('Ld_end')]
    body.lines = [x.replace('s_cbranch_scc1 Ld_end', 's_cbranch_scc1 L_end') for x in body.lines]
    body.label("L_end"); body.i("s_endpgm")
    a(HEADER + f"; @launch grid=(256,1,1) block=(512,1,1) lds={1024+8*9216}")
    a('.amdgcn_target "amdgcn-amd-amdhsa--gfx950"\n.text')
    lines, n = hazard.fix(body.lines)
    a.lines += lines
    a('.section .rodata,"a"')
    a(kernel_desc(NAME, 256))
    open(out, "w").write(a.text())

if __name__ == "__main__":
    if len(sys.argv) > 2: gb.NT = sys.argv[2] if sys.argv[2] != 'plain' else ''
    main(sys.argv[1])
```

```python
import sys, struct
from asmlib import *
import hazard

NAME = "standalone__sliding_block_cached__sampling_kernel"
def f2u(x): return struct.unpack('<I', struct.pack('<f', x))[0]
SCALE = 0.08838834764831845 * 1.4426950408889634

WS_QS = 0x10000
WS_ST = 0x200000
WS_OS = 0x300000
WS_PS = 0x500000
WS_SIZE = 0x800000
STAMPOFF = 256 << 20
TAGINC = 0x9E3779B9

L_K = 0
L_OR = 0
L_CR = 32768
L_QR = 131072
L_P = 131072
L_CNT = 147456
L_F = L_CNT + 64
L_Q = L_CNT + 512
L_END = L_Q + 4096
CQ, CK, CV, CO, CC, CP, CF, CQ2 = 0, 4, 8, 12, 16, 20, 36, 40

class Opt:
    stamps = False
    kv_flags = "nt"
    w_flags = "nt"
    x_flags = ""
    st_flags = "sc1"
    ld_flags = "sc1"
    spin_limit = 30000
    k_per_step = 1
    wo_early = 2
    a_prio = 2
    b_prio_pv = 3

def vr(b, n=4): return f"v[{b}:{b+n-1}]" if n > 1 else f"v{b}"

def srd(a, d, lo, hi, size, add=None):
    if add is None:
        a.i(f"s_mov_b32 s{d}, s{lo}"); a.i(f"s_mov_b32 s{d+1}, s{hi}")
    else:
        a.i(f"s_add_u32 s{d}, s{lo}, {add}"); a.i(f"s_addc_u32 s{d+1}, s{hi}, 0")
    a.i(f"s_mov_b32 s{d+2}, {size}"); a.i(f"s_mov_b32 s{d+3}, 0x20000")

class G:
    def __init__(self, opt):
        self.a = Asm(); self.o = opt; self.nl = 0
    def lab(self, p):
        self.nl += 1; return f"L{p}{self.nl}"
    def stamp(self, k):
        if self.o.stamps:
            self.a.i(f"s_memrealtime s[{64+2*k}:{65+2*k}]")
    def signal(self, cnt, vaddr=1):
        a = self.a
        a.i("s_mov_b64 exec, 1")
        a.i(f"ds_add_u32 v{vaddr}, v6 offset:{cnt}")
        a.i("s_mov_b64 exec, -1")
    def wait_cnt(self, cnt, n, vt=10, vaddr=1):
        a = self.a
        L = self.lab("w")
        a.i("s_mov_b32 s15, 0")
        a.label(L)
        a.i(f"ds_read_b32 v{vt}, v{vaddr} offset:{cnt}")
        a.i("s_add_u32 s15, s15, 1")
        a.i("s_waitcnt lgkmcnt(0)")
        a.i(f"v_readfirstlane_b32 s14, v{vt}")
        a.i(f"s_cmp_gt_u32 s15, {self.o.spin_limit*16}")
        a.i(f"s_cbranch_scc1 {L}_o")
        a.i(f"s_cmp_ge_u32 s14, {n}")
        a.i(f"s_cbranch_scc0 {L}")
        a.label(f"{L}_o")
    def retry_tail(self, Lretry, Lok):
        a = self.a
        a.i("s_add_u32 s45, s45, 1")
        a.i(f"s_cmp_gt_u32 s45, {self.o.spin_limit}")
        a.i(f"s_cbranch_scc1 {Lok}")
        a.i(f"s_cbranch_vccnz {Lretry}")
        a.label(Lok)

def transpose4(a, dst, L):
    for e in range(4):
        w = e >> 1; sel = 's11' if (e & 1) == 0 else 's12'
        for p in range(4):
            a.i(f"v_perm_b32 v{dst+4*e+p}, v{L(2*p+1,w)}, v{L(2*p,w)}, {sel}")

def kvbase(a):
    a.i("s_lshr_b32 s14, s5, 1"); a.i("s_lshl_b32 s14, s14, 3"); a.i("s_add_u32 s14, s14, s4"); a.i("s_lshl_b32 s14, s14, 12")
    a.i("s_lshl_b32 s15, s9, 9"); a.i("s_add_u32 s14, s14, s15"); a.i("s_lshl_b32 s15, s3, 7"); a.i("s_add_u32 s14, s14, s15")
    a.i("s_add_u32 s14, s14, 3072"); a.i("s_lshl_b32 s14, s14, 8")

def gen(opt):
    g = G(opt); a = g.a
    kernel_begin(a, NAME)
    a.i("s_cmp_ge_u32 s2, 256"); a.i("s_cbranch_scc1 L_end")
    g.stamp(0)
    a.i("s_load_dwordx16 s[16:31], s[0:1], 0")
    a.i("v_lshrrev_b32 v1, 6, v0"); a.i("v_and_b32 v2, 63, v0")
    a.i("v_readfirstlane_b32 s3, v1")
    a.i("s_and_b32 s4, s2, 7")
    a.i("s_lshr_b32 s5, s2, 3")
    a.i("s_lshr_b32 s6, s5, 3")
    a.i("s_and_b32 s7, s5, 7")
    a.i("s_bfe_u32 s8, s5, 0x20001")
    a.i("s_and_b32 s9, s5, 1")
    a.i("v_lshrrev_b32 v3, 4, v2"); a.i("v_and_b32 v4, 15, v2")
    a.i("v_mov_b32 v5, 0"); a.i("v_mov_b32 v6, 1")
    a.i(f"v_mov_b32 v1, {L_CNT}")
    a.i("s_mov_b32 s11, 0x05040100"); a.i("s_mov_b32 s12, 0x07060302")
    a.i("s_lshl_b32 s40, s4, 5"); a.i("s_add_u32 s41, s40, s5")
    a.i("s_and_b32 s42, s41, 0xfffffff8")
    a.i("s_cmp_lg_u32 s3, 0"); a.i("s_cbranch_scc1 L_P1")
    a.i("v_lshl_add_u32 v7, v2, 2, v1"); a.i("ds_write_b32 v7, v5 offset:0")
    a.label("L_P1")
    a.i("s_waitcnt lgkmcnt(0)")
    a.i("s_barrier")
    a.i("s_lshl_b32 s15, s6, 7")
    a.i("s_load_dword s10, s[30:31], s15")
    srd(a, 32, 30, 31, WS_SIZE)
    a.i("s_cmp_ge_u32 s3, 4"); a.i("s_cbranch_scc1 L_B")

    if opt.a_prio: a.i(f"s_setprio {opt.a_prio}")
    kvbase(a)
    srd(a, 36, 18, 19, 128*256, add="s14")
    srd(a, 52, 16, 17, 65536)
    srd(a, 48, 22, 23, 4 << 20)
    XA, WB, T, ACC = 16, 32, 96, 128
    for r in range(4): a.i(f"v_mov_b32 v{96+r}, -1")
    a.i("v_lshlrev_b32 v7, 4, v2")
    a.i("s_lshl_b32 s43, s41, 12"); a.i("s_lshl_b32 s14, s3, 10"); a.i("s_add_u32 s43, s43, s14"); a.i(f"s_add_u32 s46, s43, {WS_OS}")
    a.i(f"buffer_store_dwordx4 v[96:99], v7, s[32:35], s46 offen {opt.st_flags}")
    a.i("v_lshlrev_b32 v8, 10, v4"); a.i("v_lshl_add_u32 v8, v3, 4, v8")
    a.i("v_lshlrev_b32 v9, 16, v3"); a.i("v_lshl_add_u32 v9, v4, 3, v9")
    a.i("s_lshl_b32 s14, s6, 14"); a.i("s_lshl_b32 s15, s3, 8"); a.i("s_add_u32 s45, s14, s15")
    a.i("s_lshl_b32 s44, s3, 20"); a.i("s_lshl_b32 s14, s4, 10"); a.i("s_add_u32 s44, s44, s14"); a.i("s_lshl_b32 s14, s7, 7"); a.i("s_add_u32 s44, s44, s14")
    for n in range(4):
        a.i(f"v_add_u32 v10, {4*n}, v3"); a.i("v_xor_b32 v10, v10, v4"); a.i("v_lshlrev_b32 v10, 4, v10"); a.i(f"v_lshl_add_u32 v{12+n}, v3, 8, v10")
    a.i("s_lshl_b32 s47, s3, 15")
    seq = [('p', 0)]
    def ktile(t):
        a.i(f"s_add_u32 s14, s47, {t*4096}"); a.i("s_mov_b32 m0, s14"); a.i(f"s_mov_b32 s14, {t*4096}")
        for n in range(4):
            a.i(f"buffer_load_dwordx4 v{12+n}, s[36:39], s14 offen offset:{n*1024} {opt.kv_flags} lds")
            seq.append(('k', t))
    def wqstep(s_):
        for i in range(8):
            a.i(f"buffer_load_dwordx2 {vr(WB+16*s_+2*i,2)}, v9, s[48:51], s44 offen {opt.w_flags}")
            a.i("s_add_u32 s44, s44, 8192")
            seq.append(('w', s_))
        if s_ < 3: a.i(f"s_add_u32 s44, s44, {24*8192}")
    kt = 0
    for s_ in range(4):
        wqstep(s_)
        if s_ == 0:
            for s2 in range(4):
                a.i(f"buffer_load_dwordx4 {vr(XA+4*s2)}, v8, s[52:55], s45 offen offset:{s2*64} {opt.x_flags}")
                seq.append(('x', 0))
        for _ in range(opt.k_per_step):
            if kt < 8: ktile(kt); kt += 1
    while kt < 8:
        ktile(kt); kt += 1
    g.signal(CK)
    g.stamp(1)
    ntot = len(seq)
    for s_ in range(4):
        last = max(i for i, e in enumerate(seq) if e == ('w', s_) or (s_ == 0 and e[0] == 'x'))
        a.i(f"s_waitcnt vmcnt({min(63, ntot-1-last)})")
        tb = T + (s_ & 1) * 16
        transpose4(a, tb, lambda i, w: WB + 16*s_ + 2*i + w)
        for e in range(4):
            c = "0" if s_ == 0 else vr(ACC+4*e)
            a.i(f"v_mfma_f32_16x16x32_bf16 {vr(ACC+4*e)}, {vr(XA+4*s_)}, {vr(tb+4*e)}, {c}")
    a.i("v_lshlrev_b32 v9, 2, v2"); a.i("s_lshl_b32 s14, s3, 10"); a.i(f"s_add_u32 s14, s14, {L_QR}"); a.i("v_add_u32 v7, s14, v9")
    for r in range(4):
        for e in range(0, 4, 2):
            a.i(f"ds_write2st64_b32 v7, v{ACC+4*e+r}, v{ACC+4*(e+1)+r} offset0:{r*16+e} offset1:{r*16+e+1}")
    a.i("s_waitcnt lgkmcnt(0)")
    g.signal(CQ)
    g.wait_cnt(CQ, 4)
    a.i("s_lshl_b32 s14, s3, 12"); a.i(f"s_add_u32 s14, s14, {L_QR}"); a.i("v_add_u32 v7, s14, v9")
    R = 144
    for src in range(4):
        for e in range(0, 4, 2):
            a.i(f"ds_read2st64_b32 {vr(R+4*src+e,2)}, v7 offset0:{src*4+e} offset1:{src*4+e+1}")
    a.i("s_waitcnt lgkmcnt(0)")
    a.i(f"s_add_u32 s10, s10, {TAGINC:#x}")
    a.i("v_mov_b32 v8, s10")
    for e in range(4):
        a.i(f"v_add_f32 v{R+e}, v{R+e}, v{R+4+e}"); a.i(f"v_add_f32 v{R+8+e}, v{R+8+e}, v{R+12+e}")
    for e in range(4): a.i(f"v_add_f32 v{R+e}, v{R+e}, v{R+8+e}")
    a.i(f"v_cvt_pk_bf16_f32 v{R+4}, v{R}, v{R+1}"); a.i(f"v_cvt_pk_bf16_f32 v{R+5}, v{R+2}, v{R+3}")
    a.i(f"v_perm_b32 v{R+8}, v{R+4}, v8, s11"); a.i(f"v_perm_b32 v{R+9}, v{R+4}, v8, s12")
    a.i(f"v_perm_b32 v{R+10}, v{R+5}, v8, s11"); a.i(f"v_perm_b32 v{R+11}, v{R+5}, v8, s12")
    a.i("v_lshlrev_b32 v9, 10, v3"); a.i("v_and_b32 v10, 1, v4"); a.i("v_lshl_add_u32 v9, v10, 9, v9")
    a.i("v_lshrrev_b32 v10, 3, v4"); a.i("v_lshl_add_u32 v9, v10, 8, v9"); a.i("v_bfe_u32 v10, v4, 1, 2"); a.i("v_lshl_add_u32 v9, v10, 4, v9")
    a.i("s_lshl_b32 s43, s41, 12"); a.i("s_lshl_b32 s14, s3, 6"); a.i("s_add_u32 s43, s43, s14"); a.i(f"s_add_u32 s43, s43, {WS_QS}")
    a.i(f"buffer_store_dwordx4 {vr(R+8)}, v9, s[32:35], s43 offen {opt.st_flags}")
    g.stamp(2)
    QR = 160
    a.i("v_lshrrev_b32 v9, 2, v4"); a.i("v_lshlrev_b32 v9, 13, v9"); a.i("v_and_b32 v10, 3, v4"); a.i("v_lshl_add_u32 v9, v10, 6, v9"); a.i("v_lshl_add_u32 v9, v3, 4, v9")
    a.i("s_lshl_b32 s43, s42, 12"); a.i("s_lshl_b32 s14, s8, 10"); a.i("s_add_u32 s43, s43, s14"); a.i(f"s_add_u32 s43, s43, {WS_QS}")
    a.i("s_lshr_b32 s14, s3, 1"); a.i("s_lshl_b32 s14, s14, 12"); a.i("s_add_u32 s43, s43, s14")
    a.i("s_and_b32 s14, s3, 1"); a.i("s_lshl_b32 s14, s14, 8"); a.i("s_add_u32 s43, s43, s14")
    for u in range(2):
        a.i(f"buffer_load_dwordx4 {vr(QR+4*u)}, v9, s[32:35], s43 offen offset:{u*512} {opt.ld_flags}")
    WR, WF = 32, 96
    srd(a, 48, 24, 25, 4 << 20)
    a.i("v_lshlrev_b32 v7, 15, v3"); a.i("v_lshl_add_u32 v7, v4, 3, v7")
    a.i("s_lshl_b32 s46, s4, 2"); a.i("s_add_u32 s46, s46, s3"); a.i("s_lshl_b32 s46, s46, 17"); a.i("s_lshl_b32 s15, s7, 7"); a.i("s_add_u32 s46, s46, s15")
    a.i("v_mov_b32 v16, v7")
    def wostep(st):
        for i in range(8):
            if i % 4 == 0 and (st or i): a.i("s_add_u32 s46, s46, 4096")
            a.i(f"buffer_load_dwordx2 {vr(WR+16*st+2*i,2)}, v16, s[48:51], s46 offen offset:{(i&3)*1024} {opt.w_flags}")
    for st in range(opt.wo_early): wostep(st)
    a.i(f"s_waitcnt vmcnt({8*opt.wo_early})")
    a.i("s_mov_b32 s45, 0")
    a.i("s_branch L_A_qchk")
    a.label("L_A_qretry")
    for u in range(2):
        a.i(f"buffer_load_dwordx4 {vr(QR+4*u)}, v9, s[32:35], s43 offen offset:{u*512} {opt.ld_flags}")
    a.i("s_waitcnt vmcnt(0)")
    a.label("L_A_qchk")
    a.i("v_mov_b32 v10, 0")
    for k in range(4):
        a.i(f"v_perm_b32 v11, v{QR+2*k+1}, v{QR+2*k}, s11")
        a.i(f"v_xor_b32 v11, v11, v8")
        a.i(f"v_or_b32 v10, v10, v11")
    a.i("v_cmp_ne_u32 vcc, 0, v10")
    g.retry_tail("L_A_qretry", "L_A_qok")
    for k in range(4):
        a.i(f"v_perm_b32 v{QR+8+k}, v{QR+2*k+1}, v{QR+2*k}, s12")
    a.i("v_lshlrev_b32 v9, 4, v2"); a.i("s_lshl_b32 s14, s3, 10"); a.i(f"s_add_u32 s14, s14, {L_Q}"); a.i("v_add_u32 v10, s14, v9")
    a.i(f"ds_write_b128 v10, {vr(QR+8)}")
    for st in range(4):
        a.i(f"v_add_u32 v10, {4*st}, v3"); a.i("v_xor_b32 v10, v10, v4"); a.i("v_lshlrev_b32 v10, 4, v10"); a.i("v_lshl_add_u32 v10, v4, 8, v10"); a.i(f"v_add_u32 v{12+st}, s47, v10")
    a.i("s_waitcnt lgkmcnt(0)")
    g.signal(CQ2)
    KB = [96, 128]; QF = 176; SA = 192; PF = 224; ST = 240
    def kread(p):
        for tt in range(2):
            for st in range(4):
                a.i(f"ds_read_b128 {vr(KB[p&1]+16*tt+4*st)}, v{12+st} offset:{(2*p+tt)*4096}")
    kread(0)
    g.wait_cnt(CQ2, 4)
    a.i(f"v_add_u32 v10, {L_Q}, v9")
    for st in range(4): a.i(f"ds_read_b128 {vr(QF+4*st)}, v10 offset:{st*1024}")
    g.stamp(3)
    kread(1)
    for p in range(4):
        a.i(f"s_waitcnt lgkmcnt({8 if p < 3 else 0})")
        for tt in range(2):
            t = 2*p + tt
            for st in range(4):
                c = "0" if st == 0 else vr(SA+4*t)
                a.i(f"v_mfma_f32_16x16x32_bf16 {vr(SA+4*t)}, {vr(KB[p&1]+16*tt+4*st)}, {vr(QF+4*st)}, {c}")
        if p + 2 < 4: kread(p + 2)
    a.i(f"s_mov_b32 s13, {f2u(SCALE):#x}")
    a.i(f"v_max3_f32 v10, v{SA}, v{SA+1}, v{SA+2}")
    for r in range(3, 31, 2): a.i(f"v_max3_f32 v10, v10, v{SA+r}, v{SA+r+1}")
    a.i(f"v_max_f32 v10, v10, v{SA+31}")
    a.i("v_mov_b32 v11, v10"); a.i("v_permlane16_swap_b32 v10, v11"); a.i("v_max_f32 v10, v10, v11")
    a.i("v_mov_b32 v11, v10"); a.i("v_permlane32_swap_b32 v10, v11"); a.i("v_max_f32 v10, v10, v11")
    a.i("v_mul_f32 v12, s13, v10")
    for r in range(32): a.i(f"v_fma_f32 v{SA+r}, v{SA+r}, s13, -v12")
    for r in range(32): a.i(f"v_exp_f32 v{SA+r}, v{SA+r}")
    for k in range(16): a.i(f"v_cvt_pk_bf16_f32 v{PF+k}, v{SA+2*k}, v{SA+2*k+1}")
    a.i("v_lshlrev_b32 v9, 4, v2"); a.i("s_lshl_b32 s14, s3, 12"); a.i(f"s_add_u32 s14, s14, {L_P}"); a.i("v_add_u32 v9, s14, v9")
    for u in range(4): a.i(f"ds_write_b128 v9, {vr(PF+4*u)} offset:{u*1024}")
    a.i(f"v_add_f32 v10, v{SA}, v{SA+1}"); a.i(f"v_add_f32 v11, v{SA+2}, v{SA+3}")
    for r in range(4, 32, 2):
        a.i(f"v_add_f32 v10, v10, v{SA+r}"); a.i(f"v_add_f32 v11, v11, v{SA+r+1}")
    a.i("s_waitcnt lgkmcnt(0)")
    a.i("s_lshl_b32 s14, s3, 2"); a.i("v_add_u32 v7, s14, v1")
    g.signal(CP, vaddr=7)
    a.i("v_add_f32 v10, v10, v11")
    a.i("v_mov_b32 v11, v10"); a.i("v_permlane16_swap_b32 v10, v11"); a.i("v_add_f32 v10, v10, v11")
    a.i("v_mov_b32 v11, v10"); a.i("v_permlane32_swap_b32 v10, v11"); a.i("v_add_f32 v13, v10, v11")
    a.i("v_mov_b32 v14, v8"); a.i("v_mov_b32 v15, v8")
    a.i("s_lshl_b32 s43, s41, 10"); a.i("s_lshl_b32 s14, s3, 8"); a.i("s_add_u32 s43, s43, s14"); a.i(f"s_add_u32 s43, s43, {WS_ST}")
    a.i("v_lshlrev_b32 v9, 4, v4")
    a.i("s_mov_b64 exec, 0xffff")
    a.i(f"buffer_store_dwordx4 v[12:15], v9, s[32:35], s43 offen {opt.st_flags}")
    a.i("s_mov_b64 exec, -1")
    g.stamp(4)
    for st in range(opt.wo_early, 4): wostep(st)
    a.i("s_and_b32 s43, s41, 0xfffffffe"); a.i("s_lshl_b32 s43, s43, 10"); a.i(f"s_add_u32 s43, s43, {WS_ST}")
    a.i("v_lshl_add_u32 v9, v3, 9, v9")
    a.i("s_mov_b32 s45, 0")
    a.label("L_A_sretry")
    a.i(f"buffer_load_dwordx4 {vr(ST)}, v9, s[32:35], s43 offen {opt.ld_flags}")
    a.i(f"buffer_load_dwordx4 {vr(ST+4)}, v9, s[32:35], s43 offen offset:256 {opt.ld_flags}")
    a.i("s_waitcnt vmcnt(0)")
    a.i(f"v_xor_b32 v10, v{ST+2}, v8"); a.i(f"v_xor_b32 v11, v{ST+3}, v8"); a.i("v_or_b32 v10, v10, v11")
    a.i(f"v_xor_b32 v11, v{ST+6}, v8"); a.i("v_or_b32 v10, v10, v11"); a.i(f"v_xor_b32 v11, v{ST+7}, v8"); a.i("v_or_b32 v10, v10, v11")
    a.i("v_cmp_ne_u32 vcc, 0, v10")
    g.retry_tail("L_A_sretry", "L_A_sok")
    a.i(f"v_max_f32 v10, v{ST}, v{ST+4}")
    a.i("v_mov_b32 v11, v10"); a.i("v_permlane16_swap_b32 v10, v11"); a.i("v_max_f32 v10, v10, v11")
    a.i("v_mov_b32 v11, v10"); a.i("v_permlane32_swap_b32 v10, v11"); a.i("v_max_f32 v10, v10, v11")
    a.i(f"v_sub_f32 v{ST}, v{ST}, v10"); a.i(f"v_sub_f32 v{ST+4}, v{ST+4}, v10")
    a.i(f"v_exp_f32 v{ST}, v{ST}"); a.i(f"v_exp_f32 v{ST+4}, v{ST+4}")
    a.i(f"v_mul_f32 v{ST+1}, v{ST+1}, v{ST}"); a.i(f"v_fmac_f32 v{ST+1}, v{ST+5}, v{ST+4}")
    a.i(f"v_mov_b32 v11, v{ST+1}"); a.i(f"v_permlane16_swap_b32 v{ST+1}, v11"); a.i(f"v_add_f32 v{ST+1}, v{ST+1}, v11")
    a.i(f"v_mov_b32 v11, v{ST+1}"); a.i(f"v_permlane32_swap_b32 v{ST+1}, v11"); a.i(f"v_add_f32 v11, v{ST+1}, v11")
    a.i("v_sub_f32 v12, v12, v10"); a.i("v_exp_f32 v12, v12"); a.i("v_rcp_f32 v11, v11"); a.i("v_mul_f32 v12, v12, v11")
    a.i("v_lshlrev_b32 v9, 2, v4"); a.i("s_lshl_b32 s14, s3, 6"); a.i(f"s_add_u32 s14, s14, {L_F}"); a.i("v_add_u32 v9, s14, v9")
    a.i("ds_write_b32 v9, v12")
    a.i("s_waitcnt lgkmcnt(0)")
    g.signal(CF)
    g.stamp(5)
    for st in range(4):
        transpose4(a, WF+16*st, lambda i, w: WR + 16*st + 2*i + w)
    g.wait_cnt(CO, 8)
    OG, CA = 192, 176
    a.i("v_lshrrev_b32 v9, 2, v4"); a.i("v_lshlrev_b32 v9, 13, v9"); a.i("v_and_b32 v10, 3, v4"); a.i("v_lshl_add_u32 v9, v10, 6, v9"); a.i("v_lshl_add_u32 v9, v3, 4, v9")
    a.i("s_lshl_b32 s43, s42, 12"); a.i("s_lshl_b32 s14, s3, 10"); a.i("s_add_u32 s43, s43, s14"); a.i(f"s_add_u32 s43, s43, {WS_OS}")
    a.i("s_add_u32 s44, s43, 4096")
    a.i("s_mov_b32 s45, 0")
    a.label("L_A_oretry")
    for sp in range(2):
        for st in range(4):
            a.i(f"buffer_load_dwordx4 {vr(OG+16*sp+4*st)}, v9, s[32:35], {'s43' if sp == 0 else 's44'} offen offset:{st*256} {opt.ld_flags}")
    a.i("s_waitcnt vmcnt(0)")
    a.i(f"v_max3_u32 v10, v{OG}, v{OG+1}, v{OG+2}")
    for r in range(3, 31, 2): a.i(f"v_max3_u32 v10, v10, v{OG+r}, v{OG+r+1}")
    a.i(f"v_max_u32 v10, v10, v{OG+31}")
    a.i("v_cmp_eq_u32 vcc, -1, v10")
    g.retry_tail("L_A_oretry", "L_A_ook")
    g.stamp(6)
    for sp in range(2):
        for st in range(4):
            for e in range(4):
                c = "0" if (sp == 0 and st == 0) else vr(CA+4*e)
                a.i(f"v_mfma_f32_16x16x32_bf16 {vr(CA+4*e)}, {vr(OG+16*sp+4*st)}, {vr(WF+16*st+4*e)}, {c}")
    a.i("v_lshlrev_b32 v9, 2, v2"); a.i("s_lshl_b32 s14, s3, 10"); a.i(f"s_add_u32 s14, s14, {L_CR}"); a.i("v_add_u32 v7, s14, v9")
    for r in range(4):
        for e in range(0, 4, 2):
            a.i(f"ds_write2st64_b32 v7, v{CA+4*e+r}, v{CA+4*(e+1)+r} offset0:{r*16+e} offset1:{r*16+e+1}")
    a.i("s_waitcnt lgkmcnt(0)")
    g.signal(CC)
    g.wait_cnt(CC, 4)
    a.i("s_lshl_b32 s14, s3, 12"); a.i(f"s_add_u32 s14, s14, {L_CR}"); a.i("v_add_u32 v7, s14, v9")
    R = 16
    for src in range(4):
        for e in range(0, 4, 2):
            a.i(f"ds_read2st64_b32 {vr(R+4*src+e,2)}, v7 offset0:{src*4+e} offset1:{src*4+e+1}")
    a.i("s_waitcnt lgkmcnt(0)")
    for e in range(4):
        a.i(f"v_add_f32 v{R+e}, v{R+e}, v{R+4+e}"); a.i(f"v_add_f32 v{R+8+e}, v{R+8+e}, v{R+12+e}")
    for e in range(4): a.i(f"v_add_f32 v{R+e}, v{R+e}, v{R+8+e}")
    for e in range(4):
        a.i(f"s_mov_b32 s14, {0x07060500+e:#x}")
        a.i(f"v_perm_b32 v{R+16+e}, v{R+e}, v8, s14")
    a.i("v_lshlrev_b32 v9, 10, v3"); a.i("v_lshl_add_u32 v9, v4, 4, v9")
    a.i("s_lshl_b32 s43, s41, 12"); a.i("s_lshl_b32 s14, s3, 8"); a.i("s_add_u32 s43, s43, s14"); a.i(f"s_add_u32 s43, s43, {WS_PS}")
    a.i(f"buffer_store_dwordx4 {vr(R+16)}, v9, s[32:35], s43 offen {opt.st_flags}")
    g.signal(CC)
    g.stamp(7)
    if opt.stamps:
        a.i("s_cmp_lg_u32 s3, 0"); a.i("s_cbranch_scc1 L_end")
        emit_stamps(g, 0, 8)
    a.i("s_branch L_end")

    a.label("L_B")
    a.i("s_sub_u32 s3, s3, 4")
    VF, PF2, T2, OA = 16, 144, 160, 192
    kvbase(a)
    srd(a, 36, 20, 21, 128*256, add="s14")
    a.i("v_lshlrev_b32 v7, 10, v3"); a.i("v_lshl_add_u32 v7, v4, 4, v7")
    g.wait_cnt(CK, 4)
    g.stamp(1)
    for u in range(4):
        for i in range(8):
            if i % 4 == 0: a.i(f"s_mov_b32 s14, {u*8192 + (i>>2)*4096}")
            a.i(f"buffer_load_dwordx4 {vr(VF+32*u+4*i)}, v7, s[36:39], s14 offen offset:{(i&3)*256} {opt.kv_flags}")
    g.stamp(2)
    a.i("s_lshl_b32 s14, s3, 2"); a.i("v_add_u32 v11, s14, v1")
    g.wait_cnt(CP, 1, vaddr=11)
    a.i("v_lshlrev_b32 v9, 4, v2"); a.i("s_lshl_b32 s14, s3, 12"); a.i(f"s_add_u32 s14, s14, {L_P}"); a.i("v_add_u32 v9, s14, v9")
    for u in range(4): a.i(f"ds_read_b128 {vr(PF2+4*u)}, v9 offset:{u*1024}")
    a.i("s_waitcnt lgkmcnt(0)")
    a.i(f"s_add_u32 s10, s10, {TAGINC:#x}")
    a.i("v_mov_b32 v8, s10")
    g.stamp(3)
    if opt.b_prio_pv: a.i(f"s_setprio {opt.b_prio_pv}")
    for u in range(4):
        a.i(f"s_waitcnt vmcnt({(3-u)*8})")
        L = lambda i, w: VF + 32*u + 4*i + w
        for e in range(8):
            w = e >> 1; sel = 's11' if (e & 1) == 0 else 's12'
            for p in range(4):
                a.i(f"v_perm_b32 v{T2+4*e+p}, v{L(2*p+1,w)}, v{L(2*p,w)}, {sel}")
        for e in range(8):
            c = "0" if u == 0 else vr(OA+4*e)
            a.i(f"v_mfma_f32_16x16x32_bf16 {vr(OA+4*e)}, {vr(T2+4*e)}, {vr(PF2+4*u)}, {c}")
        if u == 2:
            g.wait_cnt(CF, 4)
            a.i("v_lshl_add_u32 v10, v4, 2, v1")
            for w_ in range(4): a.i(f"ds_read_b32 v{148+w_}, v10 offset:{64+w_*64}")
    g.stamp(4)
    a.i("v_lshlrev_b32 v9, 2, v2"); a.i("s_lshl_b32 s14, s3, 11"); a.i(f"s_add_u32 s14, s14, {L_OR}"); a.i("v_add_u32 v7, s14, v9")
    for r in range(4):
        for e in range(0, 8, 2):
            a.i(f"ds_write2st64_b32 v7, v{OA+4*e+r}, v{OA+4*(e+1)+r} offset0:{r*32+e} offset1:{r*32+e+1}")
    a.i("s_waitcnt lgkmcnt(0)")
    g.signal(CO)
    g.wait_cnt(CO, 4)
    a.i("s_lshl_b32 s14, s3, 13"); a.i(f"s_add_u32 s14, s14, {L_OR}"); a.i("v_add_u32 v7, s14, v9")
    R = 16
    for src in range(4):
        for e in range(0, 8, 2):
            a.i(f"ds_read2st64_b32 {vr(R+8*src+e,2)}, v7 offset0:{src*8+e} offset1:{src*8+e+1}")
    a.i("s_waitcnt lgkmcnt(0)")
    FR = 148
    for e in range(8):
        a.i(f"v_mul_f32 v{R+e}, v{R+e}, v{FR}"); a.i(f"v_mul_f32 v{R+16+e}, v{R+16+e}, v{FR+2}")
    for e in range(8):
        a.i(f"v_fmac_f32 v{R+e}, v{R+8+e}, v{FR+1}"); a.i(f"v_fmac_f32 v{R+16+e}, v{R+24+e}, v{FR+3}")
    for e in range(8): a.i(f"v_add_f32 v{R+e}, v{R+e}, v{R+16+e}")
    for p in range(4): a.i(f"v_cvt_pk_bf16_f32 v{R+32+p}, v{R+2*p}, v{R+2*p+1}")
    a.i("v_lshrrev_b32 v9, 2, v4"); a.i("v_lshlrev_b32 v9, 10, v9"); a.i("v_and_b32 v10, 3, v4"); a.i("v_lshl_add_u32 v9, v10, 6, v9"); a.i("v_lshl_add_u32 v9, v3, 4, v9")
    a.i("s_lshl_b32 s43, s41, 12"); a.i("s_lshl_b32 s14, s3, 8"); a.i("s_add_u32 s43, s43, s14"); a.i(f"s_add_u32 s43, s43, {WS_OS}")
    a.i(f"buffer_store_dwordx4 {vr(R+32)}, v9, s[32:35], s43 offen {opt.st_flags}")
    g.signal(CO)
    g.stamp(5)
    a.i("s_cmp_lg_u32 s3, 0"); a.i("s_cbranch_scc1 L_end")
    a.i("v_lshrrev_b32 v9, 5, v2"); a.i("v_lshlrev_b32 v9, 19, v9")
    a.i("v_and_b32 v10, 1, v3"); a.i("v_lshl_add_u32 v9, v10, 8, v9"); a.i("v_lshl_add_u32 v9, v4, 4, v9")
    a.i("s_lshl_b32 s43, s5, 12"); a.i("s_lshl_b32 s14, s4, 9"); a.i("s_add_u32 s43, s43, s14"); a.i(f"s_add_u32 s43, s43, {WS_PS}")
    srd(a, 36, 26, 27, 65536)
    g.wait_cnt(CC, 8)
    R = 16
    a.i("s_mov_b32 s45, 0")
    a.label("L_B_pretry")
    a.i("s_mov_b32 s44, s43")
    for k in range(4):
        a.i(f"buffer_load_dwordx4 {vr(R+4*k)}, v9, s[32:35], s44 offen {opt.ld_flags}")
        if k < 3: a.i(f"s_add_u32 s44, s44, {32*4096}")
    a.i("s_mov_b32 s14, 0x0c0c0400"); a.i("s_mov_b32 s15, 0x04000c0c")
    a.i("v_mov_b32 v10, 0")
    a.i("s_waitcnt vmcnt(0)")
    for k in range(4):
        a.i(f"v_perm_b32 v11, v{R+4*k+1}, v{R+4*k}, s14"); a.i(f"v_perm_b32 v12, v{R+4*k+3}, v{R+4*k+2}, s15")
        a.i("v_or_b32 v11, v11, v12"); a.i("v_xor_b32 v11, v11, v8"); a.i("v_or_b32 v10, v10, v11")
    a.i("v_cmp_ne_u32 vcc, 0, v10")
    g.retry_tail("L_B_pretry", "L_B_pok")
    g.stamp(6)
    for e in range(4):
        a.i(f"v_add_f32 v{R+e}, v{R+e}, v{R+4+e}"); a.i(f"v_add_f32 v{R+8+e}, v{R+8+e}, v{R+12+e}")
    for e in range(4): a.i(f"v_add_f32 v{R+e}, v{R+e}, v{R+8+e}")
    for e in range(4): a.i(f"v_mov_b32 v{R+4+e}, v{R+e}")
    for e in range(4): a.i(f"v_permlane32_swap_b32 v{R+e}, v{R+4+e}")
    for e in range(4): a.i(f"v_add_f32 v{R+e}, v{R+e}, v{R+4+e}")
    a.i(f"v_cvt_pk_bf16_f32 v{R+8}, v{R}, v{R+1}"); a.i(f"v_cvt_pk_bf16_f32 v{R+9}, v{R+2}, v{R+3}")
    a.i("v_and_b32 v10, 1, v3"); a.i("v_lshlrev_b32 v9, 10, v10"); a.i("v_lshl_add_u32 v9, v4, 3, v9")
    a.i("s_lshl_b32 s43, s6, 14"); a.i("s_lshl_b32 s14, s4, 11"); a.i("s_add_u32 s43, s43, s14"); a.i("s_lshl_b32 s14, s7, 7"); a.i("s_add_u32 s43, s43, s14")
    a.i("s_mov_b32 exec_hi, 0")
    a.i(f"buffer_store_dwordx2 {vr(R+8,2)}, v9, s[36:39], s43 offen")
    a.i("s_or_b32 s14, s4, s7"); a.i("s_cmp_lg_u32 s14, 0"); a.i("s_cbranch_scc1 L_B_fin")
    a.i("s_mov_b64 exec, 1")
    a.i("s_lshl_b32 s14, s6, 7")
    a.i(f"buffer_store_dword v8, v5, s[32:35], s14 offen {opt.st_flags}")
    a.label("L_B_fin")
    a.i("s_mov_b64 exec, -1")
    if opt.stamps:
        a.i("s_waitcnt vmcnt(0)")
        a.i("s_memrealtime s[78:79]")
        emit_stamps(g, 8, 8, first=1)
    a.label("L_end"); a.i("s_endpgm")

    out = Asm()
    out(HEADER + f"; @launch grid=(256,1,1) block=(512,1,1) lds={L_END}")
    out('.amdgcn_target "amdgcn-amd-amdhsa--gfx950"\n.text')
    lines, n = hazard.fix(a.lines)
    out.lines += lines
    out('.section .rodata,"a"')
    out(kernel_desc(NAME, 256))
    return out.text(), n

def emit_stamps(g, slot0, n, first=0):
    a = g.a
    a.i("s_waitcnt lgkmcnt(0)")
    a.i(f"s_add_u32 s90, s30, {STAMPOFF}"); a.i("s_addc_u32 s91, s31, 0")
    a.i("s_lshl_b32 s14, s2, 7"); a.i("s_add_u32 s90, s90, s14"); a.i("s_addc_u32 s91, s91, 0")
    a.i("s_mov_b64 exec, 1")
    for k in range(first, n):
        a.i(f"v_mov_b32 v20, s{64+2*k}"); a.i(f"v_mov_b32 v21, s{65+2*k}")
        a.i(f"global_store_dwordx2 v5, v[20:21], s[90:91] offset:{(slot0+k-first)*8}")
        a.i("s_nop 1")
    a.i("s_mov_b64 exec, -1")

if __name__ == "__main__":
    o = Opt()
    out = sys.argv[1]
    for kv in sys.argv[2:]:
        k, v = kv.split("=")
        cur = getattr(o, k)
        if isinstance(cur, bool): v = v in ("1", "True", "true")
        elif isinstance(cur, int): v = int(v)
        else: v = v.replace("+", " ")
        setattr(o, k, v)
    t, n = gen(o)
    open(out, "w").write(t)
    print(out, "nops inserted:", n, "lines:", t.count("\n"))
```

```python
import sys, struct
from asmlib import *
import hazard

NAME = "standalone__sliding_block_cached__sampling_kernel"
def f2u(x): return struct.unpack('<I', struct.pack('<f', x))[0]
SCALE = 0.08838834764831845 * 1.4426950408889634

WS_XID = 0x8000
WS_OF = 0x9000
WS_QS = 0x10000
WS_ST = 0x200000
WS_OS = 0x300000
WS_PS = 0x500000
WS_SIZE = 0x800000
STAMPOFF = 256 << 20
TAGINC = 0x9E3779B9

L_K = 0
L_OR = 0
L_CR = 32768
L_QR = 131072
L_P = 131072
L_CNT = 147456
L_F = L_CNT + 64
L_Q = L_CNT + 512
L_END = L_Q + 4096
CQ, CKS, CV, CO, CC, CP, CF, CQ2, CKD, FASTW = 0, 4, 8, 12, 16, 20, 36, 40, 44, 60

class Opt:
    stamps = False
    kv_flags = "nt"
    w_flags = "nt"
    x_flags = ""
    ld_flags = "sc1"
    spin_limit = 30000
    a_prio = 2
    b_prio_pv = 3
    rot = 1
    thr = 7
    wo_mode = 1
    wq_ahead = 2
    force_slow = 0
    bench = 0
    a_stop = 0
    oflag = 1
    stagger = 0
    thr_k = 0
    stag_bit = 0
    xid_tries = 4

def vr(b, n=4): return f"v[{b}:{b+n-1}]" if n > 1 else f"v{b}"

def srd(a, d, lo, hi, size, add=None):
    if add is None:
        a.i(f"s_mov_b32 s{d}, s{lo}"); a.i(f"s_mov_b32 s{d+1}, s{hi}")
    else:
        a.i(f"s_add_u32 s{d}, s{lo}, {add}"); a.i(f"s_addc_u32 s{d+1}, s{hi}, 0")
    a.i(f"s_mov_b32 s{d+2}, {size}"); a.i(f"s_mov_b32 s{d+3}, 0x20000")

class G:
    def __init__(self, opt):
        self.a = Asm(); self.o = opt; self.nl = 0
    def lab(self, p):
        self.nl += 1; return f"L{p}{self.nl}"
    def stamp(self, k):
        if self.o.stamps:
            self.a.i(f"s_memrealtime s[{64+2*k}:{65+2*k}]")
    def signal(self, cnt, vaddr=1):
        a = self.a
        a.i("s_mov_b64 exec, 1")
        a.i(f"ds_add_u32 v{vaddr}, v6 offset:{cnt}")
        a.i("s_mov_b64 exec, -1")
    def wait_cnt(self, cnt, n, vt=10, vaddr=1, sleep=0):
        a = self.a
        L = self.lab("w")
        a.i("s_mov_b32 s15, 0")
        a.label(L)
        if sleep: a.i(f"s_sleep {sleep}")
        a.i(f"ds_read_b32 v{vt}, v{vaddr} offset:{cnt}")
        a.i("s_add_u32 s15, s15, 1")
        a.i("s_waitcnt lgkmcnt(0)")
        a.i(f"v_readfirstlane_b32 s14, v{vt}")
        a.i(f"s_cmp_gt_u32 s15, {self.o.spin_limit*16}")
        a.i(f"s_cbranch_scc1 {L}_o")
        a.i(f"s_cmp_ge_u32 s14, {n}")
        a.i(f"s_cbranch_scc0 {L}")
        a.label(f"{L}_o")
    def retry_tail(self, Lretry, Lok):
        a = self.a
        a.i("s_add_u32 s45, s45, 1")
        a.i(f"s_cmp_gt_u32 s45, {self.o.spin_limit}")
        a.i(f"s_cbranch_scc1 {Lok}")
        a.i(f"s_cbranch_vccnz {Lretry}")
        a.label(Lok)
    def store_var(self, ins):
        a = self.a; L = self.lab("s")
        a.i("s_cmp_eq_u32 s58, 1"); a.i(f"s_cbranch_scc1 {L}_f")
        a.i(ins + " sc1"); a.i(f"s_branch {L}_d")
        a.label(f"{L}_f"); a.i(ins); a.label(f"{L}_d")

def transpose4(a, dst, L):
    for e in range(4):
        w = e >> 1; sel = 's11' if (e & 1) == 0 else 's12'
        for p in range(4):
            a.i(f"v_perm_b32 v{dst+4*e+p}, v{L(2*p+1,w)}, v{L(2*p,w)}, {sel}")

def kvbase(a):
    a.i("s_lshr_b32 s14, s5, 1"); a.i("s_lshl_b32 s14, s14, 3"); a.i("s_add_u32 s14, s14, s4"); a.i("s_lshl_b32 s14, s14, 12")
    a.i("s_lshl_b32 s15, s9, 9"); a.i("s_add_u32 s14, s14, s15"); a.i("s_lshl_b32 s15, s3, 7"); a.i("s_add_u32 s14, s14, s15")
    a.i("s_add_u32 s14, s14, 3072"); a.i("s_lshl_b32 s14, s14, 8")

def astop(g, n):
    opt = g.o; a = g.a
    if opt.a_stop == n:
        for k in range(n + 1, 8): g.stamp(k)
        if opt.stamps:
            a.i("s_cmp_lg_u32 s3, 0"); a.i("s_cbranch_scc1 L_end")
            emit_stamps(g, 0, 8)
        a.i("s_branch L_end")

def gen(opt):
    g = G(opt); a = g.a
    kernel_begin(a, NAME)
    a.i("s_cmp_ge_u32 s2, 256"); a.i("s_cbranch_scc1 L_end")
    g.stamp(0)
    a.i("s_load_dwordx16 s[16:31], s[0:1], 0")
    a.i("v_lshrrev_b32 v1, 6, v0"); a.i("v_and_b32 v2, 63, v0")
    a.i("v_readfirstlane_b32 s3, v1")
    a.i("s_and_b32 s4, s2, 7")
    a.i("s_lshr_b32 s5, s2, 3")
    a.i("s_lshr_b32 s6, s5, 3")
    a.i("s_and_b32 s7, s5, 7")
    a.i("s_bfe_u32 s8, s5, 0x20001")
    a.i("s_and_b32 s9, s5, 1")
    a.i("v_lshrrev_b32 v3, 4, v2"); a.i("v_and_b32 v4, 15, v2")
    a.i("v_mov_b32 v5, 0"); a.i("v_mov_b32 v6, 1")
    a.i(f"v_mov_b32 v1, {L_CNT}")
    a.i("s_mov_b32 s11, 0x05040100"); a.i("s_mov_b32 s12, 0x07060302")
    a.i("s_lshl_b32 s40, s4, 5"); a.i("s_add_u32 s41, s40, s5")
    a.i("s_and_b32 s42, s41, 0xfffffff8")
    a.i("s_cmp_lg_u32 s3, 0"); a.i("s_cbranch_scc1 L_P1")
    a.i("v_lshl_add_u32 v7, v2, 2, v1"); a.i("ds_write_b32 v7, v5 offset:0")
    a.label("L_P1")
    a.i("s_waitcnt lgkmcnt(0)")
    a.i("s_barrier")
    a.i("s_lshl_b32 s15, s6, 7")
    a.i("s_load_dword s10, s[30:31], s15")
    srd(a, 32, 30, 31, WS_SIZE)
    a.i("s_cmp_ge_u32 s3, 4"); a.i("s_cbranch_scc1 L_B")

    if opt.a_prio: a.i(f"s_setprio {opt.a_prio}")
    astop(g, 1) if opt.a_stop == 1 else None
    srd(a, 52, 16, 17, 65536)
    srd(a, 48, 22, 23, 4 << 20)
    XA, WB, T, ACC = 16, 32, 96, 128
    a.i("v_lshlrev_b32 v8, 10, v4"); a.i("v_lshl_add_u32 v8, v3, 4, v8")
    a.i("v_lshlrev_b32 v9, 16, v3"); a.i("v_lshl_add_u32 v9, v4, 3, v9")
    a.i("s_lshl_b32 s14, s6, 14"); a.i("s_lshl_b32 s15, s3, 8"); a.i("s_add_u32 s45, s14, s15")
    a.i("s_lshl_b32 s44, s3, 20"); a.i("s_lshl_b32 s14, s4, 10"); a.i("s_add_u32 s44, s44, s14"); a.i("s_lshl_b32 s14, s7, 7"); a.i("s_add_u32 s44, s44, s14")
    a.i("s_lshl_b32 s47, s3, 15")
    a.i("s_getreg_b32 s57, hwreg(HW_REG_XCC_ID, 0, 4)")
    a.i("s_waitcnt lgkmcnt(0)")
    a.i(f"s_add_u32 s10, s10, {TAGINC:#x}")
    a.i("s_and_b32 s14, s10, 0xfffffff0"); a.i("s_or_b32 s14, s14, s57"); a.i("v_mov_b32 v144, s14")
    a.i("s_lshl_b32 s14, s41, 2"); a.i(f"s_add_u32 s14, s14, {WS_XID}")
    a.i("s_mov_b64 exec, 1")
    a.i("buffer_store_dword v144, v5, s[32:35], s14 offen")
    a.i("s_mov_b64 exec, -1")
    if opt.stagger:
        a.i(f"s_bitcmp1_b32 s5, {opt.stag_bit}"); a.i("s_cbranch_scc0 L_A_nostag")
        g.wait_cnt(CKS, 4)
        a.label("L_A_nostag")
    seq = [('s', 0)]
    def wqstep(s_):
        for i in range(8):
            a.i(f"buffer_load_dwordx2 {vr(WB+16*s_+2*i,2)}, v9, s[48:51], s44 offen {opt.w_flags}")
            a.i(f"s_add_u32 s44, s44, 8192")
            seq.append(('w', s_))
        if s_ < 3: a.i(f"s_add_u32 s44, s44, {24*8192}")
    wqstep(0)
    for s2 in range(4):
        a.i(f"buffer_load_dwordx4 {vr(XA+4*s2)}, v8, s[52:55], s45 offen offset:{s2*64} {opt.x_flags}")
        seq.append(('x', 0))
    a.i("v_mov_b32 v8, s10")
    a.i("s_lshl_b32 s46, s42, 2"); a.i(f"s_add_u32 s46, s46, {WS_XID}")
    a.i("v_lshlrev_b32 v145, 2, v2")
    def xidload():
        a.i("s_mov_b64 exec, 0xff")
        a.i("buffer_load_dword v146, v145, s[32:35], s46 offen sc1")
        a.i("s_mov_b64 exec, -1")
    issued = 1
    while issued < min(4, opt.wq_ahead):
        wqstep(issued); issued += 1
    for s_ in range(4):
        last = max([i for i, e in enumerate(seq) if e == ('w', s_) or (s_ == 0 and e[0] == 'x') or (s_ == 2 and e[0] == 'i')])
        a.i(f"s_waitcnt vmcnt({len(seq)-1-last})")
        if s_ == 0:
            xidload(); seq.append(('i', 0))
        if issued < 4:
            wqstep(issued); issued += 1
        if s_ == 0: g.stamp(1)
        if s_ == 2:
            a.i("s_mov_b32 s45, 0"); a.i("s_mov_b32 s58, 0")
            a.i("s_branch L_A_xchk")
            a.label("L_A_xretry")
            xidload()
            a.i("s_waitcnt vmcnt(0)")
            a.label("L_A_xchk")
            a.i("s_mov_b64 exec, 0xff")
            a.i("v_xor_b32 v147, v146, v8"); a.i("v_and_b32 v147, 0xfffffff0, v147"); a.i("v_cmp_ne_u32 vcc, 0, v147")
            a.i("s_mov_b64 exec, -1")
            a.i("s_cbranch_vccz L_A_xok")
            a.i("s_add_u32 s45, s45, 1")
            a.i(f"s_cmp_lt_u32 s45, {opt.xid_tries}")
            a.i("s_cbranch_scc1 L_A_xretry")
            a.i("s_branch L_A_xdone")
            a.label("L_A_xok")
            a.i("s_mov_b64 exec, 0xff")
            a.i("v_and_b32 v147, 15, v146"); a.i("v_cmp_ne_u32 vcc, s57, v147")
            a.i("s_mov_b64 exec, -1")
            a.i("s_cmp_eq_u64 vcc, 0"); a.i("s_cselect_b32 s58, 1, 0")
            a.label("L_A_xdone")
            if opt.force_slow: a.i("s_mov_b32 s58, 0")
            for r in range(4): a.i(f"v_mov_b32 v{148+r}, -1")
            a.i("v_lshlrev_b32 v7, 4, v2")
            a.i("s_lshl_b32 s43, s41, 12"); a.i("s_lshl_b32 s14, s3, 10"); a.i("s_add_u32 s43, s43, s14"); a.i(f"s_add_u32 s46, s43, {WS_OS}")
            g.store_var("buffer_store_dwordx4 v[148:151], v7, s[32:35], s46 offen"); seq.append(('p', 0))
        tb = T + (s_ & 1) * 16
        transpose4(a, tb, lambda i, w: WB + 16*s_ + 2*i + w)
        for e in range(4):
            c = "0" if s_ == 0 else vr(ACC+4*e)
            a.i(f"v_mfma_f32_16x16x32_bf16 {vr(ACC+4*e)}, {vr(XA+4*s_)}, {vr(tb+4*e)}, {c}")
    a.i("v_lshlrev_b32 v9, 2, v2"); a.i("s_lshl_b32 s14, s3, 10"); a.i(f"s_add_u32 s14, s14, {L_QR}"); a.i("v_add_u32 v7, s14, v9")
    for r in range(4):
        for e in range(0, 4, 2):
            a.i(f"ds_write2st64_b32 v7, v{ACC+4*e+r}, v{ACC+4*(e+1)+r} offset0:{r*16+e} offset1:{r*16+e+1}")
    a.i("v_mov_b32 v10, s58"); a.i(f"ds_write_b32 v1, v10 offset:{FASTW}")
    a.i("s_waitcnt lgkmcnt(0)")
    g.signal(CQ)
    g.wait_cnt(CQ, 4)
    a.i("s_lshl_b32 s14, s3, 12"); a.i(f"s_add_u32 s14, s14, {L_QR}"); a.i("v_add_u32 v7, s14, v9")
    R = 152
    for src in range(4):
        for e in range(0, 4, 2):
            a.i(f"ds_read2st64_b32 {vr(R+4*src+e,2)}, v7 offset0:{src*4+e} offset1:{src*4+e+1}")
    a.i("v_lshlrev_b32 v9, 10, v3"); a.i("v_and_b32 v10, 1, v4"); a.i("v_lshl_add_u32 v9, v10, 9, v9")
    a.i("v_lshrrev_b32 v10, 3, v4"); a.i("v_lshl_add_u32 v9, v10, 8, v9"); a.i("v_bfe_u32 v10, v4, 1, 2"); a.i("v_lshl_add_u32 v9, v10, 4, v9")
    a.i("s_lshl_b32 s43, s41, 12"); a.i("s_lshl_b32 s14, s3, 6"); a.i("s_add_u32 s43, s43, s14"); a.i(f"s_add_u32 s43, s43, {WS_QS}")
    a.i("s_waitcnt lgkmcnt(0)")
    for e in range(4):
        a.i(f"v_add_f32 v{R+e}, v{R+e}, v{R+4+e}"); a.i(f"v_add_f32 v{R+8+e}, v{R+8+e}, v{R+12+e}")
    for e in range(4): a.i(f"v_add_f32 v{R+e}, v{R+e}, v{R+8+e}")
    a.i(f"v_cvt_pk_bf16_f32 v{R+4}, v{R}, v{R+1}"); a.i(f"v_cvt_pk_bf16_f32 v{R+5}, v{R+2}, v{R+3}")
    a.i(f"v_perm_b32 v{R+8}, v{R+4}, v8, s11"); a.i(f"v_perm_b32 v{R+9}, v{R+4}, v8, s12")
    a.i(f"v_perm_b32 v{R+10}, v{R+5}, v8, s11"); a.i(f"v_perm_b32 v{R+11}, v{R+5}, v8, s12")
    a.i("s_waitcnt vmcnt(0)")
    g.store_var(f"buffer_store_dwordx4 {vr(R+8)}, v9, s[32:35], s43 offen")
    g.stamp(2)
    astop(g, 2)
    QR = 176
    a.i("v_lshrrev_b32 v9, 2, v4"); a.i("v_lshlrev_b32 v9, 13, v9"); a.i("v_and_b32 v10, 3, v4"); a.i("v_lshl_add_u32 v9, v10, 6, v9"); a.i("v_lshl_add_u32 v9, v3, 4, v9")
    a.i("s_lshl_b32 s43, s42, 12"); a.i("s_lshl_b32 s14, s8, 10"); a.i("s_add_u32 s43, s43, s14"); a.i(f"s_add_u32 s43, s43, {WS_QS}")
    a.i("s_lshr_b32 s14, s3, 1"); a.i("s_lshl_b32 s14, s14, 12"); a.i("s_add_u32 s43, s43, s14")
    a.i("s_and_b32 s14, s3, 1"); a.i("s_lshl_b32 s14, s14, 8"); a.i("s_add_u32 s43, s43, s14")
    a.i("s_mov_b32 s45, 0")
    a.label("L_A_qretry")
    for u in range(2):
        a.i(f"buffer_load_dwordx4 {vr(QR+4*u)}, v9, s[32:35], s43 offen offset:{u*512} {opt.ld_flags}")
    a.i("v_mov_b32 v10, 0")
    a.i("s_waitcnt vmcnt(0)")
    for k in range(4):
        a.i(f"v_perm_b32 v11, v{QR+2*k+1}, v{QR+2*k}, s11")
        a.i(f"v_xor_b32 v11, v11, v8")
        a.i(f"v_or_b32 v10, v10, v11")
    a.i("v_cmp_ne_u32 vcc, 0, v10")
    g.retry_tail("L_A_qretry", "L_A_qok")
    for k in range(4):
        a.i(f"v_perm_b32 v{QR+8+k}, v{QR+2*k+1}, v{QR+2*k}, s12")
    a.i("v_lshlrev_b32 v9, 4, v2"); a.i("s_lshl_b32 s14, s3, 10"); a.i(f"s_add_u32 s14, s14, {L_Q}"); a.i("v_add_u32 v10, s14, v9")
    a.i(f"ds_write_b128 v10, {vr(QR+8)}")
    for st in range(4):
        a.i(f"v_add_u32 v10, {4*st}, v3"); a.i("v_xor_b32 v10, v10, v4"); a.i("v_lshlrev_b32 v10, 4, v10"); a.i("v_lshl_add_u32 v10, v4, 8, v10"); a.i(f"v_add_u32 v{12+st}, s47, v10")
    a.i("s_waitcnt lgkmcnt(0)")
    g.signal(CQ2)
    g.stamp(3)
    astop(g, 3)
    WR, WF = 32, 96
    srd(a, 48, 24, 25, 4 << 20)
    a.i("v_lshlrev_b32 v16, 15, v3"); a.i("v_lshl_add_u32 v16, v4, 3, v16")
    a.i("s_lshl_b32 s46, s4, 2"); a.i("s_add_u32 s46, s46, s3"); a.i("s_lshl_b32 s46, s46, 17"); a.i("s_lshl_b32 s15, s7, 7"); a.i("s_add_u32 s46, s46, s15")
    def wostep(st):
        for i in range(8):
            if i % 4 == 0 and (st or i): a.i("s_add_u32 s46, s46, 4096")
            a.i(f"buffer_load_dwordx2 {vr(WR+16*st+2*i,2)}, v16, s[48:51], s46 offen offset:{(i&3)*1024} {opt.w_flags}")
    KB = [96, 128]; QF = 160; SA = 192; PF = 224; ST = 240
    def kread(p):
        for tt in range(2):
            for st in range(4):
                a.i(f"ds_read_b128 {vr(KB[p&1]+16*tt+4*st)}, v{12+st} offset:{(2*p+tt)*4096}")
    g.wait_cnt(CQ2, 4)
    a.i(f"v_add_u32 v10, {L_Q}, v9")
    for st in range(4): a.i(f"ds_read_b128 {vr(QF+4*st)}, v10 offset:{st*1024}")
    a.i("s_lshl_b32 s14, s3, 2"); a.i("v_add_u32 v7, s14, v1")
    g.wait_cnt(CKD, 1, vaddr=7)
    kread(0); kread(1)
    for p in range(4):
        a.i(f"s_waitcnt lgkmcnt({8 if p < 3 else 0})")
        for tt in range(2):
            t = 2*p + tt
            for st in range(4):
                c = "0" if st == 0 else vr(SA+4*t)
                a.i(f"v_mfma_f32_16x16x32_bf16 {vr(SA+4*t)}, {vr(KB[p&1]+16*tt+4*st)}, {vr(QF+4*st)}, {c}")
        if p + 2 < 4: kread(p + 2)
    a.i(f"s_mov_b32 s13, {f2u(SCALE):#x}")
    a.i(f"v_max3_f32 v10, v{SA}, v{SA+1}, v{SA+2}")
    for r in range(3, 31, 2): a.i(f"v_max3_f32 v10, v10, v{SA+r}, v{SA+r+1}")
    a.i(f"v_max_f32 v10, v10, v{SA+31}")
    a.i("v_mov_b32 v11, v10"); a.i("v_permlane16_swap_b32 v10, v11"); a.i("v_max_f32 v10, v10, v11")
    a.i("v_mov_b32 v11, v10"); a.i("v_permlane32_swap_b32 v10, v11"); a.i("v_max_f32 v10, v10, v11")
    a.i("v_mul_f32 v12, s13, v10")
    for r in range(32): a.i(f"v_fma_f32 v{SA+r}, v{SA+r}, s13, -v12")
    for r in range(32): a.i(f"v_exp_f32 v{SA+r}, v{SA+r}")
    for k in range(16): a.i(f"v_cvt_pk_bf16_f32 v{PF+k}, v{SA+2*k}, v{SA+2*k+1}")
    a.i("v_lshlrev_b32 v9, 4, v2"); a.i("s_lshl_b32 s14, s3, 12"); a.i(f"s_add_u32 s14, s14, {L_P}"); a.i("v_add_u32 v9, s14, v9")
    for u in range(4): a.i(f"ds_write_b128 v9, {vr(PF+4*u)} offset:{u*1024}")
    a.i(f"v_add_f32 v10, v{SA}, v{SA+1}"); a.i(f"v_add_f32 v11, v{SA+2}, v{SA+3}")
    for r in range(4, 32, 2):
        a.i(f"v_add_f32 v10, v10, v{SA+r}"); a.i(f"v_add_f32 v11, v11, v{SA+r+1}")
    a.i("s_waitcnt lgkmcnt(0)")
    g.signal(CP, vaddr=7)
    a.i("v_add_f32 v10, v10, v11")
    a.i("v_mov_b32 v11, v10"); a.i("v_permlane16_swap_b32 v10, v11"); a.i("v_add_f32 v10, v10, v11")
    a.i("v_mov_b32 v11, v10"); a.i("v_permlane32_swap_b32 v10, v11"); a.i("v_add_f32 v13, v10, v11")
    a.i("v_mov_b32 v14, v8"); a.i("v_mov_b32 v15, v8")
    a.i("s_lshl_b32 s43, s41, 10"); a.i("s_lshl_b32 s14, s3, 8"); a.i("s_add_u32 s43, s43, s14"); a.i(f"s_add_u32 s43, s43, {WS_ST}")
    a.i("v_lshlrev_b32 v9, 4, v4")
    a.i("s_mov_b64 exec, 0xffff")
    g.store_var("buffer_store_dwordx4 v[12:15], v9, s[32:35], s43 offen")
    a.i("s_mov_b64 exec, -1")
    g.stamp(4)
    if opt.wo_mode == 0:
        for st in range(4): wostep(st)
    a.i("s_and_b32 s43, s41, 0xfffffffe"); a.i("s_lshl_b32 s43, s43, 10"); a.i(f"s_add_u32 s43, s43, {WS_ST}")
    a.i("v_lshl_add_u32 v9, v3, 9, v9")
    a.i("s_mov_b32 s45, 0")
    a.label("L_A_sretry")
    a.i(f"buffer_load_dwordx4 {vr(ST)}, v9, s[32:35], s43 offen {opt.ld_flags}")
    a.i(f"buffer_load_dwordx4 {vr(ST+4)}, v9, s[32:35], s43 offen offset:256 {opt.ld_flags}")
    a.i("s_waitcnt vmcnt(0)")
    a.i(f"v_xor_b32 v10, v{ST+2}, v8"); a.i(f"v_xor_b32 v11, v{ST+3}, v8"); a.i("v_or_b32 v10, v10, v11")
    a.i(f"v_xor_b32 v11, v{ST+6}, v8"); a.i("v_or_b32 v10, v10, v11"); a.i(f"v_xor_b32 v11, v{ST+7}, v8"); a.i("v_or_b32 v10, v10, v11")
    a.i("v_cmp_ne_u32 vcc, 0, v10")
    g.retry_tail("L_A_sretry", "L_A_sok")
    a.i(f"v_max_f32 v10, v{ST}, v{ST+4}")
    a.i("v_mov_b32 v11, v10"); a.i("v_permlane16_swap_b32 v10, v11"); a.i("v_max_f32 v10, v10, v11")
    a.i("v_mov_b32 v11, v10"); a.i("v_permlane32_swap_b32 v10, v11"); a.i("v_max_f32 v10, v10, v11")
    a.i(f"v_sub_f32 v{ST}, v{ST}, v10"); a.i(f"v_sub_f32 v{ST+4}, v{ST+4}, v10")
    a.i(f"v_exp_f32 v{ST}, v{ST}"); a.i(f"v_exp_f32 v{ST+4}, v{ST+4}")
    a.i(f"v_mul_f32 v{ST+1}, v{ST+1}, v{ST}"); a.i(f"v_fmac_f32 v{ST+1}, v{ST+5}, v{ST+4}")
    a.i(f"v_mov_b32 v11, v{ST+1}"); a.i(f"v_permlane16_swap_b32 v{ST+1}, v11"); a.i(f"v_add_f32 v{ST+1}, v{ST+1}, v11")
    a.i(f"v_mov_b32 v11, v{ST+1}"); a.i(f"v_permlane32_swap_b32 v{ST+1}, v11"); a.i(f"v_add_f32 v11, v{ST+1}, v11")
    a.i("v_sub_f32 v12, v12, v10"); a.i("v_exp_f32 v12, v12"); a.i("v_rcp_f32 v11, v11"); a.i("v_mul_f32 v12, v12, v11")
    a.i("v_lshlrev_b32 v9, 2, v4"); a.i("s_lshl_b32 s14, s3, 6"); a.i(f"s_add_u32 s14, s14, {L_F}"); a.i("v_add_u32 v9, s14, v9")
    a.i("ds_write_b32 v9, v12")
    a.i("s_waitcnt lgkmcnt(0)")
    g.signal(CF)
    g.stamp(5)
    if opt.wo_mode == 1:
        g.wait_cnt(CV, 4)
        for st in range(4): wostep(st)
    OG, CA = 192, 176
    a.i("v_lshrrev_b32 v9, 2, v4"); a.i("v_lshlrev_b32 v9, 13, v9"); a.i("v_and_b32 v10, 3, v4"); a.i("v_lshl_add_u32 v9, v10, 6, v9"); a.i("v_lshl_add_u32 v9, v3, 4, v9")
    a.i("s_lshl_b32 s43, s42, 12"); a.i("s_lshl_b32 s14, s3, 10"); a.i("s_add_u32 s43, s43, s14"); a.i(f"s_add_u32 s43, s43, {WS_OS}")
    a.i("s_add_u32 s44, s43, 4096")
    a.i("s_lshl_b32 s46, s42, 4"); a.i(f"s_add_u32 s46, s46, {WS_OF}")
    a.i("v_lshlrev_b32 v7, 2, v2")
    for st in range(4):
        if opt.wo_mode == 1: a.i(f"s_waitcnt vmcnt({8*(3-st)})")
        transpose4(a, WF+16*st, lambda i, w: WR + 16*st + 2*i + w)
    g.wait_cnt(CO, 8)
    if opt.oflag:
        a.i("s_mov_b32 s45, 0")
        a.label("L_A_fretry")
        a.i("s_mov_b32 exec_hi, 0")
        a.i(f"buffer_load_dword v10, v7, s[32:35], s46 offen {opt.ld_flags}")
        a.i("s_waitcnt vmcnt(0)")
        a.i("v_cmp_ne_u32 vcc, v10, v8")
        a.i("s_mov_b64 exec, -1")
        g.retry_tail("L_A_fretry", "L_A_fok")
    a.i("s_mov_b32 s45, 0")
    a.label("L_A_oretry")
    for sp in range(2):
        for st in range(4):
            a.i(f"buffer_load_dwordx4 {vr(OG+16*sp+4*st)}, v9, s[32:35], {'s43' if sp == 0 else 's44'} offen offset:{st*256} {opt.ld_flags}")
    a.i("s_waitcnt vmcnt(0)")
    a.i(f"v_max3_u32 v10, v{OG}, v{OG+1}, v{OG+2}")
    for r in range(3, 31, 2): a.i(f"v_max3_u32 v10, v10, v{OG+r}, v{OG+r+1}")
    a.i(f"v_max_u32 v10, v10, v{OG+31}")
    a.i("v_cmp_eq_u32 vcc, -1, v10")
    g.retry_tail("L_A_oretry", "L_A_ook")
    g.stamp(6)
    for sp in range(2):
        for st in range(4):
            for e in range(4):
                c = "0" if (sp == 0 and st == 0) else vr(CA+4*e)
                a.i(f"v_mfma_f32_16x16x32_bf16 {vr(CA+4*e)}, {vr(OG+16*sp+4*st)}, {vr(WF+16*st+4*e)}, {c}")
    a.i("v_lshlrev_b32 v9, 2, v2"); a.i("s_lshl_b32 s14, s3, 10"); a.i(f"s_add_u32 s14, s14, {L_CR}"); a.i("v_add_u32 v7, s14, v9")
    for r in range(4):
        for e in range(0, 4, 2):
            a.i(f"ds_write2st64_b32 v7, v{CA+4*e+r}, v{CA+4*(e+1)+r} offset0:{r*16+e} offset1:{r*16+e+1}")
    a.i("s_waitcnt lgkmcnt(0)")
    g.signal(CC)
    g.wait_cnt(CC, 4)
    a.i("s_lshl_b32 s14, s3, 12"); a.i(f"s_add_u32 s14, s14, {L_CR}"); a.i("v_add_u32 v7, s14, v9")
    R = 16
    for src in range(4):
        for e in range(0, 4, 2):
            a.i(f"ds_read2st64_b32 {vr(R+4*src+e,2)}, v7 offset0:{src*4+e} offset1:{src*4+e+1}")
    a.i("v_lshlrev_b32 v9, 10, v3"); a.i("v_lshl_add_u32 v9, v4, 4, v9")
    a.i("s_lshl_b32 s43, s41, 12"); a.i("s_lshl_b32 s14, s3, 8"); a.i("s_add_u32 s43, s43, s14"); a.i(f"s_add_u32 s43, s43, {WS_PS}")
    a.i("s_waitcnt lgkmcnt(0)")
    for e in range(4):
        a.i(f"v_add_f32 v{R+e}, v{R+e}, v{R+4+e}"); a.i(f"v_add_f32 v{R+8+e}, v{R+8+e}, v{R+12+e}")
    for e in range(4): a.i(f"v_add_f32 v{R+e}, v{R+e}, v{R+8+e}")
    for e in range(4):
        a.i(f"s_mov_b32 s14, {0x07060500+e:#x}")
        a.i(f"v_perm_b32 v{R+16+e}, v{R+e}, v8, s14")
    a.i(f"buffer_store_dwordx4 {vr(R+16)}, v9, s[32:35], s43 offen sc1")
    g.signal(CC)
    g.stamp(7)
    if opt.stamps:
        a.i("s_cmp_lg_u32 s3, 0"); a.i("s_cbranch_scc1 L_end")
        emit_stamps(g, 0, 8)
    a.i("s_branch L_end")

    a.label("L_B")
    a.i("s_sub_u32 s3, s3, 4")
    VF, PF2, T2, OA = 16, 144, 160, 192
    kvbase(a)
    srd(a, 48, 18, 19, 128*256, add="s14")
    srd(a, 36, 20, 21, 128*256, add="s14")
    if opt.rot:
        a.i("s_add_u32 s56, s5, s3"); a.i("s_and_b32 s56, s56, 7"); a.i("s_lshl_b32 s56, s56, 12")
    else:
        a.i("s_mov_b32 s56, 0")
    for n in range(4):
        a.i(f"v_add_u32 v10, {4*n}, v3"); a.i("v_xor_b32 v10, v10, v4"); a.i("v_lshlrev_b32 v10, 4, v10"); a.i(f"v_lshl_add_u32 v{12+n}, v3, 8, v10")
    a.i("s_lshl_b32 s47, s3, 15")
    cnt = [0]
    def throttle():
        th = opt.thr_k if (opt.thr_k and cnt[0] < 32) else opt.thr
        if cnt[0] >= th: a.i(f"s_waitcnt vmcnt({th-1})")
        cnt[0] += 1
    for t in range(8):
        a.i(f"s_add_u32 s14, s47, {t*4096}"); a.i("s_mov_b32 m0, s14"); a.i(f"s_xor_b32 s14, s56, {t*4096}")
        for n in range(4):
            throttle()
            a.i(f"buffer_load_dwordx4 v{12+n}, s[48:51], s14 offen offset:{n*1024} {opt.kv_flags} lds")
        if t == 0:
            a.i("v_lshlrev_b32 v7, 10, v3"); a.i("v_lshl_add_u32 v7, v4, 4, v7")
            a.i("s_lshl_b32 s15, s3, 2"); a.i("v_add_u32 v11, s15, v1")
        if opt.stagger and t == opt.stagger - 1: g.signal(CKS)
    g.stamp(1)
    signaled = False
    for u in range(4):
        for i in range(8):
            if i % 4 == 0: a.i(f"s_xor_b32 s14, s56, {u*8192 + (i>>2)*4096}")
            throttle()
            n = cnt[0] - 1
            if not signaled and n - opt.thr >= 31:
                g.signal(CKD, vaddr=11)
                signaled = True
            a.i(f"buffer_load_dwordx4 {vr(VF+32*u+4*i)}, v7, s[36:39], s14 offen offset:{(i&3)*256} {opt.kv_flags}")
    assert signaled
    g.signal(CV)
    g.stamp(2)
    if opt.bench:
        a.i("s_waitcnt vmcnt(0)")
        for k in range(3, 8): g.stamp(k)
        a.i("s_cmp_lg_u32 s3, 0"); a.i("s_cbranch_scc1 L_end")
        emit_stamps(g, 8, 8, first=1)
        a.i("s_branch L_end")
    g.wait_cnt(CP, 1, vaddr=11)
    a.i("v_lshlrev_b32 v9, 4, v2"); a.i("s_lshl_b32 s14, s3, 12"); a.i(f"s_add_u32 s14, s14, {L_P}"); a.i("v_add_u32 v9, s14, v9")
    for u in range(4): a.i(f"ds_read_b128 {vr(PF2+4*u)}, v9 offset:{u*1024}")
    a.i(f"ds_read_b32 v10, v1 offset:{FASTW}")
    a.i("s_waitcnt lgkmcnt(0)")
    a.i(f"s_add_u32 s10, s10, {TAGINC:#x}")
    a.i("v_mov_b32 v8, s10")
    a.i("v_readfirstlane_b32 s58, v10")
    g.stamp(3)
    if opt.b_prio_pv: a.i(f"s_setprio {opt.b_prio_pv}")
    for u in range(4):
        a.i(f"s_waitcnt vmcnt({(3-u)*8})")
        L = lambda i, w: VF + 32*u + 4*i + w
        for e in range(8):
            w = e >> 1; sel = 's11' if (e & 1) == 0 else 's12'
            for p in range(4):
                a.i(f"v_perm_b32 v{T2+4*e+p}, v{L(2*p+1,w)}, v{L(2*p,w)}, {sel}")
        for e in range(8):
            c = "0" if u == 0 else vr(OA+4*e)
            a.i(f"v_mfma_f32_16x16x32_bf16 {vr(OA+4*e)}, {vr(T2+4*e)}, {vr(PF2+4*u)}, {c}")
        if u == 2:
            g.wait_cnt(CF, 4)
            a.i("v_lshl_add_u32 v10, v4, 2, v1")
            for w_ in range(4): a.i(f"ds_read_b32 v{148+w_}, v10 offset:{64+w_*64}")
            a.i("v_lshrrev_b32 v12, 2, v4"); a.i("v_lshlrev_b32 v12, 10, v12"); a.i("v_and_b32 v10, 3, v4"); a.i("v_lshl_add_u32 v12, v10, 6, v12"); a.i("v_lshl_add_u32 v12, v3, 4, v12")
            a.i("s_lshl_b32 s43, s41, 12"); a.i("s_lshl_b32 s14, s3, 8"); a.i("s_add_u32 s43, s43, s14"); a.i(f"s_add_u32 s43, s43, {WS_OS}")
            a.i("s_lshl_b32 s44, s41, 4"); a.i("s_lshl_b32 s14, s3, 2"); a.i("s_add_u32 s44, s44, s14"); a.i(f"s_add_u32 s44, s44, {WS_OF}")
            a.i("v_lshlrev_b32 v9, 2, v2"); a.i("s_lshl_b32 s14, s3, 11"); a.i(f"s_add_u32 s14, s14, {L_OR}"); a.i("v_add_u32 v7, s14, v9")
            a.i("s_lshl_b32 s14, s3, 13"); a.i(f"s_add_u32 s14, s14, {L_OR}"); a.i("v_add_u32 v13, s14, v9")
    g.stamp(4)
    for r in range(4):
        for e in range(0, 8, 2):
            a.i(f"ds_write2st64_b32 v7, v{OA+4*e+r}, v{OA+4*(e+1)+r} offset0:{r*32+e} offset1:{r*32+e+1}")
    a.i("s_waitcnt lgkmcnt(0)")
    g.signal(CO)
    g.wait_cnt(CO, 4)
    R = 16
    for src in range(4):
        for e in range(0, 8, 2):
            a.i(f"ds_read2st64_b32 {vr(R+8*src+e,2)}, v13 offset0:{src*8+e} offset1:{src*8+e+1}")
    a.i("s_waitcnt lgkmcnt(0)")
    FR = 148
    for e in range(8):
        a.i(f"v_mul_f32 v{R+e}, v{R+e}, v{FR}"); a.i(f"v_mul_f32 v{R+16+e}, v{R+16+e}, v{FR+2}")
    for e in range(8):
        a.i(f"v_fmac_f32 v{R+e}, v{R+8+e}, v{FR+1}"); a.i(f"v_fmac_f32 v{R+16+e}, v{R+24+e}, v{FR+3}")
    for e in range(8): a.i(f"v_add_f32 v{R+e}, v{R+e}, v{R+16+e}")
    for p in range(4): a.i(f"v_cvt_pk_bf16_f32 v{R+32+p}, v{R+2*p}, v{R+2*p+1}")
    g.store_var(f"buffer_store_dwordx4 {vr(R+32)}, v12, s[32:35], s43 offen")
    if opt.oflag:
        a.i("s_mov_b64 exec, 1")
        g.store_var("buffer_store_dword v8, v5, s[32:35], s44 offen")
        a.i("s_mov_b64 exec, -1")
    g.signal(CO)
    g.stamp(5)
    a.i("s_cmp_lg_u32 s3, 0"); a.i("s_cbranch_scc1 L_end")
    a.i("v_lshrrev_b32 v9, 5, v2"); a.i("v_lshlrev_b32 v9, 19, v9")
    a.i("v_and_b32 v10, 1, v3"); a.i("v_lshl_add_u32 v9, v10, 8, v9"); a.i("v_lshl_add_u32 v9, v4, 4, v9")
    a.i("s_lshl_b32 s43, s5, 12"); a.i("s_lshl_b32 s14, s4, 9"); a.i("s_add_u32 s43, s43, s14"); a.i(f"s_add_u32 s43, s43, {WS_PS}")
    srd(a, 36, 26, 27, 65536)
    a.i("v_and_b32 v10, 1, v3"); a.i("v_lshlrev_b32 v13, 10, v10"); a.i("v_lshl_add_u32 v13, v4, 3, v13")
    a.i("s_lshl_b32 s46, s6, 14"); a.i("s_lshl_b32 s14, s4, 11"); a.i("s_add_u32 s46, s46, s14"); a.i("s_lshl_b32 s14, s7, 7"); a.i("s_add_u32 s46, s46, s14")
    g.wait_cnt(CC, 8)
    R = 16
    a.i("s_mov_b32 s45, 0")
    a.label("L_B_pretry")
    a.i("s_mov_b32 s44, s43")
    for k in range(4):
        a.i(f"buffer_load_dwordx4 {vr(R+4*k)}, v9, s[32:35], s44 offen sc1")
        if k < 3: a.i(f"s_add_u32 s44, s44, {32*4096}")
    a.i("s_mov_b32 s14, 0x0c0c0400"); a.i("s_mov_b32 s15, 0x04000c0c")
    a.i("v_mov_b32 v10, 0")
    a.i("s_waitcnt vmcnt(0)")
    for k in range(4):
        a.i(f"v_perm_b32 v11, v{R+4*k+1}, v{R+4*k}, s14"); a.i(f"v_perm_b32 v12, v{R+4*k+3}, v{R+4*k+2}, s15")
        a.i("v_or_b32 v11, v11, v12"); a.i("v_xor_b32 v11, v11, v8"); a.i("v_or_b32 v10, v10, v11")
    a.i("v_cmp_ne_u32 vcc, 0, v10")
    g.retry_tail("L_B_pretry", "L_B_pok")
    g.stamp(6)
    for e in range(4):
        a.i(f"v_add_f32 v{R+e}, v{R+e}, v{R+4+e}"); a.i(f"v_add_f32 v{R+8+e}, v{R+8+e}, v{R+12+e}")
    for e in range(4): a.i(f"v_add_f32 v{R+e}, v{R+e}, v{R+8+e}")
    for e in range(4): a.i(f"v_mov_b32 v{R+4+e}, v{R+e}")
    for e in range(4): a.i(f"v_permlane32_swap_b32 v{R+e}, v{R+4+e}")
    for e in range(4): a.i(f"v_add_f32 v{R+e}, v{R+e}, v{R+4+e}")
    a.i(f"v_cvt_pk_bf16_f32 v{R+8}, v{R}, v{R+1}"); a.i(f"v_cvt_pk_bf16_f32 v{R+9}, v{R+2}, v{R+3}")
    a.i("s_mov_b32 exec_hi, 0")
    a.i(f"buffer_store_dwordx2 {vr(R+8,2)}, v13, s[36:39], s46 offen")
    a.i("s_or_b32 s14, s4, s7"); a.i("s_cmp_lg_u32 s14, 0"); a.i("s_cbranch_scc1 L_B_fin")
    a.i("s_mov_b64 exec, 1")
    a.i("s_lshl_b32 s14, s6, 7")
    a.i(f"buffer_store_dword v8, v5, s[32:35], s14 offen sc1")
    a.label("L_B_fin")
    a.i("s_mov_b64 exec, -1")
    if opt.stamps:
        a.i("s_waitcnt vmcnt(0)")
        a.i("s_memrealtime s[78:79]")
        emit_stamps(g, 8, 8, first=1)
    a.label("L_end"); a.i("s_endpgm")

    out = Asm()
    out(HEADER + f"; @launch grid=(256,1,1) block=(512,1,1) lds={L_END}")
    out('.amdgcn_target "amdgcn-amd-amdhsa--gfx950"\n.text')
    lines, n = hazard.fix(a.lines)
    out.lines += lines
    out('.section .rodata,"a"')
    out(kernel_desc(NAME, 256))
    return out.text(), n

def emit_stamps(g, slot0, n, first=0):
    a = g.a
    a.i("s_waitcnt lgkmcnt(0)")
    a.i(f"s_add_u32 s90, s30, {STAMPOFF}"); a.i("s_addc_u32 s91, s31, 0")
    a.i("s_lshl_b32 s14, s2, 7"); a.i("s_add_u32 s90, s90, s14"); a.i("s_addc_u32 s91, s91, 0")
    a.i("s_mov_b64 exec, 1")
    for k in range(first, n):
        a.i(f"v_mov_b32 v20, s{64+2*k}"); a.i(f"v_mov_b32 v21, s{65+2*k}")
        a.i(f"global_store_dwordx2 v5, v[20:21], s[90:91] offset:{(slot0+k-first)*8}")
        a.i("s_nop 1")
    a.i("s_mov_b64 exec, -1")

if __name__ == "__main__":
    o = Opt()
    out = sys.argv[1]
    for kv in sys.argv[2:]:
        k, v = kv.split("=")
        cur = getattr(o, k)
        if isinstance(cur, bool): v = v in ("1", "True", "true")
        elif isinstance(cur, int): v = int(v)
        else: v = v.replace("+", " ")
        setattr(o, k, v)
    t, n = gen(o)
    open(out, "w").write(t)
    print(out, "nops inserted:", n, "lines:", t.count("\n"))
```

```python
import sys, struct
from asmlib import *
import hazard

NAME = "standalone__sliding_block_cached__sampling_kernel"
def f2u(x): return struct.unpack('<I', struct.pack('<f', x))[0]
SCALE = 0.08838834764831845 * 1.4426950408889634

WS_XID = 0x8000
WS_OF = 0x9000
WS_QS = 0x10000
WS_ST = 0x200000
WS_OS = 0x300000
WS_PS = 0x500000
WS_SIZE = 0x800000
STAMPOFF = 256 << 20
TAGINC = 0x9E3779B9

L_K = 0
L_OR = 0
L_CR = 32768
L_QR = 131072
L_P = 131072
L_CNT = 147456
L_F = L_CNT + 64
L_Q = L_CNT + 512
L_END = L_Q + 4096
CQ, CKS, CV, CO, CC, CP, CF, CQ2, CKD, FASTW = 0, 4, 8, 12, 16, 20, 36, 40, 44, 60
CWP = CO

class Opt:
    stamps = False
    kv_flags = "nt"
    w_flags = "nt"
    x_flags = ""
    ld_flags = "sc1"
    spin_limit = 30000
    a_prio = 2
    b_prio_pv = 3
    rot = 1
    thr = 7
    wo_mode = 1
    wq_ahead = 2
    force_slow = 0
    bench = 0
    a_stop = 0
    oflag = 1
    cwpstamp = 0
    bpf = 0
    bpf_flags = ""
    wopf = 0
    ppoll = 3
    psleep = 6
    ptouch_flags = ""
    touch = 1
    regather = 0
    o_plain = 1
    dbgcnt = 0
    ntx = 4
    thr3 = 0
    pf = 0
    pf_flags = ""
    tstamps = 0
    wo_early = 2
    b_exit = 0
    wq_rowrot = 0
    wq_colxor = 0
    bstamps = 0
    stagger = 0
    thr_k = 0
    stag_bit = 0
    xid_tries = 4

def vr(b, n=4): return f"v[{b}:{b+n-1}]" if n > 1 else f"v{b}"

def srd(a, d, lo, hi, size, add=None):
    if add is None:
        a.i(f"s_mov_b32 s{d}, s{lo}"); a.i(f"s_mov_b32 s{d+1}, s{hi}")
    else:
        a.i(f"s_add_u32 s{d}, s{lo}, {add}"); a.i(f"s_addc_u32 s{d+1}, s{hi}, 0")
    a.i(f"s_mov_b32 s{d+2}, {size}"); a.i(f"s_mov_b32 s{d+3}, 0x20000")

class G:
    def __init__(self, opt):
        self.a = Asm(); self.o = opt; self.nl = 0
    def lab(self, p):
        self.nl += 1; return f"L{p}{self.nl}"
    def stamp(self, k, tail=None):
        if self.o.tstamps:
            if tail is None and k != 0: return
            if tail is not None: k = tail
            if k < 0: return
        elif tail is not None and k < 0: return
        if self.o.stamps:
            self.a.i(f"s_memrealtime s[{64+2*k}:{65+2*k}]")
    def signal(self, cnt, vaddr=1):
        a = self.a
        a.i("s_mov_b64 exec, 1")
        a.i(f"ds_add_u32 v{vaddr}, v6 offset:{cnt}")
        a.i("s_mov_b64 exec, -1")
    def wait_cnt(self, cnt, n, vt=10, vaddr=1, sleep=0):
        a = self.a
        L = self.lab("w")
        a.i("s_mov_b32 s15, 0")
        a.label(L)
        if sleep: a.i(f"s_sleep {sleep}")
        a.i(f"ds_read_b32 v{vt}, v{vaddr} offset:{cnt}")
        a.i("s_add_u32 s15, s15, 1")
        a.i("s_waitcnt lgkmcnt(0)")
        a.i(f"v_readfirstlane_b32 s14, v{vt}")
        a.i(f"s_cmp_gt_u32 s15, {self.o.spin_limit*16}")
        a.i(f"s_cbranch_scc1 {L}_o")
        a.i(f"s_cmp_ge_u32 s14, {n}")
        a.i(f"s_cbranch_scc0 {L}")
        a.label(f"{L}_o")
    def retry_tail(self, Lretry, Lok):
        a = self.a
        a.i("s_add_u32 s45, s45, 1")
        a.i(f"s_cmp_gt_u32 s45, {self.o.spin_limit}")
        a.i(f"s_cbranch_scc1 {Lok}")
        a.i(f"s_cbranch_vccnz {Lretry}")
        a.label(Lok)
    def store_var(self, ins):
        a = self.a; L = self.lab("s")
        a.i("s_cmp_eq_u32 s58, 1"); a.i(f"s_cbranch_scc1 {L}_f")
        a.i(ins + " sc1"); a.i(f"s_branch {L}_d")
        a.label(f"{L}_f"); a.i(ins); a.label(f"{L}_d")

def transpose4(a, dst, L):
    for e in range(4):
        w = e >> 1; sel = 's11' if (e & 1) == 0 else 's12'
        for p in range(4):
            a.i(f"v_perm_b32 v{dst+4*e+p}, v{L(2*p+1,w)}, v{L(2*p,w)}, {sel}")

def kvbase(a):
    a.i("s_lshr_b32 s14, s5, 1"); a.i("s_lshl_b32 s14, s14, 3"); a.i("s_add_u32 s14, s14, s4"); a.i("s_lshl_b32 s14, s14, 12")
    a.i("s_lshl_b32 s15, s9, 9"); a.i("s_add_u32 s14, s14, s15"); a.i("s_lshl_b32 s15, s3, 7"); a.i("s_add_u32 s14, s14, s15")
    a.i("s_add_u32 s14, s14, 3072"); a.i("s_lshl_b32 s14, s14, 8")

def astop(g, n):
    opt = g.o; a = g.a
    if opt.a_stop == n:
        for k in range(n + 1, 8): g.stamp(k)
        if opt.stamps:
            a.i("s_cmp_lg_u32 s3, 0"); a.i("s_cbranch_scc1 L_end")
            emit_stamps(g, 0, 8)
        a.i("s_branch L_end")

def gen(opt):
    g = G(opt); a = g.a
    kernel_begin(a, NAME)
    a.i("s_cmp_ge_u32 s2, 256"); a.i("s_cbranch_scc1 L_end")
    g.stamp(0)
    a.i("s_load_dwordx16 s[16:31], s[0:1], 0")
    a.i("v_lshrrev_b32 v1, 6, v0"); a.i("v_and_b32 v2, 63, v0")
    a.i("v_readfirstlane_b32 s3, v1")
    a.i("s_and_b32 s4, s2, 7")
    a.i("s_lshr_b32 s5, s2, 3")
    a.i("s_lshr_b32 s6, s5, 3")
    a.i("s_and_b32 s7, s5, 7")
    a.i(f"s_xor_b32 s59, s7, {opt.ntx}")
    a.i("s_bfe_u32 s8, s5, 0x20001")
    a.i("s_and_b32 s9, s5, 1")
    a.i("v_lshrrev_b32 v3, 4, v2"); a.i("v_and_b32 v4, 15, v2")
    a.i("v_mov_b32 v5, 0"); a.i("v_mov_b32 v6, 1")
    a.i(f"v_mov_b32 v1, {L_CNT}")
    a.i("s_mov_b32 s11, 0x05040100"); a.i("s_mov_b32 s12, 0x07060302")
    a.i("s_lshl_b32 s40, s4, 5"); a.i("s_add_u32 s41, s40, s5")
    a.i("s_and_b32 s42, s41, 0xfffffff8")
    a.i("s_cmp_lg_u32 s3, 0"); a.i("s_cbranch_scc1 L_P1")
    a.i("v_lshl_add_u32 v7, v2, 2, v1"); a.i("ds_write_b32 v7, v5 offset:0")
    a.label("L_P1")
    a.i("s_waitcnt lgkmcnt(0)")
    a.i("s_barrier")
    a.i("s_lshl_b32 s15, s6, 7")
    a.i("s_load_dword s10, s[30:31], s15")
    srd(a, 32, 30, 31, WS_SIZE)
    a.i("s_cmp_ge_u32 s3, 4"); a.i("s_cbranch_scc1 L_B")

    if opt.a_prio: a.i(f"s_setprio {opt.a_prio}")
    astop(g, 1) if opt.a_stop == 1 else None
    srd(a, 52, 16, 17, 65536)
    srd(a, 48, 22, 23, 4 << 20)
    XA, WB, T, ACC = 16, 32, 96, 128
    a.i("v_lshlrev_b32 v8, 10, v4"); a.i("v_lshl_add_u32 v8, v3, 4, v8")
    a.i("v_lshlrev_b32 v9, 16, v3"); a.i("v_lshl_add_u32 v9, v4, 3, v9")
    a.i("s_lshl_b32 s14, s6, 14"); a.i("s_lshl_b32 s15, s3, 8"); a.i("s_add_u32 s45, s14, s15")
    a.i("s_lshl_b32 s44, s3, 20"); a.i("s_lshl_b32 s14, s4, 10"); a.i("s_add_u32 s44, s44, s14"); a.i(f"s_xor_b32 s14, s7, {opt.wq_colxor}"); a.i("s_lshl_b32 s14, s14, 7"); a.i("s_add_u32 s44, s44, s14")
    a.i("s_lshl_b32 s47, s3, 15")
    def xidpub():
        a.i("s_getreg_b32 s57, hwreg(HW_REG_XCC_ID, 0, 4)")
        a.i("s_waitcnt lgkmcnt(0)")
        a.i(f"s_add_u32 s10, s10, {TAGINC:#x}")
        a.i("s_and_b32 s14, s10, 0xfffffff0"); a.i("s_or_b32 s14, s14, s57"); a.i("v_mov_b32 v144, s14")
        a.i("s_lshl_b32 s14, s41, 2"); a.i(f"s_add_u32 s14, s14, {WS_XID}")
        a.i("s_mov_b64 exec, 1")
        a.i("buffer_store_dword v144, v5, s[32:35], s14 offen")
        a.i("s_mov_b64 exec, -1")
    if opt.stagger: xidpub()
    if opt.stagger:
        a.i(f"s_bitcmp1_b32 s5, {opt.stag_bit}"); a.i("s_cbranch_scc0 L_A_nostag")
        g.wait_cnt(CKS, 4)
        a.label("L_A_nostag")
    if opt.pf:
        a.i("s_lshl_b32 s14, s6, 7"); a.i("s_lshl_b32 s15, s3, 5"); a.i("s_add_u32 s14, s14, s15"); a.i("s_lshl_b32 s14, s14, 13")
        a.i("s_lshl_b32 s15, s4, 10"); a.i("s_add_u32 s14, s14, s15"); a.i("s_lshl_b32 s15, s7, 7"); a.i("s_add_u32 s14, s14, s15")
        a.i("v_lshlrev_b32 v10, 13, v2")
        a.i("s_mov_b32 exec_hi, 0")
        a.i(f"buffer_load_dword v146, v10, s[48:51], s14 offen {opt.pf_flags}")
        a.i("s_lshl_b32 s14, s6, 14"); a.i("s_lshl_b32 s15, s7, 11"); a.i("s_add_u32 s14, s14, s15"); a.i("s_lshl_b32 s15, s3, 9"); a.i("s_add_u32 s14, s14, s15")
        a.i("v_lshlrev_b32 v10, 7, v2")
        a.i("s_mov_b64 exec, 0xf")
        a.i(f"buffer_load_dword v147, v10, s[52:55], s14 offen")
        a.i("s_mov_b64 exec, -1")
        if not opt.stagger: xidpub()
        a.i("s_waitcnt vmcnt(0)")
    if opt.bpf:
        xidpub()
        g.wait_cnt(CWP, 4)
        if opt.cwpstamp: g.stamp(1)
    seq = [('s', 0)] if ((opt.stagger or opt.bpf) and not opt.pf) else []
    def wqstep(s_):
        for i in range(8):
            a.i(f"buffer_load_dwordx2 {vr(WB+16*s_+2*i,2)}, v9, s[48:51], s44 offen {opt.w_flags}")
            a.i(f"s_add_u32 s44, s44, 8192")
            seq.append(('w', s_))
        if s_ < 3: a.i(f"s_add_u32 s44, s44, {24*8192}")
    wqstep(0)
    for s2 in range(4):
        a.i(f"buffer_load_dwordx4 {vr(XA+4*s2)}, v8, s[52:55], s45 offen offset:{s2*64} {opt.x_flags}")
        seq.append(('x', 0))
    a.i("s_lshl_b32 s46, s42, 2"); a.i(f"s_add_u32 s46, s46, {WS_XID}")
    a.i("v_lshlrev_b32 v145, 2, v2")
    def xidload():
        a.i("s_mov_b64 exec, 0xff")
        a.i("buffer_load_dword v146, v145, s[32:35], s46 offen sc1")
        a.i("s_mov_b64 exec, -1")
    issued = 1
    while issued < min(4, opt.wq_ahead):
        wqstep(issued); issued += 1
    if not opt.stagger and not opt.pf and not opt.bpf:
        xidpub(); seq.append(('s', 0))
    a.i("v_mov_b32 v8, s10")
    for s_ in range(4):
        last = max([i for i, e in enumerate(seq) if e == ('w', s_) or (s_ == 0 and e[0] == 'x') or (s_ == 2 and e[0] == 'i')])
        a.i(f"s_waitcnt vmcnt({len(seq)-1-last})")
        if s_ == 0:
            xidload(); seq.append(('i', 0))
            if opt.touch & 2:
                a.i("v_lshlrev_b32 v7, 4, v2")
                a.i("s_lshl_b32 s14, s41, 12"); a.i("s_lshl_b32 s15, s3, 10"); a.i("s_add_u32 s14, s14, s15"); a.i(f"s_add_u32 s14, s14, {WS_QS}")
                a.i("buffer_load_dwordx4 v[240:243], v7, s[32:35], s14 offen sc1"); seq.append(('t', 0))
                a.i("s_lshl_b32 s14, s41, 10"); a.i("s_lshl_b32 s15, s3, 8"); a.i("s_add_u32 s14, s14, s15"); a.i(f"s_add_u32 s14, s14, {WS_ST}")
                a.i("s_mov_b64 exec, 0xffff")
                a.i("buffer_load_dwordx4 v[244:247], v7, s[32:35], s14 offen sc1"); seq.append(('t', 0))
                a.i("s_mov_b64 exec, -1")
        if issued < 4:
            wqstep(issued); issued += 1
        if s_ == 0 and not opt.cwpstamp: g.stamp(1)
        if s_ == 2:
            a.i("s_mov_b32 s45, 0"); a.i("s_mov_b32 s58, 0")
            a.i("s_branch L_A_xchk")
            a.label("L_A_xretry")
            xidload()
            a.i("s_waitcnt vmcnt(0)")
            a.label("L_A_xchk")
            a.i("s_mov_b64 exec, 0xff")
            a.i("v_xor_b32 v147, v146, v8"); a.i("v_and_b32 v147, 0xfffffff0, v147"); a.i("v_cmp_ne_u32 vcc, 0, v147")
            a.i("s_mov_b64 exec, -1")
            a.i("s_cbranch_vccz L_A_xok")
            a.i("s_add_u32 s45, s45, 1")
            a.i(f"s_cmp_lt_u32 s45, {opt.xid_tries}")
            a.i("s_cbranch_scc1 L_A_xretry")
            a.i("s_branch L_A_xdone")
            a.label("L_A_xok")
            a.i("s_mov_b64 exec, 0xff")
            a.i("v_and_b32 v147, 15, v146"); a.i("v_cmp_ne_u32 vcc, s57, v147")
            a.i("s_mov_b64 exec, -1")
            a.i("s_cmp_eq_u64 vcc, 0"); a.i("s_cselect_b32 s58, 1, 0")
            a.label("L_A_xdone")
            if opt.force_slow: a.i("s_mov_b32 s58, 0")
            for r in range(4): a.i(f"v_mov_b32 v{148+r}, -1")
            a.i("v_lshlrev_b32 v7, 4, v2")
            a.i("s_lshl_b32 s43, s41, 12"); a.i("s_lshl_b32 s14, s3, 10"); a.i("s_add_u32 s43, s43, s14"); a.i(f"s_add_u32 s46, s43, {WS_OS}")
            g.store_var("buffer_store_dwordx4 v[148:151], v7, s[32:35], s46 offen"); seq.append(('p', 0))
        tb = T + (s_ & 1) * 16
        transpose4(a, tb, lambda i, w: WB + 16*s_ + 2*i + w)
        for e in range(4):
            c = "0" if s_ == 0 else vr(ACC+4*e)
            a.i(f"v_mfma_f32_16x16x32_bf16 {vr(ACC+4*e)}, {vr(XA+4*s_)}, {vr(tb+4*e)}, {c}")
    a.i("v_lshlrev_b32 v9, 2, v2"); a.i("s_lshl_b32 s14, s3, 10"); a.i(f"s_add_u32 s14, s14, {L_QR}"); a.i("v_add_u32 v7, s14, v9")
    for r in range(4):
        for e in range(0, 4, 2):
            a.i(f"ds_write2st64_b32 v7, v{ACC+4*e+r}, v{ACC+4*(e+1)+r} offset0:{r*16+e} offset1:{r*16+e+1}")
    a.i("v_mov_b32 v10, s58"); a.i(f"ds_write_b32 v1, v10 offset:{FASTW}")
    a.i("s_waitcnt lgkmcnt(0)")
    g.signal(CQ)
    g.wait_cnt(CQ, 4)
    a.i("s_lshl_b32 s14, s3, 12"); a.i(f"s_add_u32 s14, s14, {L_QR}"); a.i("v_add_u32 v7, s14, v9")
    R = 152
    for src in range(4):
        for e in range(0, 4, 2):
            a.i(f"ds_read2st64_b32 {vr(R+4*src+e,2)}, v7 offset0:{src*4+e} offset1:{src*4+e+1}")
    a.i("v_lshlrev_b32 v9, 10, v3"); a.i("v_and_b32 v10, 1, v4"); a.i("v_lshl_add_u32 v9, v10, 9, v9")
    a.i("v_lshrrev_b32 v10, 3, v4"); a.i("v_lshl_add_u32 v9, v10, 8, v9"); a.i("v_bfe_u32 v10, v4, 1, 2"); a.i("v_lshl_add_u32 v9, v10, 4, v9")
    a.i("s_lshl_b32 s43, s41, 12"); a.i("s_lshl_b32 s14, s3, 6"); a.i("s_add_u32 s43, s43, s14"); a.i(f"s_add_u32 s43, s43, {WS_QS}")
    a.i("s_waitcnt lgkmcnt(0)")
    for e in range(4):
        a.i(f"v_add_f32 v{R+e}, v{R+e}, v{R+4+e}"); a.i(f"v_add_f32 v{R+8+e}, v{R+8+e}, v{R+12+e}")
    for e in range(4): a.i(f"v_add_f32 v{R+e}, v{R+e}, v{R+8+e}")
    a.i(f"v_cvt_pk_bf16_f32 v{R+4}, v{R}, v{R+1}"); a.i(f"v_cvt_pk_bf16_f32 v{R+5}, v{R+2}, v{R+3}")
    a.i(f"v_perm_b32 v{R+8}, v{R+4}, v8, s11"); a.i(f"v_perm_b32 v{R+9}, v{R+4}, v8, s12")
    a.i(f"v_perm_b32 v{R+10}, v{R+5}, v8, s11"); a.i(f"v_perm_b32 v{R+11}, v{R+5}, v8, s12")
    a.i("s_waitcnt vmcnt(0)")
    if opt.touch & 1:
        a.i("v_lshlrev_b32 v7, 4, v2")
        a.i("buffer_load_dwordx4 v[248:251], v7, s[32:35], s46 offen sc1")
    if opt.touch & 4:
        a.i("v_lshlrev_b32 v7, 4, v2")
        a.i("s_lshl_b32 s14, s41, 12"); a.i("s_lshl_b32 s15, s3, 10"); a.i("s_add_u32 s14, s14, s15"); a.i(f"s_add_u32 s14, s14, {WS_PS}")
        a.i(f"buffer_load_dwordx4 v[252:255], v7, s[32:35], s14 offen {opt.ptouch_flags}")
    g.store_var(f"buffer_store_dwordx4 {vr(R+8)}, v9, s[32:35], s43 offen")
    g.stamp(2)
    astop(g, 2)
    QR = 176
    a.i("v_lshrrev_b32 v9, 2, v4"); a.i("v_lshlrev_b32 v9, 13, v9"); a.i("v_and_b32 v10, 3, v4"); a.i("v_lshl_add_u32 v9, v10, 6, v9"); a.i("v_lshl_add_u32 v9, v3, 4, v9")
    a.i("s_lshl_b32 s43, s42, 12"); a.i("s_lshl_b32 s14, s8, 10"); a.i("s_add_u32 s43, s43, s14"); a.i(f"s_add_u32 s43, s43, {WS_QS}")
    a.i("s_lshr_b32 s14, s3, 1"); a.i("s_lshl_b32 s14, s14, 12"); a.i("s_add_u32 s43, s43, s14")
    a.i("s_and_b32 s14, s3, 1"); a.i("s_lshl_b32 s14, s14, 8"); a.i("s_add_u32 s43, s43, s14")
    a.i("s_mov_b32 s45, 0")
    a.label("L_A_qretry")
    for u in range(2):
        a.i(f"buffer_load_dwordx4 {vr(QR+4*u)}, v9, s[32:35], s43 offen offset:{u*512} {opt.ld_flags}")
    a.i("v_mov_b32 v10, 0")
    a.i("s_waitcnt vmcnt(0)")
    for k in range(4):
        a.i(f"v_perm_b32 v11, v{QR+2*k+1}, v{QR+2*k}, s11")
        a.i(f"v_xor_b32 v11, v11, v8")
        a.i(f"v_or_b32 v10, v10, v11")
    a.i("v_cmp_ne_u32 vcc, 0, v10")
    g.retry_tail("L_A_qretry", "L_A_qok")
    for k in range(4):
        a.i(f"v_perm_b32 v{QR+8+k}, v{QR+2*k+1}, v{QR+2*k}, s12")
    a.i("v_lshlrev_b32 v9, 4, v2"); a.i("s_lshl_b32 s14, s3, 10"); a.i(f"s_add_u32 s14, s14, {L_Q}"); a.i("v_add_u32 v10, s14, v9")
    a.i(f"ds_write_b128 v10, {vr(QR+8)}")
    for st in range(4):
        a.i(f"v_add_u32 v10, {4*st}, v3"); a.i("v_xor_b32 v10, v10, v4"); a.i("v_lshlrev_b32 v10, 4, v10"); a.i("v_lshl_add_u32 v10, v4, 8, v10"); a.i(f"v_add_u32 v{12+st}, s47, v10")
    a.i("s_waitcnt lgkmcnt(0)")
    g.signal(CQ2)
    g.stamp(3)
    astop(g, 3)
    WR, WF = 32, 96
    srd(a, 48, 24, 25, 4 << 20)
    a.i("v_lshlrev_b32 v16, 15, v3"); a.i("v_lshl_add_u32 v16, v4, 3, v16")
    a.i("s_lshl_b32 s46, s4, 2"); a.i("s_add_u32 s46, s46, s3"); a.i("s_lshl_b32 s46, s46, 17"); a.i("s_lshl_b32 s15, s59, 7"); a.i("s_add_u32 s46, s46, s15")
    def wostep(st):
        for i in range(8):
            if i % 4 == 0 and (st or i): a.i("s_add_u32 s46, s46, 4096")
            a.i(f"buffer_load_dwordx2 {vr(WR+16*st+2*i,2)}, v16, s[48:51], s46 offen offset:{(i&3)*1024} {opt.w_flags}")
    KB = [96, 128]; QF = 160; SA = 192; PF = 224; ST = 240
    def kread(p):
        for tt in range(2):
            for st in range(4):
                a.i(f"ds_read_b128 {vr(KB[p&1]+16*tt+4*st)}, v{12+st} offset:{(2*p+tt)*4096}")
    g.wait_cnt(CQ2, 4)
    a.i(f"v_add_u32 v10, {L_Q}, v9")
    for st in range(4): a.i(f"ds_read_b128 {vr(QF+4*st)}, v10 offset:{st*1024}")
    a.i("s_lshl_b32 s14, s3, 2"); a.i("v_add_u32 v7, s14, v1")
    g.wait_cnt(CKD, 1, vaddr=7)
    kread(0); kread(1)
    for p in range(4):
        a.i(f"s_waitcnt lgkmcnt({8 if p < 3 else 0})")
        for tt in range(2):
            t = 2*p + tt
            for st in range(4):
                c = "0" if st == 0 else vr(SA+4*t)
                a.i(f"v_mfma_f32_16x16x32_bf16 {vr(SA+4*t)}, {vr(KB[p&1]+16*tt+4*st)}, {vr(QF+4*st)}, {c}")
        if p + 2 < 4: kread(p + 2)
    a.i(f"s_mov_b32 s13, {f2u(SCALE):#x}")
    a.i(f"v_max3_f32 v10, v{SA}, v{SA+1}, v{SA+2}")
    for r in range(3, 31, 2): a.i(f"v_max3_f32 v10, v10, v{SA+r}, v{SA+r+1}")
    a.i(f"v_max_f32 v10, v10, v{SA+31}")
    a.i("v_mov_b32 v11, v10"); a.i("v_permlane16_swap_b32 v10, v11"); a.i("v_max_f32 v10, v10, v11")
    a.i("v_mov_b32 v11, v10"); a.i("v_permlane32_swap_b32 v10, v11"); a.i("v_max_f32 v10, v10, v11")
    a.i("v_mul_f32 v12, s13, v10")
    for r in range(32): a.i(f"v_fma_f32 v{SA+r}, v{SA+r}, s13, -v12")
    for r in range(32): a.i(f"v_exp_f32 v{SA+r}, v{SA+r}")
    for k in range(16): a.i(f"v_cvt_pk_bf16_f32 v{PF+k}, v{SA+2*k}, v{SA+2*k+1}")
    a.i("v_lshlrev_b32 v9, 4, v2"); a.i("s_lshl_b32 s14, s3, 12"); a.i(f"s_add_u32 s14, s14, {L_P}"); a.i("v_add_u32 v9, s14, v9")
    for u in range(4): a.i(f"ds_write_b128 v9, {vr(PF+4*u)} offset:{u*1024}")
    a.i(f"v_add_f32 v10, v{SA}, v{SA+1}"); a.i(f"v_add_f32 v11, v{SA+2}, v{SA+3}")
    for r in range(4, 32, 2):
        a.i(f"v_add_f32 v10, v10, v{SA+r}"); a.i(f"v_add_f32 v11, v11, v{SA+r+1}")
    a.i("s_waitcnt lgkmcnt(0)")
    g.signal(CP, vaddr=7)
    a.i("v_add_f32 v10, v10, v11")
    a.i("v_mov_b32 v11, v10"); a.i("v_permlane16_swap_b32 v10, v11"); a.i("v_add_f32 v10, v10, v11")
    a.i("v_mov_b32 v11, v10"); a.i("v_permlane32_swap_b32 v10, v11"); a.i("v_add_f32 v13, v10, v11")
    a.i("v_mov_b32 v14, v8"); a.i("v_mov_b32 v15, v8")
    a.i("s_lshl_b32 s43, s41, 10"); a.i("s_lshl_b32 s14, s3, 8"); a.i("s_add_u32 s43, s43, s14"); a.i(f"s_add_u32 s43, s43, {WS_ST}")
    a.i("v_lshlrev_b32 v9, 4, v4")
    a.i("s_mov_b64 exec, 0xffff")
    g.store_var("buffer_store_dwordx4 v[12:15], v9, s[32:35], s43 offen")
    a.i("s_mov_b64 exec, -1")
    g.stamp(4)
    if opt.pf:
        a.i("s_lshl_b32 s14, s4, 9"); a.i("s_lshl_b32 s15, s6, 7"); a.i("s_add_u32 s14, s14, s15"); a.i("s_lshl_b32 s15, s3, 5"); a.i("s_add_u32 s14, s14, s15"); a.i("s_lshl_b32 s14, s14, 10")
        a.i("s_lshl_b32 s15, s7, 7"); a.i("s_add_u32 s14, s14, s15")
        a.i("v_lshlrev_b32 v10, 10, v2")
        a.i("s_mov_b32 exec_hi, 0")
        a.i(f"buffer_load_dword v17, v10, s[48:51], s14 offen {opt.pf_flags}")
        a.i("s_mov_b64 exec, -1")
    a.i("s_and_b32 s43, s41, 0xfffffffe"); a.i("s_lshl_b32 s43, s43, 10"); a.i(f"s_add_u32 s43, s43, {WS_ST}")
    a.i("v_lshl_add_u32 v9, v3, 9, v9")
    a.i("s_mov_b32 s45, 0")
    a.label("L_A_sretry")
    a.i(f"buffer_load_dwordx4 {vr(ST)}, v9, s[32:35], s43 offen {opt.ld_flags}")
    a.i(f"buffer_load_dwordx4 {vr(ST+4)}, v9, s[32:35], s43 offen offset:256 {opt.ld_flags}")
    a.i("s_waitcnt vmcnt(0)")
    a.i(f"v_xor_b32 v10, v{ST+2}, v8"); a.i(f"v_xor_b32 v11, v{ST+3}, v8"); a.i("v_or_b32 v10, v10, v11")
    a.i(f"v_xor_b32 v11, v{ST+6}, v8"); a.i("v_or_b32 v10, v10, v11"); a.i(f"v_xor_b32 v11, v{ST+7}, v8"); a.i("v_or_b32 v10, v10, v11")
    a.i("v_cmp_ne_u32 vcc, 0, v10")
    g.retry_tail("L_A_sretry", "L_A_sok")
    a.i(f"v_max_f32 v10, v{ST}, v{ST+4}")
    a.i("v_mov_b32 v11, v10"); a.i("v_permlane16_swap_b32 v10, v11"); a.i("v_max_f32 v10, v10, v11")
    a.i("v_mov_b32 v11, v10"); a.i("v_permlane32_swap_b32 v10, v11"); a.i("v_max_f32 v10, v10, v11")
    a.i(f"v_sub_f32 v{ST}, v{ST}, v10"); a.i(f"v_sub_f32 v{ST+4}, v{ST+4}, v10")
    a.i(f"v_exp_f32 v{ST}, v{ST}"); a.i(f"v_exp_f32 v{ST+4}, v{ST+4}")
    a.i(f"v_mul_f32 v{ST+1}, v{ST+1}, v{ST}"); a.i(f"v_fmac_f32 v{ST+1}, v{ST+5}, v{ST+4}")
    a.i(f"v_mov_b32 v11, v{ST+1}"); a.i(f"v_permlane16_swap_b32 v{ST+1}, v11"); a.i(f"v_add_f32 v{ST+1}, v{ST+1}, v11")
    a.i(f"v_mov_b32 v11, v{ST+1}"); a.i(f"v_permlane32_swap_b32 v{ST+1}, v11"); a.i(f"v_add_f32 v11, v{ST+1}, v11")
    a.i("v_sub_f32 v12, v12, v10"); a.i("v_exp_f32 v12, v12"); a.i("v_rcp_f32 v11, v11"); a.i("v_mul_f32 v12, v12, v11")
    a.i("v_lshlrev_b32 v9, 2, v4"); a.i("s_lshl_b32 s14, s3, 6"); a.i(f"s_add_u32 s14, s14, {L_F}"); a.i("v_add_u32 v9, s14, v9")
    a.i("ds_write_b32 v9, v12")
    a.i("s_waitcnt lgkmcnt(0)")
    g.signal(CF)
    for st in range(opt.wo_early): wostep(st)
    if opt.wo_early < 4:
        g.wait_cnt(CV, 4)
        for st in range(opt.wo_early, 4): wostep(st)
    OG, CA = 192, 176
    a.i("v_add_u32 v10, s3, v4"); a.i("v_and_b32 v10, 3, v10")
    a.i("v_lshrrev_b32 v9, 2, v4"); a.i("v_lshlrev_b32 v9, 13, v9"); a.i("v_lshl_add_u32 v9, v10, 6, v9"); a.i("v_lshl_add_u32 v9, v3, 4, v9")
    a.i("s_lshl_b32 s43, s42, 12"); a.i("s_lshl_b32 s14, s3, 10"); a.i("s_add_u32 s43, s43, s14"); a.i(f"s_add_u32 s43, s43, {WS_OS}")
    a.i("s_add_u32 s44, s43, 4096")
    a.i("s_lshl_b32 s46, s42, 4"); a.i(f"s_add_u32 s46, s46, {WS_OF}")
    a.i("v_lshlrev_b32 v7, 2, v2")
    for r in range(1, 4):
        a.i(f"s_add_u32 s14, s3, {r}"); a.i("s_and_b32 s14, s14, 3"); a.i("s_lshl_b32 s14, s14, 12"); a.i(f"s_add_u32 s14, s14, {L_CR + (r-1)*1024}"); a.i(f"v_add_u32 v{12+r}, s14, v7")
    a.i("s_lshl_b32 s14, s3, 12"); a.i(f"s_add_u32 s14, s14, {L_CR}"); a.i("v_add_u32 v12, s14, v7")
    a.i("v_lshlrev_b32 v17, 10, v3"); a.i("v_lshl_add_u32 v17, v4, 4, v17")
    a.i("s_lshl_b32 s47, s41, 12"); a.i("s_lshl_b32 s14, s3, 8"); a.i("s_add_u32 s47, s47, s14"); a.i(f"s_add_u32 s47, s47, {WS_PS}")
    for e in range(4): a.i(f"s_mov_b32 s{60+e}, {0x07060500+e:#x}")
    for st in range(opt.wo_early):
        a.i(f"s_waitcnt vmcnt({8*(3-st)})")
        transpose4(a, WF+16*st, lambda i, w: WR + 16*st + 2*i + w)
    a.i("s_barrier")
    g.stamp(-1, tail=1)
    for st in range(opt.wo_early, 4):
        a.i(f"s_waitcnt vmcnt({8*(3-st)})")
        transpose4(a, WF+16*st, lambda i, w: WR + 16*st + 2*i + w)
    g.stamp(5, tail=2)
    a.i("s_mov_b32 s45, 0")
    a.label("L_A_fretry")
    a.i("s_mov_b32 exec_hi, 0")
    a.i(f"buffer_load_dword v10, v7, s[32:35], s46 offen {opt.ld_flags}")
    a.i("s_waitcnt vmcnt(0)")
    a.i("v_cmp_ne_u32 vcc, v10, v8")
    a.i("s_mov_b64 exec, -1")
    g.retry_tail("L_A_fretry", "L_A_fok")
    g.stamp(-1, tail=3)
    if opt.dbgcnt: a.i("s_mov_b32 s92, s45")
    a.i("s_mov_b32 s45, 0")
    def ogather(fl):
        for sp in range(2):
            for st in range(4):
                a.i(f"buffer_load_dwordx4 {vr(OG+16*sp+4*st)}, v9, s[32:35], {'s43' if sp == 0 else 's44'} offen offset:{st*256} {fl}")
    if opt.o_plain:
        a.i("s_cmp_eq_u32 s58, 1"); a.i("s_cbranch_scc0 L_A_oretry")
        ogather("")
        a.i("s_branch L_A_ogo")
    a.label("L_A_oretry")
    ogather(opt.ld_flags)
    a.label("L_A_ogo")
    k = 0
    for sp in range(2):
        for st in range(4):
            a.i(f"s_waitcnt vmcnt({7-k})")
            for e in range(4):
                c = "0" if k == 0 else vr(CA+4*e)
                a.i(f"v_mfma_f32_16x16x32_bf16 {vr(CA+4*e)}, {vr(OG+16*sp+4*st)}, {vr(WF+16*st+4*e)}, {c}")
            b = OG+16*sp+4*st
            if k == 0: a.i(f"v_max3_u32 v10, v{b}, v{b+1}, v{b+2}"); a.i(f"v_max_u32 v10, v10, v{b+3}")
            else: a.i(f"v_max3_u32 v10, v10, v{b}, v{b+1}"); a.i(f"v_max3_u32 v10, v10, v{b+2}, v{b+3}")
            k += 1
    a.i("v_cmp_eq_u32 vcc, -1, v10")
    g.retry_tail("L_A_oretry", "L_A_ook")
    g.stamp(6, tail=4)
    if opt.regather:
        ogather("sc1")
        a.i("s_waitcnt vmcnt(0)")
        g.stamp(-1, tail=5)
    if opt.dbgcnt:
        a.i("s_mov_b64 exec, 1")
        a.i("v_mov_b32 v18, s45"); a.i("v_mov_b32 v19, s92")
        a.i("global_atomic_add v5, v18, s[28:29]"); a.i("global_atomic_add v5, v19, s[28:29] offset:4")
        a.i("global_atomic_add v5, v6, s[28:29] offset:8")
        a.i("s_mov_b64 exec, -1")
    for r in range(1, 4):
        for e in range(0, 4, 2):
            a.i(f"ds_write2st64_b32 v{12+r}, v{CA+4*e+r}, v{CA+4*(e+1)+r} offset0:{e} offset1:{e+1}")
    a.i("s_waitcnt lgkmcnt(0)")
    a.i("s_barrier")
    if not opt.regather: g.stamp(-1, tail=5)
    R = 20
    for slot in range(3):
        for e in range(0, 4, 2):
            a.i(f"ds_read2st64_b32 {vr(R+4*slot+e,2)}, v12 offset0:{slot*4+e} offset1:{slot*4+e+1}")
    a.i("s_waitcnt lgkmcnt(0)")
    for e in range(4):
        a.i(f"v_add_f32 v{R+e}, v{R+e}, v{R+4+e}"); a.i(f"v_add_f32 v{R+8+e}, v{R+8+e}, v{CA+4*e}")
    for e in range(4): a.i(f"v_add_f32 v{R+e}, v{R+e}, v{R+8+e}")
    for e in range(4): a.i(f"v_perm_b32 v{R+12+e}, v{R+e}, v8, s{60+e}")
    a.i(f"buffer_store_dwordx4 {vr(R+12)}, v17, s[32:35], s47 offen sc1")
    g.stamp(7, tail=6)
    if opt.tstamps:
        a.i("s_waitcnt vmcnt(0)")
        g.stamp(-1, tail=7)
    if opt.stamps:
        a.i("s_cmp_lg_u32 s3, 0"); a.i("s_cbranch_scc1 L_end")
        emit_stamps(g, 0, 8)
    a.i("s_branch L_end")

    a.label("L_B")
    a.i("s_sub_u32 s3, s3, 4")
    if opt.b_exit:
        for k in range(1, 8): g.stamp(k)
        a.i("s_cmp_lg_u32 s3, 0"); a.i("s_cbranch_scc1 L_end")
        emit_stamps(g, 8, 8, first=1)
        a.i("s_branch L_end")
    VF, PF2, T2, OA = 16, 144, 160, 192
    kvbase(a)
    srd(a, 48, 18, 19, 128*256, add="s14")
    srd(a, 36, 20, 21, 128*256, add="s14")
    if opt.rot:
        a.i("s_add_u32 s56, s5, s3"); a.i("s_and_b32 s56, s56, 7"); a.i("s_lshl_b32 s56, s56, 12")
    else:
        a.i("s_mov_b32 s56, 0")
    for n in range(4):
        a.i(f"v_add_u32 v10, {4*n}, v3"); a.i("v_xor_b32 v10, v10, v4"); a.i("v_lshlrev_b32 v10, 4, v10"); a.i(f"v_lshl_add_u32 v{12+n}, v3, 8, v10")
    a.i("s_lshl_b32 s47, s3, 15")
    if opt.bpf:
        srd(a, 52, 22, 23, 4 << 20)
        srd(a, 60, 16, 17, 65536)
        a.i("v_lshlrev_b32 v8, 4, v2")
        a.i("s_lshl_b32 s14, s5, 4"); a.i("s_lshl_b32 s15, s3, 2"); a.i("s_add_u32 s14, s14, s15"); a.i("s_lshl_b32 s14, s14, 13"); a.i("s_lshl_b32 s15, s4, 10"); a.i("s_add_u32 s14, s14, s15")
        for k in range(4):
            a.i(f"buffer_load_dwordx4 {vr(16+4*k)}, v8, s[52:55], s14 offen {opt.bpf_flags}")
            if k < 3: a.i("s_add_u32 s14, s14, 8192")
        a.i("s_lshl_b32 s14, s5, 1"); a.i("s_and_b32 s15, s3, 1"); a.i("s_add_u32 s14, s14, s15"); a.i("s_lshl_b32 s14, s14, 10")
        a.i(f"buffer_load_dwordx4 {vr(32)}, v8, s[60:63], s14 offen")
    NPF = 5 if opt.bpf else 0
    def stream(TH, THK):
        cnt = [NPF]
        pfsig = [not opt.bpf]
        def throttle():
            th = THK if (THK and cnt[0] < 32 + NPF) else TH
            if cnt[0] >= th: a.i(f"s_waitcnt vmcnt({th-1})")
            if not pfsig[0] and cnt[0] - th >= NPF - 1:
                g.signal(CWP); pfsig[0] = True
            cnt[0] += 1
        for t in range(8):
            a.i(f"s_add_u32 s14, s47, {t*4096}"); a.i("s_mov_b32 m0, s14"); a.i(f"s_xor_b32 s14, s56, {t*4096}")
            for n in range(4):
                throttle()
                a.i(f"buffer_load_dwordx4 v{12+n}, s[48:51], s14 offen offset:{n*1024} {opt.kv_flags} lds")
            if t == 0:
                a.i("v_add_u32 v7, s3, v4"); a.i("v_and_b32 v7, 3, v7"); a.i("v_and_b32 v10, 12, v4"); a.i("v_or_b32 v7, v7, v10")
                a.i("v_lshlrev_b32 v7, 4, v7"); a.i("v_lshl_add_u32 v7, v3, 10, v7")
                a.i("s_lshl_b32 s15, s3, 2"); a.i("v_add_u32 v11, s15, v1")
            if opt.stagger and t == opt.stagger - 1: g.signal(CKS)
            if opt.bstamps and t in (1, 3, 5, 7): g.stamp(1 + t // 2)
        if not opt.bstamps: g.stamp(1)
        signaled = False
        for u in range(4):
            for i in range(8):
                if i % 4 == 0: a.i(f"s_xor_b32 s14, s56, {u*8192 + (i>>2)*4096}")
                throttle()
                n = cnt[0] - 1 - NPF
                if opt.wopf and u == opt.wopf - 1 and i == 0:
                    pass
                if not signaled and n - TH >= 31:
                    g.signal(CKD, vaddr=11)
                    signaled = True
                a.i(f"buffer_load_dwordx4 {vr(VF+32*u+4*i)}, v7, s[36:39], s14 offen offset:{(i&3)*256} {opt.kv_flags}")
            if opt.bstamps and u in (0, 1, 3): g.stamp({0: 5, 1: 6, 3: 7}[u])
        assert signaled
    if opt.thr3:
        a.i("s_cmp_eq_u32 s7, 3"); a.i("s_cbranch_scc1 L_B_s3")
        stream(opt.thr, opt.thr_k)
        a.i("s_branch L_B_sdone")
        a.label("L_B_s3")
        stream(opt.thr3, opt.thr3)
        a.label("L_B_sdone")
    else:
        stream(opt.thr, opt.thr_k)
    g.signal(CV)
    if opt.bstamps:
        a.i("s_waitcnt vmcnt(0)")
        a.i("s_cmp_lg_u32 s3, 0"); a.i("s_cbranch_scc1 L_end")
        emit_stamps(g, 8, 8, first=1)
        a.i("s_branch L_end")
    g.stamp(2, tail=1)
    if opt.bench:
        a.i("s_waitcnt vmcnt(0)")
        for k in range(3, 8): g.stamp(k)
        a.i("s_cmp_lg_u32 s3, 0"); a.i("s_cbranch_scc1 L_end")
        emit_stamps(g, 8, 8, first=1)
        a.i("s_branch L_end")
    g.wait_cnt(CP, 1, vaddr=11)
    a.i("v_lshlrev_b32 v9, 4, v2"); a.i("s_lshl_b32 s14, s3, 12"); a.i(f"s_add_u32 s14, s14, {L_P}"); a.i("v_add_u32 v9, s14, v9")
    for u in range(4): a.i(f"ds_read_b128 {vr(PF2+4*u)}, v9 offset:{u*1024}")
    a.i(f"ds_read_b32 v10, v1 offset:{FASTW}")
    a.i("s_waitcnt lgkmcnt(0)")
    a.i(f"s_add_u32 s10, s10, {TAGINC:#x}")
    a.i("v_mov_b32 v8, s10")
    a.i("v_readfirstlane_b32 s58, v10")
    g.stamp(3, tail=2)
    if opt.b_prio_pv: a.i(f"s_setprio {opt.b_prio_pv}")
    for u in range(4):
        L = lambda i, w: VF + 32*u + 4*i + w
        if u < 3:
            a.i(f"s_waitcnt vmcnt({(3-u)*8})")
            for e in range(8):
                w = e >> 1; sel = 's11' if (e & 1) == 0 else 's12'
                for p in range(4):
                    a.i(f"v_perm_b32 v{T2+4*e+p}, v{L(2*p+1,w)}, v{L(2*p,w)}, {sel}")
        else:
            for p in range(4):
                a.i(f"s_waitcnt vmcnt({6-2*p})")
                for e in range(8):
                    w = e >> 1; sel = 's11' if (e & 1) == 0 else 's12'
                    a.i(f"v_perm_b32 v{T2+4*e+p}, v{L(2*p+1,w)}, v{L(2*p,w)}, {sel}")
        for e in range(8):
            c = "0" if u == 0 else vr(OA+4*e)
            a.i(f"v_mfma_f32_16x16x32_bf16 {vr(OA+4*e)}, {vr(T2+4*e)}, {vr(PF2+4*u)}, {c}")
        if u == 2:
            g.wait_cnt(CF, 4)
            for k in range(4):
                a.i(f"s_sub_u32 s14, s3, {k}"); a.i("s_and_b32 s14, s14, 3"); a.i("s_lshl_b32 s14, s14, 6"); a.i(f"s_add_u32 s14, s14, {L_F}")
                a.i(f"v_lshl_add_u32 v10, v4, 2, s14"); a.i(f"ds_read_b32 v{148+k}, v10")
            a.i("v_lshrrev_b32 v12, 2, v4"); a.i("v_lshlrev_b32 v12, 10, v12"); a.i("v_and_b32 v10, 3, v4"); a.i("v_lshl_add_u32 v12, v10, 6, v12"); a.i("v_lshl_add_u32 v12, v3, 4, v12")
            a.i("s_lshl_b32 s43, s41, 12"); a.i("s_lshl_b32 s14, s3, 8"); a.i("s_add_u32 s43, s43, s14"); a.i(f"s_add_u32 s43, s43, {WS_OS}")
            a.i("s_lshl_b32 s44, s41, 4"); a.i("s_lshl_b32 s14, s3, 2"); a.i("s_add_u32 s44, s44, s14"); a.i(f"s_add_u32 s44, s44, {WS_OF}")
            a.i("v_lshlrev_b32 v9, 2, v2")
            for r in range(1, 4):
                a.i(f"s_add_u32 s14, s3, {r}"); a.i("s_and_b32 s14, s14, 3"); a.i("s_lshl_b32 s14, s14, 13"); a.i(f"s_add_u32 s14, s14, {L_OR + (r-1)*2048}"); a.i(f"v_add_u32 v{12+r}, s14, v9")
            a.i("s_lshl_b32 s14, s3, 13"); a.i(f"s_add_u32 s14, s14, {L_OR}"); a.i("v_add_u32 v7, s14, v9")
    g.stamp(4, tail=3)
    for r in range(1, 4):
        for e in range(0, 8, 2):
            a.i(f"ds_write2st64_b32 v{12+r}, v{OA+4*e+r}, v{OA+4*(e+1)+r} offset0:{e} offset1:{e+1}")
    a.i("s_waitcnt lgkmcnt(0)")
    a.i("s_barrier")
    g.stamp(-1, tail=4)
    R = 16
    for slot in range(3):
        for e in range(0, 8, 2):
            a.i(f"ds_read2st64_b32 {vr(R+8*slot+e,2)}, v7 offset0:{slot*8+e} offset1:{slot*8+e+1}")
    FR = 148
    for e in range(8): a.i(f"v_mul_f32 v{OA+4*e}, v{OA+4*e}, v{FR}")
    for slot in range(3):
        a.i(f"s_waitcnt lgkmcnt({4*(2-slot)})")
        for e in range(8): a.i(f"v_fmac_f32 v{OA+4*e}, v{R+8*slot+e}, v{FR+1+slot}")
    for p in range(4): a.i(f"v_cvt_pk_bf16_f32 v{R+32+p}, v{OA+8*p}, v{OA+8*p+4}")
    g.store_var(f"buffer_store_dwordx4 {vr(R+32)}, v12, s[32:35], s43 offen")
    a.i("s_mov_b64 exec, 1")
    g.store_var("buffer_store_dword v8, v5, s[32:35], s44 offen")
    a.i("s_mov_b64 exec, -1")
    g.stamp(5, tail=5)
    a.i("s_cmp_lg_u32 s3, 0"); a.i("s_cbranch_scc1 L_end")
    a.i("v_lshrrev_b32 v9, 5, v2"); a.i("v_lshlrev_b32 v9, 19, v9")
    a.i("v_and_b32 v10, 1, v3"); a.i("v_lshl_add_u32 v9, v10, 8, v9"); a.i("v_lshl_add_u32 v9, v4, 4, v9")
    a.i("s_lshl_b32 s43, s5, 12"); a.i("s_lshl_b32 s14, s4, 9"); a.i("s_add_u32 s43, s43, s14"); a.i(f"s_add_u32 s43, s43, {WS_PS}")
    srd(a, 36, 26, 27, 65536)
    a.i("v_and_b32 v10, 1, v3"); a.i("v_lshlrev_b32 v13, 10, v10"); a.i("v_lshl_add_u32 v13, v4, 3, v13")
    a.i("s_lshl_b32 s46, s6, 14"); a.i("s_lshl_b32 s14, s4, 11"); a.i("s_add_u32 s46, s46, s14"); a.i("s_lshl_b32 s14, s59, 7"); a.i("s_add_u32 s46, s46, s14")
    a.i("s_barrier")
    NP = opt.ppoll
    a.i("s_mov_b32 s14, 0x0c0c0400"); a.i("s_mov_b32 s15, 0x04000c0c")
    for k in range(4): a.i(f"s_add_u32 s{48+k}, s43, {k*32*4096}")
    def pissue(z):
        for k in range(4):
            a.i(f"buffer_load_dwordx4 {vr(16+16*z+4*k)}, v9, s[32:35], s{48+k} offen sc1")
    a.i("s_mov_b32 s45, 0")
    for z in range(NP):
        pissue(z)
        if z < NP - 1 and opt.psleep: a.i(f"s_sleep {opt.psleep}")
    a.label("L_B_pretry")
    for z in range(NP):
        R = 16 + 16*z
        a.i(f"s_waitcnt vmcnt({4*(NP-1)})")
        for k in range(4):
            d = 10 if k == 0 else 11
            a.i(f"v_perm_b32 v{d}, v{R+4*k+1}, v{R+4*k}, s14"); a.i(f"v_perm_b32 v12, v{R+4*k+3}, v{R+4*k+2}, s15")
            if k == 0:
                a.i("v_or_b32 v10, v10, v12"); a.i("v_xor_b32 v10, v10, v8")
            else:
                a.i("v_or_b32 v11, v11, v12"); a.i("v_xor_b32 v11, v11, v8"); a.i("v_or_b32 v10, v10, v11")
        a.i("v_cmp_ne_u32 vcc, 0, v10")
        a.i(f"s_cbranch_vccz L_B_pok{z}")
        pissue(z)
    a.i("s_add_u32 s45, s45, 1")
    a.i(f"s_cmp_le_u32 s45, {opt.spin_limit}")
    a.i("s_cbranch_scc1 L_B_pretry")
    a.i("s_waitcnt vmcnt(0)")
    for z in range(NP):
        R = 16 + 16*z
        a.label(f"L_B_pok{z}")
        for e in range(4):
            a.i(f"v_add_f32 v{80+e}, v{R+e}, v{R+4+e}"); a.i(f"v_add_f32 v{84+e}, v{R+8+e}, v{R+12+e}")
        if z < NP - 1: a.i("s_branch L_B_psum")
    a.label("L_B_psum")
    g.stamp(6, tail=6)
    R = 80
    for e in range(4): a.i(f"v_add_f32 v{R+e}, v{R+e}, v{R+4+e}")
    for e in range(4): a.i(f"v_mov_b32 v{R+4+e}, v{R+e}")
    for e in range(4): a.i(f"v_permlane32_swap_b32 v{R+e}, v{R+4+e}")
    for e in range(4): a.i(f"v_add_f32 v{R+e}, v{R+e}, v{R+4+e}")
    a.i(f"v_cvt_pk_bf16_f32 v{R+8}, v{R}, v{R+1}"); a.i(f"v_cvt_pk_bf16_f32 v{R+9}, v{R+2}, v{R+3}")
    a.i("s_mov_b32 exec_hi, 0")
    a.i(f"buffer_store_dwordx2 {vr(R+8,2)}, v13, s[36:39], s46 offen")
    a.i("s_or_b32 s14, s4, s7"); a.i("s_cmp_lg_u32 s14, 0"); a.i("s_cbranch_scc1 L_B_fin")
    a.i("s_mov_b64 exec, 1")
    a.i("s_lshl_b32 s14, s6, 7")
    a.i(f"buffer_store_dword v8, v5, s[32:35], s14 offen sc1")
    a.label("L_B_fin")
    a.i("s_mov_b64 exec, -1")
    if opt.stamps:
        a.i("s_waitcnt vmcnt(0)")
        a.i("s_memrealtime s[78:79]")
        emit_stamps(g, 8, 8, first=1)
    a.label("L_end"); a.i("s_endpgm")

    out = Asm()
    out(HEADER + f"; @launch grid=(256,1,1) block=(512,1,1) lds={L_END}")
    out('.amdgcn_target "amdgcn-amd-amdhsa--gfx950"\n.text')
    lines, n = hazard.fix(a.lines)
    out.lines += lines
    out('.section .rodata,"a"')
    out(kernel_desc(NAME, 256))
    return out.text(), n

def emit_stamps(g, slot0, n, first=0):
    a = g.a
    a.i("s_waitcnt lgkmcnt(0)")
    a.i(f"s_add_u32 s90, s30, {STAMPOFF}"); a.i("s_addc_u32 s91, s31, 0")
    a.i("s_lshl_b32 s14, s2, 7"); a.i("s_add_u32 s90, s90, s14"); a.i("s_addc_u32 s91, s91, 0")
    a.i("s_mov_b64 exec, 1")
    for k in range(first, n):
        a.i(f"v_mov_b32 v20, s{64+2*k}"); a.i(f"v_mov_b32 v21, s{65+2*k}")
        a.i(f"global_store_dwordx2 v5, v[20:21], s[90:91] offset:{(slot0+k-first)*8}")
        a.i("s_nop 1")
    a.i("s_mov_b64 exec, -1")

if __name__ == "__main__":
    o = Opt()
    out = sys.argv[1]
    for kv in sys.argv[2:]:
        k, v = kv.split("=")
        cur = getattr(o, k)
        if isinstance(cur, bool): v = v in ("1", "True", "true")
        elif isinstance(cur, int): v = int(v)
        else: v = v.replace("+", " ")
        setattr(o, k, v)
    t, n = gen(o)
    open(out, "w").write(t)
    print(out, "nops inserted:", n, "lines:", t.count("\n"))
```

```python
import sys, struct
from asmlib import *
import hazard

NAME = "standalone__sliding_block_cached__sampling_kernel"
def f2u(x): return struct.unpack('<I', struct.pack('<f', x))[0]
SCALE = 0.08838834764831845 * 1.4426950408889634

WS_XID = 0x8000
WS_OF = 0x9000
WS_QS = 0x10000
WS_ST = 0x200000
WS_OS = 0x300000
WS_PS = 0x500000
WS_SIZE = 0x800000
STAMPOFF = 256 << 20
TAGINC = 0x9E3779B9

L_K = 0
L_OR = 0
L_CR = 32768
L_QR = 131072
L_P = 131072
L_CNT = 147456
L_F = L_CNT + 64
L_Q = L_CNT + 512
L_END = L_Q + 4096
CQ, CKS, CV, CO, CC, CP, CF, CQ2, CKD, FASTW = 0, 4, 8, 12, 16, 20, 36, 40, 44, 60
CWP = CO

class Opt:
    stamps = False
    kv_flags = "nt"
    w_flags = "nt"
    x_flags = ""
    ld_flags = "sc1"
    spin_limit = 30000
    a_prio = 2
    b_prio_pv = 3
    rot = 1
    thr = 7
    wo_mode = 1
    wq_ahead = 2
    force_slow = 0
    bench = 0
    a_stop = 0
    oflag = 1
    k_flags = "same"
    v_flags = "same"
    cwpstamp = 0
    bpf = 0
    bpf_flags = ""
    wopf = 0
    ppoll = 3
    psleep = 6
    ptouch_flags = ""
    touch = 1
    regather = 0
    o_plain = 1
    dbgcnt = 0
    ntx = 4
    thr3 = 0
    pf = 0
    pf_flags = ""
    tstamps = 0
    wo_early = 2
    b_exit = 0
    wq_rowrot = 0
    wq_colxor = 0
    bstamps = 0
    stagger = 0
    thr_k = 0
    stag_bit = 0
    xid_tries = 4

def vr(b, n=4): return f"v[{b}:{b+n-1}]" if n > 1 else f"v{b}"

def srd(a, d, lo, hi, size, add=None):
    if add is None:
        a.i(f"s_mov_b32 s{d}, s{lo}"); a.i(f"s_mov_b32 s{d+1}, s{hi}")
    else:
        a.i(f"s_add_u32 s{d}, s{lo}, {add}"); a.i(f"s_addc_u32 s{d+1}, s{hi}, 0")
    a.i(f"s_mov_b32 s{d+2}, {size}"); a.i(f"s_mov_b32 s{d+3}, 0x20000")

class G:
    def __init__(self, opt):
        self.a = Asm(); self.o = opt; self.nl = 0
    def lab(self, p):
        self.nl += 1; return f"L{p}{self.nl}"
    def stamp(self, k, tail=None):
        if self.o.tstamps:
            if tail is None and k != 0: return
            if tail is not None: k = tail
            if k < 0: return
        elif tail is not None and k < 0: return
        if self.o.stamps:
            self.a.i(f"s_memrealtime s[{64+2*k}:{65+2*k}]")
    def signal(self, cnt, vaddr=1):
        a = self.a
        a.i("s_mov_b64 exec, 1")
        a.i(f"ds_add_u32 v{vaddr}, v6 offset:{cnt}")
        a.i("s_mov_b64 exec, -1")
    def wait_cnt(self, cnt, n, vt=10, vaddr=1, sleep=0):
        a = self.a
        L = self.lab("w")
        a.i("s_mov_b32 s15, 0")
        a.label(L)
        if sleep: a.i(f"s_sleep {sleep}")
        a.i(f"ds_read_b32 v{vt}, v{vaddr} offset:{cnt}")
        a.i("s_add_u32 s15, s15, 1")
        a.i("s_waitcnt lgkmcnt(0)")
        a.i(f"v_readfirstlane_b32 s14, v{vt}")
        a.i(f"s_cmp_gt_u32 s15, {self.o.spin_limit*16}")
        a.i(f"s_cbranch_scc1 {L}_o")
        a.i(f"s_cmp_ge_u32 s14, {n}")
        a.i(f"s_cbranch_scc0 {L}")
        a.label(f"{L}_o")
    def retry_tail(self, Lretry, Lok):
        a = self.a
        a.i("s_add_u32 s45, s45, 1")
        a.i(f"s_cmp_gt_u32 s45, {self.o.spin_limit}")
        a.i(f"s_cbranch_scc1 {Lok}")
        a.i(f"s_cbranch_vccnz {Lretry}")
        a.label(Lok)
    def store_var(self, ins):
        a = self.a; L = self.lab("s")
        a.i("s_cmp_eq_u32 s58, 1"); a.i(f"s_cbranch_scc1 {L}_f")
        a.i(ins + " sc1"); a.i(f"s_branch {L}_d")
        a.label(f"{L}_f"); a.i(ins); a.label(f"{L}_d")

def transpose4(a, dst, L):
    for e in range(4):
        w = e >> 1; sel = 's11' if (e & 1) == 0 else 's12'
        for p in range(4):
            a.i(f"v_perm_b32 v{dst+4*e+p}, v{L(2*p+1,w)}, v{L(2*p,w)}, {sel}")

def kvbase(a):
    a.i("s_lshr_b32 s14, s5, 1"); a.i("s_lshl_b32 s14, s14, 3"); a.i("s_add_u32 s14, s14, s4"); a.i("s_lshl_b32 s14, s14, 12")
    a.i("s_lshl_b32 s15, s9, 9"); a.i("s_add_u32 s14, s14, s15"); a.i("s_lshl_b32 s15, s3, 7"); a.i("s_add_u32 s14, s14, s15")
    a.i("s_add_u32 s14, s14, 3072"); a.i("s_lshl_b32 s14, s14, 8")

def astop(g, n):
    opt = g.o; a = g.a
    if opt.a_stop == n:
        for k in range(n + 1, 8): g.stamp(k)
        if opt.stamps:
            a.i("s_cmp_lg_u32 s3, 0"); a.i("s_cbranch_scc1 L_end")
            emit_stamps(g, 0, 8)
        a.i("s_branch L_end")

def gen(opt):
    g = G(opt); a = g.a
    kernel_begin(a, NAME)
    a.i("s_cmp_ge_u32 s2, 256"); a.i("s_cbranch_scc1 L_end")
    g.stamp(0)
    a.i("s_load_dwordx16 s[16:31], s[0:1], 0")
    a.i("v_lshrrev_b32 v1, 6, v0"); a.i("v_and_b32 v2, 63, v0")
    a.i("v_readfirstlane_b32 s3, v1")
    a.i("s_and_b32 s4, s2, 7")
    a.i("s_lshr_b32 s5, s2, 3")
    a.i("s_lshr_b32 s6, s5, 3")
    a.i("s_and_b32 s7, s5, 7")
    a.i(f"s_xor_b32 s59, s7, {opt.ntx}")
    a.i("s_bfe_u32 s8, s5, 0x20001")
    a.i("s_and_b32 s9, s5, 1")
    a.i("v_lshrrev_b32 v3, 4, v2"); a.i("v_and_b32 v4, 15, v2")
    a.i("v_mov_b32 v5, 0"); a.i("v_mov_b32 v6, 1")
    a.i(f"v_mov_b32 v1, {L_CNT}")
    a.i("s_mov_b32 s11, 0x05040100"); a.i("s_mov_b32 s12, 0x07060302")
    a.i("s_lshl_b32 s40, s4, 5"); a.i("s_add_u32 s41, s40, s5")
    a.i("s_and_b32 s42, s41, 0xfffffff8")
    a.i("s_cmp_lg_u32 s3, 0"); a.i("s_cbranch_scc1 L_P1")
    a.i("v_lshl_add_u32 v7, v2, 2, v1"); a.i("ds_write_b32 v7, v5 offset:0")
    a.label("L_P1")
    a.i("s_waitcnt lgkmcnt(0)")
    a.i("s_barrier")
    a.i("s_lshl_b32 s15, s6, 7")
    a.i("s_load_dword s10, s[30:31], s15")
    srd(a, 32, 30, 31, WS_SIZE)
    a.i("s_cmp_ge_u32 s3, 4"); a.i("s_cbranch_scc1 L_B")

    if opt.a_prio: a.i(f"s_setprio {opt.a_prio}")
    astop(g, 1) if opt.a_stop == 1 else None
    srd(a, 52, 16, 17, 65536)
    srd(a, 48, 22, 23, 4 << 20)
    XA, WB, T, ACC = 16, 32, 96, 128
    a.i("v_lshlrev_b32 v8, 10, v4"); a.i("v_lshl_add_u32 v8, v3, 4, v8")
    a.i("v_lshlrev_b32 v9, 16, v3"); a.i("v_lshl_add_u32 v9, v4, 3, v9")
    a.i("s_lshl_b32 s14, s6, 14"); a.i("s_lshl_b32 s15, s3, 8"); a.i("s_add_u32 s45, s14, s15")
    a.i("s_lshl_b32 s44, s3, 20"); a.i("s_lshl_b32 s14, s4, 10"); a.i("s_add_u32 s44, s44, s14"); a.i(f"s_xor_b32 s14, s7, {opt.wq_colxor}"); a.i("s_lshl_b32 s14, s14, 7"); a.i("s_add_u32 s44, s44, s14")
    a.i("s_lshl_b32 s47, s3, 15")
    def xidpub():
        a.i("s_getreg_b32 s57, hwreg(HW_REG_XCC_ID, 0, 4)")
        a.i("s_waitcnt lgkmcnt(0)")
        a.i(f"s_add_u32 s10, s10, {TAGINC:#x}")
        a.i("s_and_b32 s14, s10, 0xfffffff0"); a.i("s_or_b32 s14, s14, s57"); a.i("v_mov_b32 v144, s14")
        a.i("s_lshl_b32 s14, s41, 2"); a.i(f"s_add_u32 s14, s14, {WS_XID}")
        a.i("s_mov_b64 exec, 1")
        a.i("buffer_store_dword v144, v5, s[32:35], s14 offen")
        a.i("s_mov_b64 exec, -1")
    if opt.stagger: xidpub()
    if opt.stagger:
        a.i(f"s_bitcmp1_b32 s5, {opt.stag_bit}"); a.i("s_cbranch_scc0 L_A_nostag")
        g.wait_cnt(CKS, 4)
        a.label("L_A_nostag")
    if opt.pf:
        a.i("s_lshl_b32 s14, s6, 7"); a.i("s_lshl_b32 s15, s3, 5"); a.i("s_add_u32 s14, s14, s15"); a.i("s_lshl_b32 s14, s14, 13")
        a.i("s_lshl_b32 s15, s4, 10"); a.i("s_add_u32 s14, s14, s15"); a.i("s_lshl_b32 s15, s7, 7"); a.i("s_add_u32 s14, s14, s15")
        a.i("v_lshlrev_b32 v10, 13, v2")
        a.i("s_mov_b32 exec_hi, 0")
        a.i(f"buffer_load_dword v146, v10, s[48:51], s14 offen {opt.pf_flags}")
        a.i("s_lshl_b32 s14, s6, 14"); a.i("s_lshl_b32 s15, s7, 11"); a.i("s_add_u32 s14, s14, s15"); a.i("s_lshl_b32 s15, s3, 9"); a.i("s_add_u32 s14, s14, s15")
        a.i("v_lshlrev_b32 v10, 7, v2")
        a.i("s_mov_b64 exec, 0xf")
        a.i(f"buffer_load_dword v147, v10, s[52:55], s14 offen")
        a.i("s_mov_b64 exec, -1")
        if not opt.stagger: xidpub()
        a.i("s_waitcnt vmcnt(0)")
    if opt.bpf:
        xidpub()
        g.wait_cnt(CWP, 4)
        if opt.cwpstamp: g.stamp(1)
    seq = [('s', 0)] if ((opt.stagger or opt.bpf) and not opt.pf) else []
    def wqstep(s_):
        for i in range(8):
            a.i(f"buffer_load_dwordx2 {vr(WB+16*s_+2*i,2)}, v9, s[48:51], s44 offen {opt.w_flags}")
            a.i(f"s_add_u32 s44, s44, 8192")
            seq.append(('w', s_))
        if s_ < 3: a.i(f"s_add_u32 s44, s44, {24*8192}")
    wqstep(0)
    for s2 in range(4):
        a.i(f"buffer_load_dwordx4 {vr(XA+4*s2)}, v8, s[52:55], s45 offen offset:{s2*64} {opt.x_flags}")
        seq.append(('x', 0))
    a.i("s_lshl_b32 s46, s42, 2"); a.i(f"s_add_u32 s46, s46, {WS_XID}")
    a.i("v_lshlrev_b32 v145, 2, v2")
    def xidload():
        a.i("s_mov_b64 exec, 0xff")
        a.i("buffer_load_dword v146, v145, s[32:35], s46 offen sc1")
        a.i("s_mov_b64 exec, -1")
    issued = 1
    while issued < min(4, opt.wq_ahead):
        wqstep(issued); issued += 1
    if not opt.stagger and not opt.pf and not opt.bpf:
        xidpub(); seq.append(('s', 0))
    a.i("v_mov_b32 v8, s10")
    for s_ in range(4):
        last = max([i for i, e in enumerate(seq) if e == ('w', s_) or (s_ == 0 and e[0] == 'x') or (s_ == 2 and e[0] == 'i')])
        a.i(f"s_waitcnt vmcnt({len(seq)-1-last})")
        if s_ == 0:
            xidload(); seq.append(('i', 0))
            if opt.touch & 2:
                a.i("v_lshlrev_b32 v7, 4, v2")
                a.i("s_lshl_b32 s14, s41, 12"); a.i("s_lshl_b32 s15, s3, 10"); a.i("s_add_u32 s14, s14, s15"); a.i(f"s_add_u32 s14, s14, {WS_QS}")
                a.i("buffer_load_dwordx4 v[240:243], v7, s[32:35], s14 offen sc1"); seq.append(('t', 0))
                a.i("s_lshl_b32 s14, s41, 10"); a.i("s_lshl_b32 s15, s3, 8"); a.i("s_add_u32 s14, s14, s15"); a.i(f"s_add_u32 s14, s14, {WS_ST}")
                a.i("s_mov_b64 exec, 0xffff")
                a.i("buffer_load_dwordx4 v[244:247], v7, s[32:35], s14 offen sc1"); seq.append(('t', 0))
                a.i("s_mov_b64 exec, -1")
        if issued < 4:
            wqstep(issued); issued += 1
        if s_ == 0 and not opt.cwpstamp: g.stamp(1)
        if s_ == 2:
            a.i("s_mov_b32 s45, 0"); a.i("s_mov_b32 s58, 0")
            a.i("s_branch L_A_xchk")
            a.label("L_A_xretry")
            xidload()
            a.i("s_waitcnt vmcnt(0)")
            a.label("L_A_xchk")
            a.i("s_mov_b64 exec, 0xff")
            a.i("v_xor_b32 v147, v146, v8"); a.i("v_and_b32 v147, 0xfffffff0, v147"); a.i("v_cmp_ne_u32 vcc, 0, v147")
            a.i("s_mov_b64 exec, -1")
            a.i("s_cbranch_vccz L_A_xok")
            a.i("s_add_u32 s45, s45, 1")
            a.i(f"s_cmp_lt_u32 s45, {opt.xid_tries}")
            a.i("s_cbranch_scc1 L_A_xretry")
            a.i("s_branch L_A_xdone")
            a.label("L_A_xok")
            a.i("s_mov_b64 exec, 0xff")
            a.i("v_and_b32 v147, 15, v146"); a.i("v_cmp_ne_u32 vcc, s57, v147")
            a.i("s_mov_b64 exec, -1")
            a.i("s_cmp_eq_u64 vcc, 0"); a.i("s_cselect_b32 s58, 1, 0")
            a.label("L_A_xdone")
            if opt.force_slow: a.i("s_mov_b32 s58, 0")
            for r in range(4): a.i(f"v_mov_b32 v{148+r}, -1")
            a.i("v_lshlrev_b32 v7, 4, v2")
            a.i("s_lshl_b32 s43, s41, 12"); a.i("s_lshl_b32 s14, s3, 10"); a.i("s_add_u32 s43, s43, s14"); a.i(f"s_add_u32 s46, s43, {WS_OS}")
            g.store_var("buffer_store_dwordx4 v[148:151], v7, s[32:35], s46 offen"); seq.append(('p', 0))
        tb = T + (s_ & 1) * 16
        transpose4(a, tb, lambda i, w: WB + 16*s_ + 2*i + w)
        for e in range(4):
            c = "0" if s_ == 0 else vr(ACC+4*e)
            a.i(f"v_mfma_f32_16x16x32_bf16 {vr(ACC+4*e)}, {vr(XA+4*s_)}, {vr(tb+4*e)}, {c}")
    a.i("v_lshlrev_b32 v9, 2, v2"); a.i("s_lshl_b32 s14, s3, 10"); a.i(f"s_add_u32 s14, s14, {L_QR}"); a.i("v_add_u32 v7, s14, v9")
    for r in range(4):
        for e in range(0, 4, 2):
            a.i(f"ds_write2st64_b32 v7, v{ACC+4*e+r}, v{ACC+4*(e+1)+r} offset0:{r*16+e} offset1:{r*16+e+1}")
    a.i("v_mov_b32 v10, s58"); a.i(f"ds_write_b32 v1, v10 offset:{FASTW}")
    a.i("s_waitcnt lgkmcnt(0)")
    g.signal(CQ)
    g.wait_cnt(CQ, 4)
    a.i("s_lshl_b32 s14, s3, 12"); a.i(f"s_add_u32 s14, s14, {L_QR}"); a.i("v_add_u32 v7, s14, v9")
    R = 152
    for src in range(4):
        for e in range(0, 4, 2):
            a.i(f"ds_read2st64_b32 {vr(R+4*src+e,2)}, v7 offset0:{src*4+e} offset1:{src*4+e+1}")
    a.i("v_lshlrev_b32 v9, 10, v3"); a.i("v_and_b32 v10, 1, v4"); a.i("v_lshl_add_u32 v9, v10, 9, v9")
    a.i("v_lshrrev_b32 v10, 3, v4"); a.i("v_lshl_add_u32 v9, v10, 8, v9"); a.i("v_bfe_u32 v10, v4, 1, 2"); a.i("v_lshl_add_u32 v9, v10, 4, v9")
    a.i("s_lshl_b32 s43, s41, 12"); a.i("s_lshl_b32 s14, s3, 6"); a.i("s_add_u32 s43, s43, s14"); a.i(f"s_add_u32 s43, s43, {WS_QS}")
    a.i("s_waitcnt lgkmcnt(0)")
    for e in range(4):
        a.i(f"v_add_f32 v{R+e}, v{R+e}, v{R+4+e}"); a.i(f"v_add_f32 v{R+8+e}, v{R+8+e}, v{R+12+e}")
    for e in range(4): a.i(f"v_add_f32 v{R+e}, v{R+e}, v{R+8+e}")
    a.i(f"v_cvt_pk_bf16_f32 v{R+4}, v{R}, v{R+1}"); a.i(f"v_cvt_pk_bf16_f32 v{R+5}, v{R+2}, v{R+3}")
    a.i(f"v_perm_b32 v{R+8}, v{R+4}, v8, s11"); a.i(f"v_perm_b32 v{R+9}, v{R+4}, v8, s12")
    a.i(f"v_perm_b32 v{R+10}, v{R+5}, v8, s11"); a.i(f"v_perm_b32 v{R+11}, v{R+5}, v8, s12")
    a.i("s_waitcnt vmcnt(0)")
    if opt.touch & 1:
        a.i("v_lshlrev_b32 v7, 4, v2")
        a.i("buffer_load_dwordx4 v[248:251], v7, s[32:35], s46 offen sc1")
    if opt.touch & 4:
        a.i("v_lshlrev_b32 v7, 4, v2")
        a.i("s_lshl_b32 s14, s41, 12"); a.i("s_lshl_b32 s15, s3, 10"); a.i("s_add_u32 s14, s14, s15"); a.i(f"s_add_u32 s14, s14, {WS_PS}")
        a.i(f"buffer_load_dwordx4 v[252:255], v7, s[32:35], s14 offen {opt.ptouch_flags}")
    g.store_var(f"buffer_store_dwordx4 {vr(R+8)}, v9, s[32:35], s43 offen")
    g.stamp(2)
    astop(g, 2)
    QR = 176
    a.i("v_lshrrev_b32 v9, 2, v4"); a.i("v_lshlrev_b32 v9, 13, v9"); a.i("v_and_b32 v10, 3, v4"); a.i("v_lshl_add_u32 v9, v10, 6, v9"); a.i("v_lshl_add_u32 v9, v3, 4, v9")
    a.i("s_lshl_b32 s43, s42, 12"); a.i("s_lshl_b32 s14, s8, 10"); a.i("s_add_u32 s43, s43, s14"); a.i(f"s_add_u32 s43, s43, {WS_QS}")
    a.i("s_lshr_b32 s14, s3, 1"); a.i("s_lshl_b32 s14, s14, 12"); a.i("s_add_u32 s43, s43, s14")
    a.i("s_and_b32 s14, s3, 1"); a.i("s_lshl_b32 s14, s14, 8"); a.i("s_add_u32 s43, s43, s14")
    a.i("s_mov_b32 s45, 0")
    a.label("L_A_qretry")
    for u in range(2):
        a.i(f"buffer_load_dwordx4 {vr(QR+4*u)}, v9, s[32:35], s43 offen offset:{u*512} {opt.ld_flags}")
    a.i("v_mov_b32 v10, 0")
    a.i("s_waitcnt vmcnt(0)")
    for k in range(4):
        a.i(f"v_perm_b32 v11, v{QR+2*k+1}, v{QR+2*k}, s11")
        a.i(f"v_xor_b32 v11, v11, v8")
        a.i(f"v_or_b32 v10, v10, v11")
    a.i("v_cmp_ne_u32 vcc, 0, v10")
    g.retry_tail("L_A_qretry", "L_A_qok")
    for k in range(4):
        a.i(f"v_perm_b32 v{QR+8+k}, v{QR+2*k+1}, v{QR+2*k}, s12")
    a.i("v_lshlrev_b32 v9, 4, v2"); a.i("s_lshl_b32 s14, s3, 10"); a.i(f"s_add_u32 s14, s14, {L_Q}"); a.i("v_add_u32 v10, s14, v9")
    a.i(f"ds_write_b128 v10, {vr(QR+8)}")
    for st in range(4):
        a.i(f"v_add_u32 v10, {4*st}, v3"); a.i("v_xor_b32 v10, v10, v4"); a.i("v_lshlrev_b32 v10, 4, v10"); a.i("v_lshl_add_u32 v10, v4, 8, v10"); a.i(f"v_add_u32 v{12+st}, s47, v10")
    a.i("s_waitcnt lgkmcnt(0)")
    g.signal(CQ2)
    g.stamp(3)
    astop(g, 3)
    WR, WF = 32, 96
    srd(a, 48, 24, 25, 4 << 20)
    a.i("v_lshlrev_b32 v16, 15, v3"); a.i("v_lshl_add_u32 v16, v4, 3, v16")
    a.i("s_lshl_b32 s46, s4, 2"); a.i("s_add_u32 s46, s46, s3"); a.i("s_lshl_b32 s46, s46, 17"); a.i("s_lshl_b32 s15, s59, 7"); a.i("s_add_u32 s46, s46, s15")
    def wostep(st):
        for i in range(8):
            if i % 4 == 0 and (st or i): a.i("s_add_u32 s46, s46, 4096")
            a.i(f"buffer_load_dwordx2 {vr(WR+16*st+2*i,2)}, v16, s[48:51], s46 offen offset:{(i&3)*1024} {opt.w_flags}")
    KB = [96, 128]; QF = 160; SA = 192; PF = 224; ST = 240
    def kread(p):
        for tt in range(2):
            for st in range(4):
                a.i(f"ds_read_b128 {vr(KB[p&1]+16*tt+4*st)}, v{12+st} offset:{(2*p+tt)*4096}")
    g.wait_cnt(CQ2, 4)
    a.i(f"v_add_u32 v10, {L_Q}, v9")
    for st in range(4): a.i(f"ds_read_b128 {vr(QF+4*st)}, v10 offset:{st*1024}")
    a.i("s_lshl_b32 s14, s3, 2"); a.i("v_add_u32 v7, s14, v1")
    g.wait_cnt(CKD, 1, vaddr=7)
    kread(0); kread(1)
    for p in range(4):
        a.i(f"s_waitcnt lgkmcnt({8 if p < 3 else 0})")
        for tt in range(2):
            t = 2*p + tt
            for st in range(4):
                c = "0" if st == 0 else vr(SA+4*t)
                a.i(f"v_mfma_f32_16x16x32_bf16 {vr(SA+4*t)}, {vr(KB[p&1]+16*tt+4*st)}, {vr(QF+4*st)}, {c}")
        if p + 2 < 4: kread(p + 2)
    a.i(f"s_mov_b32 s13, {f2u(SCALE):#x}")
    a.i(f"v_max3_f32 v10, v{SA}, v{SA+1}, v{SA+2}")
    for r in range(3, 31, 2): a.i(f"v_max3_f32 v10, v10, v{SA+r}, v{SA+r+1}")
    a.i(f"v_max_f32 v10, v10, v{SA+31}")
    a.i("v_mov_b32 v11, v10"); a.i("v_permlane16_swap_b32 v10, v11"); a.i("v_max_f32 v10, v10, v11")
    a.i("v_mov_b32 v11, v10"); a.i("v_permlane32_swap_b32 v10, v11"); a.i("v_max_f32 v10, v10, v11")
    a.i("v_mul_f32 v12, s13, v10")
    for r in range(32): a.i(f"v_fma_f32 v{SA+r}, v{SA+r}, s13, -v12")
    for r in range(32): a.i(f"v_exp_f32 v{SA+r}, v{SA+r}")
    for k in range(16): a.i(f"v_cvt_pk_bf16_f32 v{PF+k}, v{SA+2*k}, v{SA+2*k+1}")
    a.i("v_lshlrev_b32 v9, 4, v2"); a.i("s_lshl_b32 s14, s3, 12"); a.i(f"s_add_u32 s14, s14, {L_P}"); a.i("v_add_u32 v9, s14, v9")
    for u in range(4): a.i(f"ds_write_b128 v9, {vr(PF+4*u)} offset:{u*1024}")
    a.i(f"v_add_f32 v10, v{SA}, v{SA+1}"); a.i(f"v_add_f32 v11, v{SA+2}, v{SA+3}")
    for r in range(4, 32, 2):
        a.i(f"v_add_f32 v10, v10, v{SA+r}"); a.i(f"v_add_f32 v11, v11, v{SA+r+1}")
    a.i("s_waitcnt lgkmcnt(0)")
    g.signal(CP, vaddr=7)
    a.i("v_add_f32 v10, v10, v11")
    a.i("v_mov_b32 v11, v10"); a.i("v_permlane16_swap_b32 v10, v11"); a.i("v_add_f32 v10, v10, v11")
    a.i("v_mov_b32 v11, v10"); a.i("v_permlane32_swap_b32 v10, v11"); a.i("v_add_f32 v13, v10, v11")
    a.i("v_mov_b32 v14, v8"); a.i("v_mov_b32 v15, v8")
    a.i("s_lshl_b32 s43, s41, 10"); a.i("s_lshl_b32 s14, s3, 8"); a.i("s_add_u32 s43, s43, s14"); a.i(f"s_add_u32 s43, s43, {WS_ST}")
    a.i("v_lshlrev_b32 v9, 4, v4")
    a.i("s_mov_b64 exec, 0xffff")
    g.store_var("buffer_store_dwordx4 v[12:15], v9, s[32:35], s43 offen")
    a.i("s_mov_b64 exec, -1")
    g.stamp(4)
    if opt.pf:
        a.i("s_lshl_b32 s14, s4, 9"); a.i("s_lshl_b32 s15, s6, 7"); a.i("s_add_u32 s14, s14, s15"); a.i("s_lshl_b32 s15, s3, 5"); a.i("s_add_u32 s14, s14, s15"); a.i("s_lshl_b32 s14, s14, 10")
        a.i("s_lshl_b32 s15, s7, 7"); a.i("s_add_u32 s14, s14, s15")
        a.i("v_lshlrev_b32 v10, 10, v2")
        a.i("s_mov_b32 exec_hi, 0")
        a.i(f"buffer_load_dword v17, v10, s[48:51], s14 offen {opt.pf_flags}")
        a.i("s_mov_b64 exec, -1")
    a.i("s_and_b32 s43, s41, 0xfffffffe"); a.i("s_lshl_b32 s43, s43, 10"); a.i(f"s_add_u32 s43, s43, {WS_ST}")
    a.i("v_lshl_add_u32 v9, v3, 9, v9")
    a.i("s_mov_b32 s45, 0")
    a.label("L_A_sretry")
    a.i(f"buffer_load_dwordx4 {vr(ST)}, v9, s[32:35], s43 offen {opt.ld_flags}")
    a.i(f"buffer_load_dwordx4 {vr(ST+4)}, v9, s[32:35], s43 offen offset:256 {opt.ld_flags}")
    a.i("s_waitcnt vmcnt(0)")
    a.i(f"v_xor_b32 v10, v{ST+2}, v8"); a.i(f"v_xor_b32 v11, v{ST+3}, v8"); a.i("v_or_b32 v10, v10, v11")
    a.i(f"v_xor_b32 v11, v{ST+6}, v8"); a.i("v_or_b32 v10, v10, v11"); a.i(f"v_xor_b32 v11, v{ST+7}, v8"); a.i("v_or_b32 v10, v10, v11")
    a.i("v_cmp_ne_u32 vcc, 0, v10")
    g.retry_tail("L_A_sretry", "L_A_sok")
    a.i(f"v_max_f32 v10, v{ST}, v{ST+4}")
    a.i("v_mov_b32 v11, v10"); a.i("v_permlane16_swap_b32 v10, v11"); a.i("v_max_f32 v10, v10, v11")
    a.i("v_mov_b32 v11, v10"); a.i("v_permlane32_swap_b32 v10, v11"); a.i("v_max_f32 v10, v10, v11")
    a.i(f"v_sub_f32 v{ST}, v{ST}, v10"); a.i(f"v_sub_f32 v{ST+4}, v{ST+4}, v10")
    a.i(f"v_exp_f32 v{ST}, v{ST}"); a.i(f"v_exp_f32 v{ST+4}, v{ST+4}")
    a.i(f"v_mul_f32 v{ST+1}, v{ST+1}, v{ST}"); a.i(f"v_fmac_f32 v{ST+1}, v{ST+5}, v{ST+4}")
    a.i(f"v_mov_b32 v11, v{ST+1}"); a.i(f"v_permlane16_swap_b32 v{ST+1}, v11"); a.i(f"v_add_f32 v{ST+1}, v{ST+1}, v11")
    a.i(f"v_mov_b32 v11, v{ST+1}"); a.i(f"v_permlane32_swap_b32 v{ST+1}, v11"); a.i(f"v_add_f32 v11, v{ST+1}, v11")
    a.i("v_sub_f32 v12, v12, v10"); a.i("v_exp_f32 v12, v12"); a.i("v_rcp_f32 v11, v11"); a.i("v_mul_f32 v12, v12, v11")
    a.i("v_lshlrev_b32 v9, 2, v4"); a.i("s_lshl_b32 s14, s3, 6"); a.i(f"s_add_u32 s14, s14, {L_F}"); a.i("v_add_u32 v9, s14, v9")
    a.i("ds_write_b32 v9, v12")
    a.i("s_waitcnt lgkmcnt(0)")
    g.signal(CF)
    for st in range(opt.wo_early): wostep(st)
    if opt.wo_early < 4:
        g.wait_cnt(CV, 4)
        for st in range(opt.wo_early, 4): wostep(st)
    OG, CA = 192, 176
    a.i("v_add_u32 v10, s3, v4"); a.i("v_and_b32 v10, 3, v10")
    a.i("v_lshrrev_b32 v9, 2, v4"); a.i("v_lshlrev_b32 v9, 13, v9"); a.i("v_lshl_add_u32 v9, v10, 6, v9"); a.i("v_lshl_add_u32 v9, v3, 4, v9")
    a.i("s_lshl_b32 s43, s42, 12"); a.i("s_lshl_b32 s14, s3, 10"); a.i("s_add_u32 s43, s43, s14"); a.i(f"s_add_u32 s43, s43, {WS_OS}")
    a.i("s_add_u32 s44, s43, 4096")
    a.i("s_lshl_b32 s46, s42, 4"); a.i(f"s_add_u32 s46, s46, {WS_OF}")
    a.i("v_lshlrev_b32 v7, 2, v2")
    for r in range(1, 4):
        a.i(f"s_add_u32 s14, s3, {r}"); a.i("s_and_b32 s14, s14, 3"); a.i("s_lshl_b32 s14, s14, 12"); a.i(f"s_add_u32 s14, s14, {L_CR + (r-1)*1024}"); a.i(f"v_add_u32 v{12+r}, s14, v7")
    a.i("s_lshl_b32 s14, s3, 12"); a.i(f"s_add_u32 s14, s14, {L_CR}"); a.i("v_add_u32 v12, s14, v7")
    a.i("v_lshlrev_b32 v17, 10, v3"); a.i("v_lshl_add_u32 v17, v4, 4, v17")
    a.i("s_lshl_b32 s47, s41, 12"); a.i("s_lshl_b32 s14, s3, 8"); a.i("s_add_u32 s47, s47, s14"); a.i(f"s_add_u32 s47, s47, {WS_PS}")
    for e in range(4): a.i(f"s_mov_b32 s{60+e}, {0x07060500+e:#x}")
    for st in range(opt.wo_early):
        a.i(f"s_waitcnt vmcnt({8*(3-st)})")
        transpose4(a, WF+16*st, lambda i, w: WR + 16*st + 2*i + w)
    a.i("s_barrier")
    g.stamp(-1, tail=1)
    for st in range(opt.wo_early, 4):
        a.i(f"s_waitcnt vmcnt({8*(3-st)})")
        transpose4(a, WF+16*st, lambda i, w: WR + 16*st + 2*i + w)
    g.stamp(5, tail=2)
    a.i("s_mov_b32 s45, 0")
    a.label("L_A_fretry")
    a.i("s_mov_b32 exec_hi, 0")
    a.i(f"buffer_load_dword v10, v7, s[32:35], s46 offen {opt.ld_flags}")
    a.i("s_waitcnt vmcnt(0)")
    a.i("v_cmp_ne_u32 vcc, v10, v8")
    a.i("s_mov_b64 exec, -1")
    g.retry_tail("L_A_fretry", "L_A_fok")
    g.stamp(-1, tail=3)
    if opt.dbgcnt: a.i("s_mov_b32 s92, s45")
    a.i("s_mov_b32 s45, 0")
    def ogather(fl):
        for sp in range(2):
            for st in range(4):
                a.i(f"buffer_load_dwordx4 {vr(OG+16*sp+4*st)}, v9, s[32:35], {'s43' if sp == 0 else 's44'} offen offset:{st*256} {fl}")
    if opt.o_plain:
        a.i("s_cmp_eq_u32 s58, 1"); a.i("s_cbranch_scc0 L_A_oretry")
        ogather("")
        a.i("s_branch L_A_ogo")
    a.label("L_A_oretry")
    ogather(opt.ld_flags)
    a.label("L_A_ogo")
    k = 0
    for sp in range(2):
        for st in range(4):
            a.i(f"s_waitcnt vmcnt({7-k})")
            for e in range(4):
                c = "0" if k == 0 else vr(CA+4*e)
                a.i(f"v_mfma_f32_16x16x32_bf16 {vr(CA+4*e)}, {vr(OG+16*sp+4*st)}, {vr(WF+16*st+4*e)}, {c}")
            b = OG+16*sp+4*st
            if k == 0: a.i(f"v_max3_u32 v10, v{b}, v{b+1}, v{b+2}"); a.i(f"v_max_u32 v10, v10, v{b+3}")
            else: a.i(f"v_max3_u32 v10, v10, v{b}, v{b+1}"); a.i(f"v_max3_u32 v10, v10, v{b+2}, v{b+3}")
            k += 1
    a.i("v_cmp_eq_u32 vcc, -1, v10")
    g.retry_tail("L_A_oretry", "L_A_ook")
    g.stamp(6, tail=4)
    if opt.regather:
        ogather("sc1")
        a.i("s_waitcnt vmcnt(0)")
        g.stamp(-1, tail=5)
    if opt.dbgcnt:
        a.i("s_mov_b64 exec, 1")
        a.i("v_mov_b32 v18, s45"); a.i("v_mov_b32 v19, s92")
        a.i("global_atomic_add v5, v18, s[28:29]"); a.i("global_atomic_add v5, v19, s[28:29] offset:4")
        a.i("global_atomic_add v5, v6, s[28:29] offset:8")
        a.i("s_mov_b64 exec, -1")
    for r in range(1, 4):
        for e in range(0, 4, 2):
            a.i(f"ds_write2st64_b32 v{12+r}, v{CA+4*e+r}, v{CA+4*(e+1)+r} offset0:{e} offset1:{e+1}")
    a.i("s_waitcnt lgkmcnt(0)")
    a.i("s_barrier")
    if not opt.regather: g.stamp(-1, tail=5)
    R = 20
    for slot in range(3):
        for e in range(0, 4, 2):
            a.i(f"ds_read2st64_b32 {vr(R+4*slot+e,2)}, v12 offset0:{slot*4+e} offset1:{slot*4+e+1}")
    a.i("s_waitcnt lgkmcnt(0)")
    for e in range(4):
        a.i(f"v_add_f32 v{R+e}, v{R+e}, v{R+4+e}"); a.i(f"v_add_f32 v{R+8+e}, v{R+8+e}, v{CA+4*e}")
    for e in range(4): a.i(f"v_add_f32 v{R+e}, v{R+e}, v{R+8+e}")
    for e in range(4): a.i(f"v_perm_b32 v{R+12+e}, v{R+e}, v8, s{60+e}")
    a.i(f"buffer_store_dwordx4 {vr(R+12)}, v17, s[32:35], s47 offen sc1")
    g.stamp(7, tail=6)
    if opt.tstamps:
        a.i("s_waitcnt vmcnt(0)")
        g.stamp(-1, tail=7)
    if opt.stamps:
        a.i("s_cmp_lg_u32 s3, 0"); a.i("s_cbranch_scc1 L_end")
        emit_stamps(g, 0, 8)
    a.i("s_branch L_end")

    a.label("L_B")
    a.i("s_sub_u32 s3, s3, 4")
    if opt.b_exit:
        for k in range(1, 8): g.stamp(k)
        a.i("s_cmp_lg_u32 s3, 0"); a.i("s_cbranch_scc1 L_end")
        emit_stamps(g, 8, 8, first=1)
        a.i("s_branch L_end")
    VF, PF2, T2, OA = 16, 144, 160, 192
    kvbase(a)
    srd(a, 48, 18, 19, 128*256, add="s14")
    srd(a, 36, 20, 21, 128*256, add="s14")
    if opt.rot:
        a.i("s_add_u32 s56, s5, s3"); a.i("s_and_b32 s56, s56, 7"); a.i("s_lshl_b32 s56, s56, 12")
    else:
        a.i("s_mov_b32 s56, 0")
    for n in range(4):
        a.i(f"v_add_u32 v10, {4*n}, v3"); a.i("v_xor_b32 v10, v10, v4"); a.i("v_lshlrev_b32 v10, 4, v10"); a.i(f"v_lshl_add_u32 v{12+n}, v3, 8, v10")
    a.i("s_lshl_b32 s47, s3, 15")
    if opt.bpf:
        srd(a, 52, 22, 23, 4 << 20)
        srd(a, 60, 16, 17, 65536)
        a.i("v_lshlrev_b32 v8, 4, v2")
        a.i("s_lshl_b32 s14, s5, 4"); a.i("s_lshl_b32 s15, s3, 2"); a.i("s_add_u32 s14, s14, s15"); a.i("s_lshl_b32 s14, s14, 13"); a.i("s_lshl_b32 s15, s4, 10"); a.i("s_add_u32 s14, s14, s15")
        for k in range(4):
            a.i(f"buffer_load_dwordx4 {vr(16+4*k)}, v8, s[52:55], s14 offen {opt.bpf_flags}")
            if k < 3: a.i("s_add_u32 s14, s14, 8192")
        a.i("s_lshl_b32 s14, s5, 1"); a.i("s_and_b32 s15, s3, 1"); a.i("s_add_u32 s14, s14, s15"); a.i("s_lshl_b32 s14, s14, 10")
        a.i(f"buffer_load_dwordx4 {vr(32)}, v8, s[60:63], s14 offen")
    NPF = 5 if opt.bpf else 0
    def stream(TH, THK):
        cnt = [NPF]
        pfsig = [not opt.bpf]
        def throttle():
            th = THK if (THK and cnt[0] < 32 + NPF) else TH
            if cnt[0] >= th: a.i(f"s_waitcnt vmcnt({th-1})")
            if not pfsig[0] and cnt[0] - th >= NPF - 1:
                g.signal(CWP); pfsig[0] = True
            cnt[0] += 1
        for t in range(8):
            a.i(f"s_add_u32 s14, s47, {t*4096}"); a.i("s_mov_b32 m0, s14"); a.i(f"s_xor_b32 s14, s56, {t*4096}")
            for n in range(4):
                throttle()
                a.i(f"buffer_load_dwordx4 v{12+n}, s[48:51], s14 offen offset:{n*1024} {opt.kv_flags if opt.k_flags == 'same' else opt.k_flags} lds")
            if t == 0:
                a.i("v_add_u32 v7, s3, v4"); a.i("v_and_b32 v7, 3, v7"); a.i("v_and_b32 v10, 12, v4"); a.i("v_or_b32 v7, v7, v10")
                a.i("v_lshlrev_b32 v7, 4, v7"); a.i("v_lshl_add_u32 v7, v3, 10, v7")
                a.i("s_lshl_b32 s15, s3, 2"); a.i("v_add_u32 v11, s15, v1")
            if opt.stagger and t == opt.stagger - 1: g.signal(CKS)
            if opt.bstamps and t in (1, 3, 5, 7): g.stamp(1 + t // 2)
        if not opt.bstamps: g.stamp(1)
        signaled = False
        for u in range(4):
            for i in range(8):
                if i % 4 == 0: a.i(f"s_xor_b32 s14, s56, {u*8192 + (i>>2)*4096}")
                throttle()
                n = cnt[0] - 1 - NPF
                if opt.wopf and u == opt.wopf - 1 and i == 0:
                    pass
                if not signaled and n - TH >= 31:
                    g.signal(CKD, vaddr=11)
                    signaled = True
                a.i(f"buffer_load_dwordx4 {vr(VF+32*u+4*i)}, v7, s[36:39], s14 offen offset:{(i&3)*256} {opt.kv_flags if opt.v_flags == 'same' else opt.v_flags}")
            if opt.bstamps and u in (0, 1, 3): g.stamp({0: 5, 1: 6, 3: 7}[u])
        assert signaled
    if opt.thr3:
        a.i("s_cmp_eq_u32 s7, 3"); a.i("s_cbranch_scc1 L_B_s3")
        stream(opt.thr, opt.thr_k)
        a.i("s_branch L_B_sdone")
        a.label("L_B_s3")
        stream(opt.thr3, opt.thr3)
        a.label("L_B_sdone")
    else:
        stream(opt.thr, opt.thr_k)
    g.signal(CV)
    if opt.bstamps:
        a.i("s_waitcnt vmcnt(0)")
        a.i("s_cmp_lg_u32 s3, 0"); a.i("s_cbranch_scc1 L_end")
        emit_stamps(g, 8, 8, first=1)
        a.i("s_branch L_end")
    g.stamp(2, tail=1)
    if opt.bench:
        a.i("s_waitcnt vmcnt(0)")
        for k in range(3, 8): g.stamp(k)
        a.i("s_cmp_lg_u32 s3, 0"); a.i("s_cbranch_scc1 L_end")
        emit_stamps(g, 8, 8, first=1)
        a.i("s_branch L_end")
    g.wait_cnt(CP, 1, vaddr=11)
    a.i("v_lshlrev_b32 v9, 4, v2"); a.i("s_lshl_b32 s14, s3, 12"); a.i(f"s_add_u32 s14, s14, {L_P}"); a.i("v_add_u32 v9, s14, v9")
    for u in range(4): a.i(f"ds_read_b128 {vr(PF2+4*u)}, v9 offset:{u*1024}")
    a.i(f"ds_read_b32 v10, v1 offset:{FASTW}")
    a.i("s_waitcnt lgkmcnt(0)")
    a.i(f"s_add_u32 s10, s10, {TAGINC:#x}")
    a.i("v_mov_b32 v8, s10")
    a.i("v_readfirstlane_b32 s58, v10")
    g.stamp(3, tail=2)
    if opt.b_prio_pv: a.i(f"s_setprio {opt.b_prio_pv}")
    for u in range(4):
        L = lambda i, w: VF + 32*u + 4*i + w
        if u < 3:
            a.i(f"s_waitcnt vmcnt({(3-u)*8})")
            for e in range(8):
                w = e >> 1; sel = 's11' if (e & 1) == 0 else 's12'
                for p in range(4):
                    a.i(f"v_perm_b32 v{T2+4*e+p}, v{L(2*p+1,w)}, v{L(2*p,w)}, {sel}")
        else:
            for p in range(4):
                a.i(f"s_waitcnt vmcnt({6-2*p})")
                for e in range(8):
                    w = e >> 1; sel = 's11' if (e & 1) == 0 else 's12'
                    a.i(f"v_perm_b32 v{T2+4*e+p}, v{L(2*p+1,w)}, v{L(2*p,w)}, {sel}")
        for e in range(8):
            c = "0" if u == 0 else vr(OA+4*e)
            a.i(f"v_mfma_f32_16x16x32_bf16 {vr(OA+4*e)}, {vr(T2+4*e)}, {vr(PF2+4*u)}, {c}")
        if u == 2:
            g.wait_cnt(CF, 4)
            for k in range(4):
                a.i(f"s_sub_u32 s14, s3, {k}"); a.i("s_and_b32 s14, s14, 3"); a.i("s_lshl_b32 s14, s14, 6"); a.i(f"s_add_u32 s14, s14, {L_F}")
                a.i(f"v_lshl_add_u32 v10, v4, 2, s14"); a.i(f"ds_read_b32 v{148+k}, v10")
            a.i("v_lshrrev_b32 v12, 2, v4"); a.i("v_lshlrev_b32 v12, 10, v12"); a.i("v_and_b32 v10, 3, v4"); a.i("v_lshl_add_u32 v12, v10, 6, v12"); a.i("v_lshl_add_u32 v12, v3, 4, v12")
            a.i("s_lshl_b32 s43, s41, 12"); a.i("s_lshl_b32 s14, s3, 8"); a.i("s_add_u32 s43, s43, s14"); a.i(f"s_add_u32 s43, s43, {WS_OS}")
            a.i("s_lshl_b32 s44, s41, 4"); a.i("s_lshl_b32 s14, s3, 2"); a.i("s_add_u32 s44, s44, s14"); a.i(f"s_add_u32 s44, s44, {WS_OF}")
            a.i("v_lshlrev_b32 v9, 2, v2")
            for r in range(1, 4):
                a.i(f"s_add_u32 s14, s3, {r}"); a.i("s_and_b32 s14, s14, 3"); a.i("s_lshl_b32 s14, s14, 13"); a.i(f"s_add_u32 s14, s14, {L_OR + (r-1)*2048}"); a.i(f"v_add_u32 v{12+r}, s14, v9")
            a.i("s_lshl_b32 s14, s3, 13"); a.i(f"s_add_u32 s14, s14, {L_OR}"); a.i("v_add_u32 v7, s14, v9")
    g.stamp(4, tail=3)
    for r in range(1, 4):
        for e in range(0, 8, 2):
            a.i(f"ds_write2st64_b32 v{12+r}, v{OA+4*e+r}, v{OA+4*(e+1)+r} offset0:{e} offset1:{e+1}")
    a.i("s_waitcnt lgkmcnt(0)")
    a.i("s_barrier")
    g.stamp(-1, tail=4)
    R = 16
    for slot in range(3):
        for e in range(0, 8, 2):
            a.i(f"ds_read2st64_b32 {vr(R+8*slot+e,2)}, v7 offset0:{slot*8+e} offset1:{slot*8+e+1}")
    FR = 148
    for e in range(8): a.i(f"v_mul_f32 v{OA+4*e}, v{OA+4*e}, v{FR}")
    for slot in range(3):
        a.i(f"s_waitcnt lgkmcnt({4*(2-slot)})")
        for e in range(8): a.i(f"v_fmac_f32 v{OA+4*e}, v{R+8*slot+e}, v{FR+1+slot}")
    for p in range(4): a.i(f"v_cvt_pk_bf16_f32 v{R+32+p}, v{OA+8*p}, v{OA+8*p+4}")
    g.store_var(f"buffer_store_dwordx4 {vr(R+32)}, v12, s[32:35], s43 offen")
    a.i("s_mov_b64 exec, 1")
    g.store_var("buffer_store_dword v8, v5, s[32:35], s44 offen")
    a.i("s_mov_b64 exec, -1")
    g.stamp(5, tail=5)
    a.i("s_cmp_lg_u32 s3, 0"); a.i("s_cbranch_scc1 L_end")
    a.i("v_lshrrev_b32 v9, 5, v2"); a.i("v_lshlrev_b32 v9, 19, v9")
    a.i("v_and_b32 v10, 1, v3"); a.i("v_lshl_add_u32 v9, v10, 8, v9"); a.i("v_lshl_add_u32 v9, v4, 4, v9")
    a.i("s_lshl_b32 s43, s5, 12"); a.i("s_lshl_b32 s14, s4, 9"); a.i("s_add_u32 s43, s43, s14"); a.i(f"s_add_u32 s43, s43, {WS_PS}")
    srd(a, 36, 26, 27, 65536)
    a.i("v_and_b32 v10, 1, v3"); a.i("v_lshlrev_b32 v13, 10, v10"); a.i("v_lshl_add_u32 v13, v4, 3, v13")
    a.i("s_lshl_b32 s46, s6, 14"); a.i("s_lshl_b32 s14, s4, 11"); a.i("s_add_u32 s46, s46, s14"); a.i("s_lshl_b32 s14, s59, 7"); a.i("s_add_u32 s46, s46, s14")
    a.i("s_barrier")
    NP = opt.ppoll
    a.i("s_mov_b32 s14, 0x0c0c0400"); a.i("s_mov_b32 s15, 0x04000c0c")
    for k in range(4): a.i(f"s_add_u32 s{48+k}, s43, {k*32*4096}")
    def pissue(z):
        for k in range(4):
            a.i(f"buffer_load_dwordx4 {vr(16+16*z+4*k)}, v9, s[32:35], s{48+k} offen sc1")
    a.i("s_mov_b32 s45, 0")
    for z in range(NP):
        pissue(z)
        if z < NP - 1 and opt.psleep: a.i(f"s_sleep {opt.psleep}")
    a.label("L_B_pretry")
    for z in range(NP):
        R = 16 + 16*z
        a.i(f"s_waitcnt vmcnt({4*(NP-1)})")
        for k in range(4):
            d = 10 if k == 0 else 11
            a.i(f"v_perm_b32 v{d}, v{R+4*k+1}, v{R+4*k}, s14"); a.i(f"v_perm_b32 v12, v{R+4*k+3}, v{R+4*k+2}, s15")
            if k == 0:
                a.i("v_or_b32 v10, v10, v12"); a.i("v_xor_b32 v10, v10, v8")
            else:
                a.i("v_or_b32 v11, v11, v12"); a.i("v_xor_b32 v11, v11, v8"); a.i("v_or_b32 v10, v10, v11")
        a.i("v_cmp_ne_u32 vcc, 0, v10")
        a.i(f"s_cbranch_vccz L_B_pok{z}")
        pissue(z)
    a.i("s_add_u32 s45, s45, 1")
    a.i(f"s_cmp_le_u32 s45, {opt.spin_limit}")
    a.i("s_cbranch_scc1 L_B_pretry")
    a.i("s_waitcnt vmcnt(0)")
    for z in range(NP):
        R = 16 + 16*z
        a.label(f"L_B_pok{z}")
        for e in range(4):
            a.i(f"v_add_f32 v{80+e}, v{R+e}, v{R+4+e}"); a.i(f"v_add_f32 v{84+e}, v{R+8+e}, v{R+12+e}")
        if z < NP - 1: a.i("s_branch L_B_psum")
    a.label("L_B_psum")
    g.stamp(6, tail=6)
    R = 80
    for e in range(4): a.i(f"v_add_f32 v{R+e}, v{R+e}, v{R+4+e}")
    for e in range(4): a.i(f"v_mov_b32 v{R+4+e}, v{R+e}")
    for e in range(4): a.i(f"v_permlane32_swap_b32 v{R+e}, v{R+4+e}")
    for e in range(4): a.i(f"v_add_f32 v{R+e}, v{R+e}, v{R+4+e}")
    a.i(f"v_cvt_pk_bf16_f32 v{R+8}, v{R}, v{R+1}"); a.i(f"v_cvt_pk_bf16_f32 v{R+9}, v{R+2}, v{R+3}")
    a.i("s_mov_b32 exec_hi, 0")
    a.i(f"buffer_store_dwordx2 {vr(R+8,2)}, v13, s[36:39], s46 offen")
    a.i("s_or_b32 s14, s4, s7"); a.i("s_cmp_lg_u32 s14, 0"); a.i("s_cbranch_scc1 L_B_fin")
    a.i("s_mov_b64 exec, 1")
    a.i("s_lshl_b32 s14, s6, 7")
    a.i(f"buffer_store_dword v8, v5, s[32:35], s14 offen sc1")
    a.label("L_B_fin")
    a.i("s_mov_b64 exec, -1")
    if opt.stamps:
        a.i("s_waitcnt vmcnt(0)")
        a.i("s_memrealtime s[78:79]")
        emit_stamps(g, 8, 8, first=1)
    a.label("L_end"); a.i("s_endpgm")

    out = Asm()
    out(HEADER + f"; @launch grid=(256,1,1) block=(512,1,1) lds={L_END}")
    out('.amdgcn_target "amdgcn-amd-amdhsa--gfx950"\n.text')
    lines, n = hazard.fix(a.lines)
    out.lines += lines
    out('.section .rodata,"a"')
    out(kernel_desc(NAME, 256))
    return out.text(), n

def emit_stamps(g, slot0, n, first=0):
    a = g.a
    a.i("s_waitcnt lgkmcnt(0)")
    a.i(f"s_add_u32 s90, s30, {STAMPOFF}"); a.i("s_addc_u32 s91, s31, 0")
    a.i("s_lshl_b32 s14, s2, 7"); a.i("s_add_u32 s90, s90, s14"); a.i("s_addc_u32 s91, s91, 0")
    a.i("s_mov_b64 exec, 1")
    for k in range(first, n):
        a.i(f"v_mov_b32 v20, s{64+2*k}"); a.i(f"v_mov_b32 v21, s{65+2*k}")
        a.i(f"global_store_dwordx2 v5, v[20:21], s[90:91] offset:{(slot0+k-first)*8}")
        a.i("s_nop 1")
    a.i("s_mov_b64 exec, -1")

if __name__ == "__main__":
    o = Opt()
    out = sys.argv[1]
    for kv in sys.argv[2:]:
        k, v = kv.split("=")
        cur = getattr(o, k)
        if isinstance(cur, bool): v = v in ("1", "True", "true")
        elif isinstance(cur, int): v = int(v)
        else: v = v.replace("+", " ")
        setattr(o, k, v)
    t, n = gen(o)
    open(out, "w").write(t)
    print(out, "nops inserted:", n, "lines:", t.count("\n"))
```

```python
import sys, struct
from asmlib import *
import hazard

NAME = "standalone__sliding_block_cached__sampling_kernel"
def f2u(x): return struct.unpack('<I', struct.pack('<f', x))[0]
SCALE = 0.08838834764831845 * 1.4426950408889634

WS_XID = 0x8000
WS_OF = 0x9000
WS_QS = 0x10000
WS_ST = 0x200000
WS_OS = 0x300000
WS_PS = 0x500000
WS_SIZE = 0x800000
STAMPOFF = 256 << 20
TAGINC = 0x9E3779B9

L_K = 0
L_OR = 0
L_CR = 32768
L_QR = 131072
L_P = 131072
L_CNT = 147456
L_F = L_CNT + 64
L_Q = L_CNT + 512
L_END = L_Q + 4096
CQ, CKS, CV, CO, CC, CP, CF, CQ2, CKD, FASTW = 0, 4, 8, 12, 16, 20, 36, 40, 44, 60
CWP = CO

class Opt:
    stamps = False
    kv_flags = "nt"
    w_flags = "nt"
    x_flags = ""
    ld_flags = "sc1"
    spin_limit = 30000
    a_prio = 2
    b_prio_pv = 3
    rot = 1
    thr = 7
    wo_mode = 1
    wq_ahead = 2
    force_slow = 0
    bench = 0
    a_stop = 0
    oflag = 1
    wq_ahead3 = 0
    k_flags = "same"
    v_flags = "same"
    cwpstamp = 0
    bpf = 0
    bpf_flags = ""
    wopf = 0
    ppoll = 3
    psleep = 6
    ptouch_flags = ""
    touch = 1
    regather = 0
    o_plain = 1
    dbgcnt = 0
    ntx = 4
    thr3 = 0
    pf = 0
    pf_flags = ""
    tstamps = 0
    wo_early = 2
    b_exit = 0
    wq_rowrot = 0
    wq_colxor = 0
    bstamps = 0
    stagger = 0
    thr_k = 0
    stag_bit = 0
    xid_tries = 4

def vr(b, n=4): return f"v[{b}:{b+n-1}]" if n > 1 else f"v{b}"

def srd(a, d, lo, hi, size, add=None):
    if add is None:
        a.i(f"s_mov_b32 s{d}, s{lo}"); a.i(f"s_mov_b32 s{d+1}, s{hi}")
    else:
        a.i(f"s_add_u32 s{d}, s{lo}, {add}"); a.i(f"s_addc_u32 s{d+1}, s{hi}, 0")
    a.i(f"s_mov_b32 s{d+2}, {size}"); a.i(f"s_mov_b32 s{d+3}, 0x20000")

class G:
    def __init__(self, opt):
        self.a = Asm(); self.o = opt; self.nl = 0
    def lab(self, p):
        self.nl += 1; return f"L{p}{self.nl}"
    def stamp(self, k, tail=None):
        if self.o.tstamps:
            if tail is None and k != 0: return
            if tail is not None: k = tail
            if k < 0: return
        elif tail is not None and k < 0: return
        if self.o.stamps:
            self.a.i(f"s_memrealtime s[{64+2*k}:{65+2*k}]")
    def signal(self, cnt, vaddr=1):
        a = self.a
        a.i("s_mov_b64 exec, 1")
        a.i(f"ds_add_u32 v{vaddr}, v6 offset:{cnt}")
        a.i("s_mov_b64 exec, -1")
    def wait_cnt(self, cnt, n, vt=10, vaddr=1, sleep=0):
        a = self.a
        L = self.lab("w")
        a.i("s_mov_b32 s15, 0")
        a.label(L)
        if sleep: a.i(f"s_sleep {sleep}")
        a.i(f"ds_read_b32 v{vt}, v{vaddr} offset:{cnt}")
        a.i("s_add_u32 s15, s15, 1")
        a.i("s_waitcnt lgkmcnt(0)")
        a.i(f"v_readfirstlane_b32 s14, v{vt}")
        a.i(f"s_cmp_gt_u32 s15, {self.o.spin_limit*16}")
        a.i(f"s_cbranch_scc1 {L}_o")
        a.i(f"s_cmp_ge_u32 s14, {n}")
        a.i(f"s_cbranch_scc0 {L}")
        a.label(f"{L}_o")
    def retry_tail(self, Lretry, Lok):
        a = self.a
        a.i("s_add_u32 s45, s45, 1")
        a.i(f"s_cmp_gt_u32 s45, {self.o.spin_limit}")
        a.i(f"s_cbranch_scc1 {Lok}")
        a.i(f"s_cbranch_vccnz {Lretry}")
        a.label(Lok)
    def store_var(self, ins):
        a = self.a; L = self.lab("s")
        a.i("s_cmp_eq_u32 s58, 1"); a.i(f"s_cbranch_scc1 {L}_f")
        a.i(ins + " sc1"); a.i(f"s_branch {L}_d")
        a.label(f"{L}_f"); a.i(ins); a.label(f"{L}_d")

def transpose4(a, dst, L):
    for e in range(4):
        w = e >> 1; sel = 's11' if (e & 1) == 0 else 's12'
        for p in range(4):
            a.i(f"v_perm_b32 v{dst+4*e+p}, v{L(2*p+1,w)}, v{L(2*p,w)}, {sel}")

def kvbase(a):
    a.i("s_lshr_b32 s14, s5, 1"); a.i("s_lshl_b32 s14, s14, 3"); a.i("s_add_u32 s14, s14, s4"); a.i("s_lshl_b32 s14, s14, 12")
    a.i("s_lshl_b32 s15, s9, 9"); a.i("s_add_u32 s14, s14, s15"); a.i("s_lshl_b32 s15, s3, 7"); a.i("s_add_u32 s14, s14, s15")
    a.i("s_add_u32 s14, s14, 3072"); a.i("s_lshl_b32 s14, s14, 8")

def astop(g, n):
    opt = g.o; a = g.a
    if opt.a_stop == n:
        for k in range(n + 1, 8): g.stamp(k)
        if opt.stamps:
            a.i("s_cmp_lg_u32 s3, 0"); a.i("s_cbranch_scc1 L_end")
            emit_stamps(g, 0, 8)
        a.i("s_branch L_end")

def gen(opt):
    g = G(opt); a = g.a
    kernel_begin(a, NAME)
    a.i("s_cmp_ge_u32 s2, 256"); a.i("s_cbranch_scc1 L_end")
    g.stamp(0)
    a.i("s_load_dwordx16 s[16:31], s[0:1], 0")
    a.i("v_lshrrev_b32 v1, 6, v0"); a.i("v_and_b32 v2, 63, v0")
    a.i("v_readfirstlane_b32 s3, v1")
    a.i("s_and_b32 s4, s2, 7")
    a.i("s_lshr_b32 s5, s2, 3")
    a.i("s_lshr_b32 s6, s5, 3")
    a.i("s_and_b32 s7, s5, 7")
    a.i(f"s_xor_b32 s59, s7, {opt.ntx}")
    a.i("s_bfe_u32 s8, s5, 0x20001")
    a.i("s_and_b32 s9, s5, 1")
    a.i("v_lshrrev_b32 v3, 4, v2"); a.i("v_and_b32 v4, 15, v2")
    a.i("v_mov_b32 v5, 0"); a.i("v_mov_b32 v6, 1")
    a.i(f"v_mov_b32 v1, {L_CNT}")
    a.i("s_mov_b32 s11, 0x05040100"); a.i("s_mov_b32 s12, 0x07060302")
    a.i("s_lshl_b32 s40, s4, 5"); a.i("s_add_u32 s41, s40, s5")
    a.i("s_and_b32 s42, s41, 0xfffffff8")
    a.i("s_cmp_lg_u32 s3, 0"); a.i("s_cbranch_scc1 L_P1")
    a.i("v_lshl_add_u32 v7, v2, 2, v1"); a.i("ds_write_b32 v7, v5 offset:0")
    a.label("L_P1")
    a.i("s_waitcnt lgkmcnt(0)")
    a.i("s_barrier")
    a.i("s_lshl_b32 s15, s6, 7")
    a.i("s_load_dword s10, s[30:31], s15")
    srd(a, 32, 30, 31, WS_SIZE)
    a.i("s_cmp_ge_u32 s3, 4"); a.i("s_cbranch_scc1 L_B")

    if opt.a_prio: a.i(f"s_setprio {opt.a_prio}")
    astop(g, 1) if opt.a_stop == 1 else None
    srd(a, 52, 16, 17, 65536)
    srd(a, 48, 22, 23, 4 << 20)
    XA, WB, T, ACC = 16, 32, 96, 128
    a.i("v_lshlrev_b32 v8, 10, v4"); a.i("v_lshl_add_u32 v8, v3, 4, v8")
    a.i("v_lshlrev_b32 v9, 16, v3"); a.i("v_lshl_add_u32 v9, v4, 3, v9")
    a.i("s_lshl_b32 s14, s6, 14"); a.i("s_lshl_b32 s15, s3, 8"); a.i("s_add_u32 s45, s14, s15")
    a.i("s_lshl_b32 s44, s3, 20"); a.i("s_lshl_b32 s14, s4, 10"); a.i("s_add_u32 s44, s44, s14"); a.i(f"s_xor_b32 s14, s7, {opt.wq_colxor}"); a.i("s_lshl_b32 s14, s14, 7"); a.i("s_add_u32 s44, s44, s14")
    a.i("s_lshl_b32 s47, s3, 15")
    def xidpub():
        a.i("s_getreg_b32 s57, hwreg(HW_REG_XCC_ID, 0, 4)")
        a.i("s_waitcnt lgkmcnt(0)")
        a.i(f"s_add_u32 s10, s10, {TAGINC:#x}")
        a.i("s_and_b32 s14, s10, 0xfffffff0"); a.i("s_or_b32 s14, s14, s57"); a.i("v_mov_b32 v144, s14")
        a.i("s_lshl_b32 s14, s41, 2"); a.i(f"s_add_u32 s14, s14, {WS_XID}")
        a.i("s_mov_b64 exec, 1")
        a.i("buffer_store_dword v144, v5, s[32:35], s14 offen")
        a.i("s_mov_b64 exec, -1")
    if opt.stagger: xidpub()
    if opt.stagger:
        a.i(f"s_bitcmp1_b32 s5, {opt.stag_bit}"); a.i("s_cbranch_scc0 L_A_nostag")
        g.wait_cnt(CKS, 4)
        a.label("L_A_nostag")
    if opt.pf:
        a.i("s_lshl_b32 s14, s6, 7"); a.i("s_lshl_b32 s15, s3, 5"); a.i("s_add_u32 s14, s14, s15"); a.i("s_lshl_b32 s14, s14, 13")
        a.i("s_lshl_b32 s15, s4, 10"); a.i("s_add_u32 s14, s14, s15"); a.i("s_lshl_b32 s15, s7, 7"); a.i("s_add_u32 s14, s14, s15")
        a.i("v_lshlrev_b32 v10, 13, v2")
        a.i("s_mov_b32 exec_hi, 0")
        a.i(f"buffer_load_dword v146, v10, s[48:51], s14 offen {opt.pf_flags}")
        a.i("s_lshl_b32 s14, s6, 14"); a.i("s_lshl_b32 s15, s7, 11"); a.i("s_add_u32 s14, s14, s15"); a.i("s_lshl_b32 s15, s3, 9"); a.i("s_add_u32 s14, s14, s15")
        a.i("v_lshlrev_b32 v10, 7, v2")
        a.i("s_mov_b64 exec, 0xf")
        a.i(f"buffer_load_dword v147, v10, s[52:55], s14 offen")
        a.i("s_mov_b64 exec, -1")
        if not opt.stagger: xidpub()
        a.i("s_waitcnt vmcnt(0)")
    if opt.bpf:
        g.wait_cnt(CWP, 4)
        if opt.cwpstamp: g.stamp(1)
    def qproj(AHEAD, SFX):
        seq = []
        def wqstep(s_):
            for i in range(8):
                a.i(f"buffer_load_dwordx2 {vr(WB+16*s_+2*i,2)}, v9, s[48:51], s44 offen {opt.w_flags}")
                a.i(f"s_add_u32 s44, s44, 8192")
                seq.append(('w', s_))
            if s_ < 3: a.i(f"s_add_u32 s44, s44, {24*8192}")
        wqstep(0)
        for s2 in range(4):
            a.i(f"buffer_load_dwordx4 {vr(XA+4*s2)}, v8, s[52:55], s45 offen offset:{s2*64} {opt.x_flags}")
            seq.append(('x', 0))
        a.i("s_lshl_b32 s46, s42, 2"); a.i(f"s_add_u32 s46, s46, {WS_XID}")
        a.i("v_lshlrev_b32 v145, 2, v2")
        def xidload():
            a.i("s_mov_b64 exec, 0xff")
            a.i("buffer_load_dword v146, v145, s[32:35], s46 offen sc1")
            a.i("s_mov_b64 exec, -1")
        issued = 1
        while issued < min(4, AHEAD):
            wqstep(issued); issued += 1
        xidpub(); seq.append(('s', 0))
        a.i("v_mov_b32 v8, s10")
        for s_ in range(4):
            last = max([i for i, e in enumerate(seq) if e == ('w', s_) or (s_ == 0 and e[0] == 'x') or (s_ == 2 and e[0] == 'i')])
            a.i(f"s_waitcnt vmcnt({len(seq)-1-last})")
            if s_ == 0:
                xidload(); seq.append(('i', 0))
                if opt.touch & 2:
                    a.i("v_lshlrev_b32 v7, 4, v2")
                    a.i("s_lshl_b32 s14, s41, 12"); a.i("s_lshl_b32 s15, s3, 10"); a.i("s_add_u32 s14, s14, s15"); a.i(f"s_add_u32 s14, s14, {WS_QS}")
                    a.i("buffer_load_dwordx4 v[240:243], v7, s[32:35], s14 offen sc1"); seq.append(('t', 0))
                    a.i("s_lshl_b32 s14, s41, 10"); a.i("s_lshl_b32 s15, s3, 8"); a.i("s_add_u32 s14, s14, s15"); a.i(f"s_add_u32 s14, s14, {WS_ST}")
                    a.i("s_mov_b64 exec, 0xffff")
                    a.i("buffer_load_dwordx4 v[244:247], v7, s[32:35], s14 offen sc1"); seq.append(('t', 0))
                    a.i("s_mov_b64 exec, -1")
            if issued < 4:
                wqstep(issued); issued += 1
            if s_ == 0 and not opt.cwpstamp: g.stamp(1)
            if s_ == 2:
                a.i("s_mov_b32 s45, 0"); a.i("s_mov_b32 s58, 0")
                a.i(f"s_branch L_A_xchk{SFX}")
                a.label(f"L_A_xretry{SFX}")
                xidload()
                a.i("s_waitcnt vmcnt(0)")
                a.label(f"L_A_xchk{SFX}")
                a.i("s_mov_b64 exec, 0xff")
                a.i("v_xor_b32 v147, v146, v8"); a.i("v_and_b32 v147, 0xfffffff0, v147"); a.i("v_cmp_ne_u32 vcc, 0, v147")
                a.i("s_mov_b64 exec, -1")
                a.i(f"s_cbranch_vccz L_A_xok{SFX}")
                a.i("s_add_u32 s45, s45, 1")
                a.i(f"s_cmp_lt_u32 s45, {opt.xid_tries}")
                a.i(f"s_cbranch_scc1 L_A_xretry{SFX}")
                a.i(f"s_branch L_A_xdone{SFX}")
                a.label(f"L_A_xok{SFX}")
                a.i("s_mov_b64 exec, 0xff")
                a.i("v_and_b32 v147, 15, v146"); a.i("v_cmp_ne_u32 vcc, s57, v147")
                a.i("s_mov_b64 exec, -1")
                a.i("s_cmp_eq_u64 vcc, 0"); a.i("s_cselect_b32 s58, 1, 0")
                a.label(f"L_A_xdone{SFX}")
                if opt.force_slow: a.i("s_mov_b32 s58, 0")
                for r in range(4): a.i(f"v_mov_b32 v{148+r}, -1")
                a.i("v_lshlrev_b32 v7, 4, v2")
                a.i("s_lshl_b32 s43, s41, 12"); a.i("s_lshl_b32 s14, s3, 10"); a.i("s_add_u32 s43, s43, s14"); a.i(f"s_add_u32 s46, s43, {WS_OS}")
                g.store_var("buffer_store_dwordx4 v[148:151], v7, s[32:35], s46 offen"); seq.append(('p', 0))
            tb = T + (s_ & 1) * 16
            transpose4(a, tb, lambda i, w: WB + 16*s_ + 2*i + w)
            for e in range(4):
                c = "0" if s_ == 0 else vr(ACC+4*e)
                a.i(f"v_mfma_f32_16x16x32_bf16 {vr(ACC+4*e)}, {vr(XA+4*s_)}, {vr(tb+4*e)}, {c}")
    if opt.wq_ahead3 and opt.wq_ahead3 != opt.wq_ahead:
        a.i("s_cmp_eq_u32 s7, 3"); a.i("s_cbranch_scc1 L_A_q3")
        qproj(opt.wq_ahead, "a")
        a.i("s_branch L_A_qdone")
        a.label("L_A_q3")
        qproj(opt.wq_ahead3, "b")
        a.label("L_A_qdone")
    else:
        qproj(opt.wq_ahead, "a")
    a.i("v_lshlrev_b32 v9, 2, v2"); a.i("s_lshl_b32 s14, s3, 10"); a.i(f"s_add_u32 s14, s14, {L_QR}"); a.i("v_add_u32 v7, s14, v9")
    for r in range(4):
        for e in range(0, 4, 2):
            a.i(f"ds_write2st64_b32 v7, v{ACC+4*e+r}, v{ACC+4*(e+1)+r} offset0:{r*16+e} offset1:{r*16+e+1}")
    a.i("v_mov_b32 v10, s58"); a.i(f"ds_write_b32 v1, v10 offset:{FASTW}")
    a.i("s_waitcnt lgkmcnt(0)")
    g.signal(CQ)
    g.wait_cnt(CQ, 4)
    a.i("s_lshl_b32 s14, s3, 12"); a.i(f"s_add_u32 s14, s14, {L_QR}"); a.i("v_add_u32 v7, s14, v9")
    R = 152
    for src in range(4):
        for e in range(0, 4, 2):
            a.i(f"ds_read2st64_b32 {vr(R+4*src+e,2)}, v7 offset0:{src*4+e} offset1:{src*4+e+1}")
    a.i("v_lshlrev_b32 v9, 10, v3"); a.i("v_and_b32 v10, 1, v4"); a.i("v_lshl_add_u32 v9, v10, 9, v9")
    a.i("v_lshrrev_b32 v10, 3, v4"); a.i("v_lshl_add_u32 v9, v10, 8, v9"); a.i("v_bfe_u32 v10, v4, 1, 2"); a.i("v_lshl_add_u32 v9, v10, 4, v9")
    a.i("s_lshl_b32 s43, s41, 12"); a.i("s_lshl_b32 s14, s3, 6"); a.i("s_add_u32 s43, s43, s14"); a.i(f"s_add_u32 s43, s43, {WS_QS}")
    a.i("s_waitcnt lgkmcnt(0)")
    for e in range(4):
        a.i(f"v_add_f32 v{R+e}, v{R+e}, v{R+4+e}"); a.i(f"v_add_f32 v{R+8+e}, v{R+8+e}, v{R+12+e}")
    for e in range(4): a.i(f"v_add_f32 v{R+e}, v{R+e}, v{R+8+e}")
    a.i(f"v_cvt_pk_bf16_f32 v{R+4}, v{R}, v{R+1}"); a.i(f"v_cvt_pk_bf16_f32 v{R+5}, v{R+2}, v{R+3}")
    a.i(f"v_perm_b32 v{R+8}, v{R+4}, v8, s11"); a.i(f"v_perm_b32 v{R+9}, v{R+4}, v8, s12")
    a.i(f"v_perm_b32 v{R+10}, v{R+5}, v8, s11"); a.i(f"v_perm_b32 v{R+11}, v{R+5}, v8, s12")
    a.i("s_waitcnt vmcnt(0)")
    if opt.touch & 1:
        a.i("v_lshlrev_b32 v7, 4, v2")
        a.i("buffer_load_dwordx4 v[248:251], v7, s[32:35], s46 offen sc1")
    g.store_var(f"buffer_store_dwordx4 {vr(R+8)}, v9, s[32:35], s43 offen")
    g.stamp(2)
    astop(g, 2)
    QR = 176
    a.i("v_lshrrev_b32 v9, 2, v4"); a.i("v_lshlrev_b32 v9, 13, v9"); a.i("v_and_b32 v10, 3, v4"); a.i("v_lshl_add_u32 v9, v10, 6, v9"); a.i("v_lshl_add_u32 v9, v3, 4, v9")
    a.i("s_lshl_b32 s43, s42, 12"); a.i("s_lshl_b32 s14, s8, 10"); a.i("s_add_u32 s43, s43, s14"); a.i(f"s_add_u32 s43, s43, {WS_QS}")
    a.i("s_lshr_b32 s14, s3, 1"); a.i("s_lshl_b32 s14, s14, 12"); a.i("s_add_u32 s43, s43, s14")
    a.i("s_and_b32 s14, s3, 1"); a.i("s_lshl_b32 s14, s14, 8"); a.i("s_add_u32 s43, s43, s14")
    a.i("s_mov_b32 s45, 0")
    a.label("L_A_qretry")
    for u in range(2):
        a.i(f"buffer_load_dwordx4 {vr(QR+4*u)}, v9, s[32:35], s43 offen offset:{u*512} {opt.ld_flags}")
    a.i("v_mov_b32 v10, 0")
    a.i("s_waitcnt vmcnt(0)")
    for k in range(4):
        a.i(f"v_perm_b32 v11, v{QR+2*k+1}, v{QR+2*k}, s11")
        a.i(f"v_xor_b32 v11, v11, v8")
        a.i(f"v_or_b32 v10, v10, v11")
    a.i("v_cmp_ne_u32 vcc, 0, v10")
    g.retry_tail("L_A_qretry", "L_A_qok")
    for k in range(4):
        a.i(f"v_perm_b32 v{QR+8+k}, v{QR+2*k+1}, v{QR+2*k}, s12")
    a.i("v_lshlrev_b32 v9, 4, v2"); a.i("s_lshl_b32 s14, s3, 10"); a.i(f"s_add_u32 s14, s14, {L_Q}"); a.i("v_add_u32 v10, s14, v9")
    a.i(f"ds_write_b128 v10, {vr(QR+8)}")
    for st in range(4):
        a.i(f"v_add_u32 v10, {4*st}, v3"); a.i("v_xor_b32 v10, v10, v4"); a.i("v_lshlrev_b32 v10, 4, v10"); a.i("v_lshl_add_u32 v10, v4, 8, v10"); a.i(f"v_add_u32 v{12+st}, s47, v10")
    a.i("s_waitcnt lgkmcnt(0)")
    g.signal(CQ2)
    g.stamp(3)
    astop(g, 3)
    WR, WF = 32, 96
    srd(a, 48, 24, 25, 4 << 20)
    a.i("v_lshlrev_b32 v16, 15, v3"); a.i("v_lshl_add_u32 v16, v4, 3, v16")
    a.i("s_lshl_b32 s46, s4, 2"); a.i("s_add_u32 s46, s46, s3"); a.i("s_lshl_b32 s46, s46, 17"); a.i("s_lshl_b32 s15, s59, 7"); a.i("s_add_u32 s46, s46, s15")
    def wostep(st):
        for i in range(8):
            if i % 4 == 0 and (st or i): a.i("s_add_u32 s46, s46, 4096")
            a.i(f"buffer_load_dwordx2 {vr(WR+16*st+2*i,2)}, v16, s[48:51], s46 offen offset:{(i&3)*1024} {opt.w_flags}")
    KB = [96, 128]; QF = 160; SA = 192; PF = 224; ST = 240
    def kread(p):
        for tt in range(2):
            for st in range(4):
                a.i(f"ds_read_b128 {vr(KB[p&1]+16*tt+4*st)}, v{12+st} offset:{(2*p+tt)*4096}")
    g.wait_cnt(CQ2, 4)
    a.i(f"v_add_u32 v10, {L_Q}, v9")
    for st in range(4): a.i(f"ds_read_b128 {vr(QF+4*st)}, v10 offset:{st*1024}")
    a.i("s_lshl_b32 s14, s3, 2"); a.i("v_add_u32 v7, s14, v1")
    g.wait_cnt(CKD, 1, vaddr=7)
    kread(0); kread(1)
    for p in range(4):
        a.i(f"s_waitcnt lgkmcnt({8 if p < 3 else 0})")
        for tt in range(2):
            t = 2*p + tt
            for st in range(4):
                c = "0" if st == 0 else vr(SA+4*t)
                a.i(f"v_mfma_f32_16x16x32_bf16 {vr(SA+4*t)}, {vr(KB[p&1]+16*tt+4*st)}, {vr(QF+4*st)}, {c}")
        if p + 2 < 4: kread(p + 2)
    a.i(f"s_mov_b32 s13, {f2u(SCALE):#x}")
    a.i(f"v_max3_f32 v10, v{SA}, v{SA+1}, v{SA+2}")
    for r in range(3, 31, 2): a.i(f"v_max3_f32 v10, v10, v{SA+r}, v{SA+r+1}")
    a.i(f"v_max_f32 v10, v10, v{SA+31}")
    a.i("v_mov_b32 v11, v10"); a.i("v_permlane16_swap_b32 v10, v11"); a.i("v_max_f32 v10, v10, v11")
    a.i("v_mov_b32 v11, v10"); a.i("v_permlane32_swap_b32 v10, v11"); a.i("v_max_f32 v10, v10, v11")
    a.i("v_mul_f32 v12, s13, v10")
    for r in range(32): a.i(f"v_fma_f32 v{SA+r}, v{SA+r}, s13, -v12")
    for r in range(32): a.i(f"v_exp_f32 v{SA+r}, v{SA+r}")
    for k in range(16): a.i(f"v_cvt_pk_bf16_f32 v{PF+k}, v{SA+2*k}, v{SA+2*k+1}")
    a.i("v_lshlrev_b32 v9, 4, v2"); a.i("s_lshl_b32 s14, s3, 12"); a.i(f"s_add_u32 s14, s14, {L_P}"); a.i("v_add_u32 v9, s14, v9")
    for u in range(4): a.i(f"ds_write_b128 v9, {vr(PF+4*u)} offset:{u*1024}")
    a.i(f"v_add_f32 v10, v{SA}, v{SA+1}"); a.i(f"v_add_f32 v11, v{SA+2}, v{SA+3}")
    for r in range(4, 32, 2):
        a.i(f"v_add_f32 v10, v10, v{SA+r}"); a.i(f"v_add_f32 v11, v11, v{SA+r+1}")
    a.i("s_waitcnt lgkmcnt(0)")
    g.signal(CP, vaddr=7)
    a.i("v_add_f32 v10, v10, v11")
    a.i("v_mov_b32 v11, v10"); a.i("v_permlane16_swap_b32 v10, v11"); a.i("v_add_f32 v10, v10, v11")
    a.i("v_mov_b32 v11, v10"); a.i("v_permlane32_swap_b32 v10, v11"); a.i("v_add_f32 v13, v10, v11")
    a.i("v_mov_b32 v14, v8"); a.i("v_mov_b32 v15, v8")
    a.i("s_lshl_b32 s43, s41, 10"); a.i("s_lshl_b32 s14, s3, 8"); a.i("s_add_u32 s43, s43, s14"); a.i(f"s_add_u32 s43, s43, {WS_ST}")
    a.i("v_lshlrev_b32 v9, 4, v4")
    a.i("s_mov_b64 exec, 0xffff")
    g.store_var("buffer_store_dwordx4 v[12:15], v9, s[32:35], s43 offen")
    a.i("s_mov_b64 exec, -1")
    g.stamp(4)
    if opt.touch & 4:
        a.i("v_lshlrev_b32 v10, 4, v2")
        a.i("s_lshl_b32 s14, s41, 12"); a.i("s_lshl_b32 s15, s3, 10"); a.i("s_add_u32 s14, s14, s15"); a.i(f"s_add_u32 s14, s14, {WS_PS}")
        a.i(f"buffer_load_dwordx4 v[252:255], v10, s[32:35], s14 offen {opt.ptouch_flags}")
    if opt.pf:
        a.i("s_lshl_b32 s14, s4, 9"); a.i("s_lshl_b32 s15, s6, 7"); a.i("s_add_u32 s14, s14, s15"); a.i("s_lshl_b32 s15, s3, 5"); a.i("s_add_u32 s14, s14, s15"); a.i("s_lshl_b32 s14, s14, 10")
        a.i("s_lshl_b32 s15, s7, 7"); a.i("s_add_u32 s14, s14, s15")
        a.i("v_lshlrev_b32 v10, 10, v2")
        a.i("s_mov_b32 exec_hi, 0")
        a.i(f"buffer_load_dword v17, v10, s[48:51], s14 offen {opt.pf_flags}")
        a.i("s_mov_b64 exec, -1")
    a.i("s_and_b32 s43, s41, 0xfffffffe"); a.i("s_lshl_b32 s43, s43, 10"); a.i(f"s_add_u32 s43, s43, {WS_ST}")
    a.i("v_lshl_add_u32 v9, v3, 9, v9")
    a.i("s_mov_b32 s45, 0")
    a.label("L_A_sretry")
    a.i(f"buffer_load_dwordx4 {vr(ST)}, v9, s[32:35], s43 offen {opt.ld_flags}")
    a.i(f"buffer_load_dwordx4 {vr(ST+4)}, v9, s[32:35], s43 offen offset:256 {opt.ld_flags}")
    a.i("s_waitcnt vmcnt(0)")
    a.i(f"v_xor_b32 v10, v{ST+2}, v8"); a.i(f"v_xor_b32 v11, v{ST+3}, v8"); a.i("v_or_b32 v10, v10, v11")
    a.i(f"v_xor_b32 v11, v{ST+6}, v8"); a.i("v_or_b32 v10, v10, v11"); a.i(f"v_xor_b32 v11, v{ST+7}, v8"); a.i("v_or_b32 v10, v10, v11")
    a.i("v_cmp_ne_u32 vcc, 0, v10")
    g.retry_tail("L_A_sretry", "L_A_sok")
    a.i(f"v_max_f32 v10, v{ST}, v{ST+4}")
    a.i("v_mov_b32 v11, v10"); a.i("v_permlane16_swap_b32 v10, v11"); a.i("v_max_f32 v10, v10, v11")
    a.i("v_mov_b32 v11, v10"); a.i("v_permlane32_swap_b32 v10, v11"); a.i("v_max_f32 v10, v10, v11")
    a.i(f"v_sub_f32 v{ST}, v{ST}, v10"); a.i(f"v_sub_f32 v{ST+4}, v{ST+4}, v10")
    a.i(f"v_exp_f32 v{ST}, v{ST}"); a.i(f"v_exp_f32 v{ST+4}, v{ST+4}")
    a.i(f"v_mul_f32 v{ST+1}, v{ST+1}, v{ST}"); a.i(f"v_fmac_f32 v{ST+1}, v{ST+5}, v{ST+4}")
    a.i(f"v_mov_b32 v11, v{ST+1}"); a.i(f"v_permlane16_swap_b32 v{ST+1}, v11"); a.i(f"v_add_f32 v{ST+1}, v{ST+1}, v11")
    a.i(f"v_mov_b32 v11, v{ST+1}"); a.i(f"v_permlane32_swap_b32 v{ST+1}, v11"); a.i(f"v_add_f32 v11, v{ST+1}, v11")
    a.i("v_sub_f32 v12, v12, v10"); a.i("v_exp_f32 v12, v12"); a.i("v_rcp_f32 v11, v11"); a.i("v_mul_f32 v12, v12, v11")
    a.i("v_lshlrev_b32 v9, 2, v4"); a.i("s_lshl_b32 s14, s3, 6"); a.i(f"s_add_u32 s14, s14, {L_F}"); a.i("v_add_u32 v9, s14, v9")
    a.i("ds_write_b32 v9, v12")
    a.i("s_waitcnt lgkmcnt(0)")
    g.signal(CF)
    for st in range(opt.wo_early): wostep(st)
    if opt.wo_early < 4:
        g.wait_cnt(CV, 4)
        for st in range(opt.wo_early, 4): wostep(st)
    OG, CA = 192, 176
    a.i("v_add_u32 v10, s3, v4"); a.i("v_and_b32 v10, 3, v10")
    a.i("v_lshrrev_b32 v9, 2, v4"); a.i("v_lshlrev_b32 v9, 13, v9"); a.i("v_lshl_add_u32 v9, v10, 6, v9"); a.i("v_lshl_add_u32 v9, v3, 4, v9")
    a.i("s_lshl_b32 s43, s42, 12"); a.i("s_lshl_b32 s14, s3, 10"); a.i("s_add_u32 s43, s43, s14"); a.i(f"s_add_u32 s43, s43, {WS_OS}")
    a.i("s_add_u32 s44, s43, 4096")
    a.i("s_lshl_b32 s46, s42, 4"); a.i(f"s_add_u32 s46, s46, {WS_OF}")
    a.i("v_lshlrev_b32 v7, 2, v2")
    for r in range(1, 4):
        a.i(f"s_add_u32 s14, s3, {r}"); a.i("s_and_b32 s14, s14, 3"); a.i("s_lshl_b32 s14, s14, 12"); a.i(f"s_add_u32 s14, s14, {L_CR + (r-1)*1024}"); a.i(f"v_add_u32 v{12+r}, s14, v7")
    a.i("s_lshl_b32 s14, s3, 12"); a.i(f"s_add_u32 s14, s14, {L_CR}"); a.i("v_add_u32 v12, s14, v7")
    a.i("v_lshlrev_b32 v17, 10, v3"); a.i("v_lshl_add_u32 v17, v4, 4, v17")
    a.i("s_lshl_b32 s47, s41, 12"); a.i("s_lshl_b32 s14, s3, 8"); a.i("s_add_u32 s47, s47, s14"); a.i(f"s_add_u32 s47, s47, {WS_PS}")
    for e in range(4): a.i(f"s_mov_b32 s{60+e}, {0x07060500+e:#x}")
    for st in range(opt.wo_early):
        a.i(f"s_waitcnt vmcnt({8*(3-st)})")
        transpose4(a, WF+16*st, lambda i, w: WR + 16*st + 2*i + w)
    a.i("s_barrier")
    g.stamp(-1, tail=1)
    for st in range(opt.wo_early, 4):
        a.i(f"s_waitcnt vmcnt({8*(3-st)})")
        transpose4(a, WF+16*st, lambda i, w: WR + 16*st + 2*i + w)
    g.stamp(5, tail=2)
    a.i("s_mov_b32 s45, 0")
    a.label("L_A_fretry")
    a.i("s_mov_b32 exec_hi, 0")
    a.i(f"buffer_load_dword v10, v7, s[32:35], s46 offen {opt.ld_flags}")
    a.i("s_waitcnt vmcnt(0)")
    a.i("v_cmp_ne_u32 vcc, v10, v8")
    a.i("s_mov_b64 exec, -1")
    g.retry_tail("L_A_fretry", "L_A_fok")
    g.stamp(-1, tail=3)
    if opt.dbgcnt: a.i("s_mov_b32 s92, s45")
    a.i("s_mov_b32 s45, 0")
    def ogather(fl):
        for sp in range(2):
            for st in range(4):
                a.i(f"buffer_load_dwordx4 {vr(OG+16*sp+4*st)}, v9, s[32:35], {'s43' if sp == 0 else 's44'} offen offset:{st*256} {fl}")
    if opt.o_plain:
        a.i("s_cmp_eq_u32 s58, 1"); a.i("s_cbranch_scc0 L_A_oretry")
        ogather("")
        a.i("s_branch L_A_ogo")
    a.label("L_A_oretry")
    ogather(opt.ld_flags)
    a.label("L_A_ogo")
    k = 0
    for sp in range(2):
        for st in range(4):
            a.i(f"s_waitcnt vmcnt({7-k})")
            for e in range(4):
                c = "0" if k == 0 else vr(CA+4*e)
                a.i(f"v_mfma_f32_16x16x32_bf16 {vr(CA+4*e)}, {vr(OG+16*sp+4*st)}, {vr(WF+16*st+4*e)}, {c}")
            b = OG+16*sp+4*st
            if k == 0: a.i(f"v_max3_u32 v10, v{b}, v{b+1}, v{b+2}"); a.i(f"v_max_u32 v10, v10, v{b+3}")
            else: a.i(f"v_max3_u32 v10, v10, v{b}, v{b+1}"); a.i(f"v_max3_u32 v10, v10, v{b+2}, v{b+3}")
            k += 1
    a.i("v_cmp_eq_u32 vcc, -1, v10")
    g.retry_tail("L_A_oretry", "L_A_ook")
    g.stamp(6, tail=4)
    if opt.regather:
        ogather("sc1")
        a.i("s_waitcnt vmcnt(0)")
        g.stamp(-1, tail=5)
    if opt.dbgcnt:
        a.i("s_mov_b64 exec, 1")
        a.i("v_mov_b32 v18, s45"); a.i("v_mov_b32 v19, s92")
        a.i("global_atomic_add v5, v18, s[28:29]"); a.i("global_atomic_add v5, v19, s[28:29] offset:4")
        a.i("global_atomic_add v5, v6, s[28:29] offset:8")
        a.i("s_mov_b64 exec, -1")
    for r in range(1, 4):
        for e in range(0, 4, 2):
            a.i(f"ds_write2st64_b32 v{12+r}, v{CA+4*e+r}, v{CA+4*(e+1)+r} offset0:{e} offset1:{e+1}")
    a.i("s_waitcnt lgkmcnt(0)")
    a.i("s_barrier")
    if not opt.regather: g.stamp(-1, tail=5)
    R = 20
    for slot in range(3):
        for e in range(0, 4, 2):
            a.i(f"ds_read2st64_b32 {vr(R+4*slot+e,2)}, v12 offset0:{slot*4+e} offset1:{slot*4+e+1}")
    a.i("s_waitcnt lgkmcnt(0)")
    for e in range(4):
        a.i(f"v_add_f32 v{R+e}, v{R+e}, v{R+4+e}"); a.i(f"v_add_f32 v{R+8+e}, v{R+8+e}, v{CA+4*e}")
    for e in range(4): a.i(f"v_add_f32 v{R+e}, v{R+e}, v{R+8+e}")
    for e in range(4): a.i(f"v_perm_b32 v{R+12+e}, v{R+e}, v8, s{60+e}")
    a.i(f"buffer_store_dwordx4 {vr(R+12)}, v17, s[32:35], s47 offen sc1")
    g.stamp(7, tail=6)
    if opt.tstamps:
        a.i("s_waitcnt vmcnt(0)")
        g.stamp(-1, tail=7)
    if opt.stamps:
        a.i("s_cmp_lg_u32 s3, 0"); a.i("s_cbranch_scc1 L_end")
        emit_stamps(g, 0, 8)
    a.i("s_branch L_end")

    a.label("L_B")
    a.i("s_sub_u32 s3, s3, 4")
    if opt.b_exit:
        for k in range(1, 8): g.stamp(k)
        a.i("s_cmp_lg_u32 s3, 0"); a.i("s_cbranch_scc1 L_end")
        emit_stamps(g, 8, 8, first=1)
        a.i("s_branch L_end")
    VF, PF2, T2, OA = 16, 144, 160, 192
    kvbase(a)
    srd(a, 48, 18, 19, 128*256, add="s14")
    srd(a, 36, 20, 21, 128*256, add="s14")
    if opt.rot:
        a.i("s_add_u32 s56, s5, s3"); a.i("s_and_b32 s56, s56, 7"); a.i("s_lshl_b32 s56, s56, 12")
    else:
        a.i("s_mov_b32 s56, 0")
    for n in range(4):
        a.i(f"v_add_u32 v10, {4*n}, v3"); a.i("v_xor_b32 v10, v10, v4"); a.i("v_lshlrev_b32 v10, 4, v10"); a.i(f"v_lshl_add_u32 v{12+n}, v3, 8, v10")
    a.i("s_lshl_b32 s47, s3, 15")
    if opt.bpf:
        srd(a, 52, 22, 23, 4 << 20)
        srd(a, 60, 16, 17, 65536)
        a.i("v_lshlrev_b32 v8, 4, v2")
        a.i("s_lshl_b32 s14, s5, 4"); a.i("s_lshl_b32 s15, s3, 2"); a.i("s_add_u32 s14, s14, s15"); a.i("s_lshl_b32 s14, s14, 13"); a.i("s_lshl_b32 s15, s4, 10"); a.i("s_add_u32 s14, s14, s15")
        for k in range(4):
            a.i(f"buffer_load_dwordx4 {vr(16+4*k)}, v8, s[52:55], s14 offen {opt.bpf_flags}")
            if k < 3: a.i("s_add_u32 s14, s14, 8192")
        a.i("s_lshl_b32 s14, s5, 1"); a.i("s_and_b32 s15, s3, 1"); a.i("s_add_u32 s14, s14, s15"); a.i("s_lshl_b32 s14, s14, 10")
        a.i(f"buffer_load_dwordx4 {vr(32)}, v8, s[60:63], s14 offen")
    NPF = 5 if opt.bpf else 0
    def stream(TH, THK):
        cnt = [NPF]
        pfsig = [not opt.bpf]
        def throttle():
            th = THK if (THK and cnt[0] < 32 + NPF) else TH
            if cnt[0] >= th: a.i(f"s_waitcnt vmcnt({th-1})")
            if not pfsig[0] and cnt[0] - th >= NPF - 1:
                g.signal(CWP); pfsig[0] = True
            cnt[0] += 1
        for t in range(8):
            a.i(f"s_add_u32 s14, s47, {t*4096}"); a.i("s_mov_b32 m0, s14"); a.i(f"s_xor_b32 s14, s56, {t*4096}")
            for n in range(4):
                throttle()
                a.i(f"buffer_load_dwordx4 v{12+n}, s[48:51], s14 offen offset:{n*1024} {opt.kv_flags if opt.k_flags == 'same' else opt.k_flags} lds")
            if t == 0:
                a.i("v_add_u32 v7, s3, v4"); a.i("v_and_b32 v7, 3, v7"); a.i("v_and_b32 v10, 12, v4"); a.i("v_or_b32 v7, v7, v10")
                a.i("v_lshlrev_b32 v7, 4, v7"); a.i("v_lshl_add_u32 v7, v3, 10, v7")
                a.i("s_lshl_b32 s15, s3, 2"); a.i("v_add_u32 v11, s15, v1")
            if opt.stagger and t == opt.stagger - 1: g.signal(CKS)
            if opt.bstamps and t in (1, 3, 5, 7): g.stamp(1 + t // 2)
        if not opt.bstamps: g.stamp(1)
        signaled = False
        for u in range(4):
            for i in range(8):
                if i % 4 == 0: a.i(f"s_xor_b32 s14, s56, {u*8192 + (i>>2)*4096}")
                throttle()
                n = cnt[0] - 1 - NPF
                if opt.wopf and u == opt.wopf - 1 and i == 0:
                    pass
                if not signaled and n - TH >= 31:
                    g.signal(CKD, vaddr=11)
                    signaled = True
                a.i(f"buffer_load_dwordx4 {vr(VF+32*u+4*i)}, v7, s[36:39], s14 offen offset:{(i&3)*256} {opt.kv_flags if opt.v_flags == 'same' else opt.v_flags}")
            if opt.bstamps and u in (0, 1, 3): g.stamp({0: 5, 1: 6, 3: 7}[u])
        assert signaled
    if opt.thr3:
        a.i("s_cmp_eq_u32 s7, 3"); a.i("s_cbranch_scc1 L_B_s3")
        stream(opt.thr, opt.thr_k)
        a.i("s_branch L_B_sdone")
        a.label("L_B_s3")
        stream(opt.thr3, opt.thr3)
        a.label("L_B_sdone")
    else:
        stream(opt.thr, opt.thr_k)
    g.signal(CV)
    if opt.bstamps:
        a.i("s_waitcnt vmcnt(0)")
        a.i("s_cmp_lg_u32 s3, 0"); a.i("s_cbranch_scc1 L_end")
        emit_stamps(g, 8, 8, first=1)
        a.i("s_branch L_end")
    g.stamp(2, tail=1)
    if opt.bench:
        a.i("s_waitcnt vmcnt(0)")
        for k in range(3, 8): g.stamp(k)
        a.i("s_cmp_lg_u32 s3, 0"); a.i("s_cbranch_scc1 L_end")
        emit_stamps(g, 8, 8, first=1)
        a.i("s_branch L_end")
    g.wait_cnt(CP, 1, vaddr=11)
    a.i("v_lshlrev_b32 v9, 4, v2"); a.i("s_lshl_b32 s14, s3, 12"); a.i(f"s_add_u32 s14, s14, {L_P}"); a.i("v_add_u32 v9, s14, v9")
    for u in range(4): a.i(f"ds_read_b128 {vr(PF2+4*u)}, v9 offset:{u*1024}")
    a.i(f"ds_read_b32 v10, v1 offset:{FASTW}")
    a.i("s_waitcnt lgkmcnt(0)")
    a.i(f"s_add_u32 s10, s10, {TAGINC:#x}")
    a.i("v_mov_b32 v8, s10")
    a.i("v_readfirstlane_b32 s58, v10")
    g.stamp(3, tail=2)
    if opt.b_prio_pv: a.i(f"s_setprio {opt.b_prio_pv}")
    for u in range(4):
        L = lambda i, w: VF + 32*u + 4*i + w
        if u < 3:
            a.i(f"s_waitcnt vmcnt({(3-u)*8})")
            for e in range(8):
                w = e >> 1; sel = 's11' if (e & 1) == 0 else 's12'
                for p in range(4):
                    a.i(f"v_perm_b32 v{T2+4*e+p}, v{L(2*p+1,w)}, v{L(2*p,w)}, {sel}")
        else:
            for p in range(4):
                a.i(f"s_waitcnt vmcnt({6-2*p})")
                for e in range(8):
                    w = e >> 1; sel = 's11' if (e & 1) == 0 else 's12'
                    a.i(f"v_perm_b32 v{T2+4*e+p}, v{L(2*p+1,w)}, v{L(2*p,w)}, {sel}")
        for e in range(8):
            c = "0" if u == 0 else vr(OA+4*e)
            a.i(f"v_mfma_f32_16x16x32_bf16 {vr(OA+4*e)}, {vr(T2+4*e)}, {vr(PF2+4*u)}, {c}")
        if u == 2:
            g.wait_cnt(CF, 4)
            for k in range(4):
                a.i(f"s_sub_u32 s14, s3, {k}"); a.i("s_and_b32 s14, s14, 3"); a.i("s_lshl_b32 s14, s14, 6"); a.i(f"s_add_u32 s14, s14, {L_F}")
                a.i(f"v_lshl_add_u32 v10, v4, 2, s14"); a.i(f"ds_read_b32 v{148+k}, v10")
            a.i("v_lshrrev_b32 v12, 2, v4"); a.i("v_lshlrev_b32 v12, 10, v12"); a.i("v_and_b32 v10, 3, v4"); a.i("v_lshl_add_u32 v12, v10, 6, v12"); a.i("v_lshl_add_u32 v12, v3, 4, v12")
            a.i("s_lshl_b32 s43, s41, 12"); a.i("s_lshl_b32 s14, s3, 8"); a.i("s_add_u32 s43, s43, s14"); a.i(f"s_add_u32 s43, s43, {WS_OS}")
            a.i("s_lshl_b32 s44, s41, 4"); a.i("s_lshl_b32 s14, s3, 2"); a.i("s_add_u32 s44, s44, s14"); a.i(f"s_add_u32 s44, s44, {WS_OF}")
            a.i("v_lshlrev_b32 v9, 2, v2")
            for r in range(1, 4):
                a.i(f"s_add_u32 s14, s3, {r}"); a.i("s_and_b32 s14, s14, 3"); a.i("s_lshl_b32 s14, s14, 13"); a.i(f"s_add_u32 s14, s14, {L_OR + (r-1)*2048}"); a.i(f"v_add_u32 v{12+r}, s14, v9")
            a.i("s_lshl_b32 s14, s3, 13"); a.i(f"s_add_u32 s14, s14, {L_OR}"); a.i("v_add_u32 v7, s14, v9")
    g.stamp(4, tail=3)
    for r in range(1, 4):
        for e in range(0, 8, 2):
            a.i(f"ds_write2st64_b32 v{12+r}, v{OA+4*e+r}, v{OA+4*(e+1)+r} offset0:{e} offset1:{e+1}")
    a.i("s_waitcnt lgkmcnt(0)")
    a.i("s_barrier")
    g.stamp(-1, tail=4)
    R = 16
    for slot in range(3):
        for e in range(0, 8, 2):
            a.i(f"ds_read2st64_b32 {vr(R+8*slot+e,2)}, v7 offset0:{slot*8+e} offset1:{slot*8+e+1}")
    FR = 148
    for e in range(8): a.i(f"v_mul_f32 v{OA+4*e}, v{OA+4*e}, v{FR}")
    for slot in range(3):
        a.i(f"s_waitcnt lgkmcnt({4*(2-slot)})")
        for e in range(8): a.i(f"v_fmac_f32 v{OA+4*e}, v{R+8*slot+e}, v{FR+1+slot}")
    for p in range(4): a.i(f"v_cvt_pk_bf16_f32 v{R+32+p}, v{OA+8*p}, v{OA+8*p+4}")
    g.store_var(f"buffer_store_dwordx4 {vr(R+32)}, v12, s[32:35], s43 offen")
    a.i("s_mov_b64 exec, 1")
    g.store_var("buffer_store_dword v8, v5, s[32:35], s44 offen")
    a.i("s_mov_b64 exec, -1")
    g.stamp(5, tail=5)
    a.i("s_cmp_lg_u32 s3, 0"); a.i("s_cbranch_scc1 L_end")
    a.i("v_lshrrev_b32 v9, 5, v2"); a.i("v_lshlrev_b32 v9, 19, v9")
    a.i("v_and_b32 v10, 1, v3"); a.i("v_lshl_add_u32 v9, v10, 8, v9"); a.i("v_lshl_add_u32 v9, v4, 4, v9")
    a.i("s_lshl_b32 s43, s5, 12"); a.i("s_lshl_b32 s14, s4, 9"); a.i("s_add_u32 s43, s43, s14"); a.i(f"s_add_u32 s43, s43, {WS_PS}")
    srd(a, 36, 26, 27, 65536)
    a.i("v_and_b32 v10, 1, v3"); a.i("v_lshlrev_b32 v13, 10, v10"); a.i("v_lshl_add_u32 v13, v4, 3, v13")
    a.i("s_lshl_b32 s46, s6, 14"); a.i("s_lshl_b32 s14, s4, 11"); a.i("s_add_u32 s46, s46, s14"); a.i("s_lshl_b32 s14, s59, 7"); a.i("s_add_u32 s46, s46, s14")
    a.i("s_barrier")
    NP = opt.ppoll
    a.i("s_mov_b32 s14, 0x0c0c0400"); a.i("s_mov_b32 s15, 0x04000c0c")
    for k in range(4): a.i(f"s_add_u32 s{48+k}, s43, {k*32*4096}")
    def pissue(z):
        for k in range(4):
            a.i(f"buffer_load_dwordx4 {vr(16+16*z+4*k)}, v9, s[32:35], s{48+k} offen sc1")
    a.i("s_mov_b32 s45, 0")
    for z in range(NP):
        pissue(z)
        if z < NP - 1 and opt.psleep: a.i(f"s_sleep {opt.psleep}")
    a.label("L_B_pretry")
    for z in range(NP):
        R = 16 + 16*z
        a.i(f"s_waitcnt vmcnt({4*(NP-1)})")
        for k in range(4):
            d = 10 if k == 0 else 11
            a.i(f"v_perm_b32 v{d}, v{R+4*k+1}, v{R+4*k}, s14"); a.i(f"v_perm_b32 v12, v{R+4*k+3}, v{R+4*k+2}, s15")
            if k == 0:
                a.i("v_or_b32 v10, v10, v12"); a.i("v_xor_b32 v10, v10, v8")
            else:
                a.i("v_or_b32 v11, v11, v12"); a.i("v_xor_b32 v11, v11, v8"); a.i("v_or_b32 v10, v10, v11")
        a.i("v_cmp_ne_u32 vcc, 0, v10")
        a.i(f"s_cbranch_vccz L_B_pok{z}")
        pissue(z)
    a.i("s_add_u32 s45, s45, 1")
    a.i(f"s_cmp_le_u32 s45, {opt.spin_limit}")
    a.i("s_cbranch_scc1 L_B_pretry")
    a.i("s_waitcnt vmcnt(0)")
    for z in range(NP):
        R = 16 + 16*z
        a.label(f"L_B_pok{z}")
        for e in range(4):
            a.i(f"v_add_f32 v{80+e}, v{R+e}, v{R+4+e}"); a.i(f"v_add_f32 v{84+e}, v{R+8+e}, v{R+12+e}")
        if z < NP - 1: a.i("s_branch L_B_psum")
    a.label("L_B_psum")
    g.stamp(6, tail=6)
    R = 80
    for e in range(4): a.i(f"v_add_f32 v{R+e}, v{R+e}, v{R+4+e}")
    for e in range(4): a.i(f"v_mov_b32 v{R+4+e}, v{R+e}")
    for e in range(4): a.i(f"v_permlane32_swap_b32 v{R+e}, v{R+4+e}")
    for e in range(4): a.i(f"v_add_f32 v{R+e}, v{R+e}, v{R+4+e}")
    a.i(f"v_cvt_pk_bf16_f32 v{R+8}, v{R}, v{R+1}"); a.i(f"v_cvt_pk_bf16_f32 v{R+9}, v{R+2}, v{R+3}")
    a.i("s_mov_b32 exec_hi, 0")
    a.i(f"buffer_store_dwordx2 {vr(R+8,2)}, v13, s[36:39], s46 offen")
    a.i("s_or_b32 s14, s4, s7"); a.i("s_cmp_lg_u32 s14, 0"); a.i("s_cbranch_scc1 L_B_fin")
    a.i("s_mov_b64 exec, 1")
    a.i("s_lshl_b32 s14, s6, 7")
    a.i(f"buffer_store_dword v8, v5, s[32:35], s14 offen sc1")
    a.label("L_B_fin")
    a.i("s_mov_b64 exec, -1")
    if opt.stamps:
        a.i("s_waitcnt vmcnt(0)")
        a.i("s_memrealtime s[78:79]")
        emit_stamps(g, 8, 8, first=1)
    a.label("L_end"); a.i("s_endpgm")

    out = Asm()
    out(HEADER + f"; @launch grid=(256,1,1) block=(512,1,1) lds={L_END}")
    out('.amdgcn_target "amdgcn-amd-amdhsa--gfx950"\n.text')
    lines, n = hazard.fix(a.lines)
    out.lines += lines
    out('.section .rodata,"a"')
    out(kernel_desc(NAME, 256))
    return out.text(), n

def emit_stamps(g, slot0, n, first=0):
    a = g.a
    a.i("s_waitcnt lgkmcnt(0)")
    a.i(f"s_add_u32 s90, s30, {STAMPOFF}"); a.i("s_addc_u32 s91, s31, 0")
    a.i("s_lshl_b32 s14, s2, 7"); a.i("s_add_u32 s90, s90, s14"); a.i("s_addc_u32 s91, s91, 0")
    a.i("s_mov_b64 exec, 1")
    for k in range(first, n):
        a.i(f"v_mov_b32 v20, s{64+2*k}"); a.i(f"v_mov_b32 v21, s{65+2*k}")
        a.i(f"global_store_dwordx2 v5, v[20:21], s[90:91] offset:{(slot0+k-first)*8}")
        a.i("s_nop 1")
    a.i("s_mov_b64 exec, -1")

if __name__ == "__main__":
    o = Opt()
    out = sys.argv[1]
    for kv in sys.argv[2:]:
        k, v = kv.split("=")
        cur = getattr(o, k)
        if isinstance(cur, bool): v = v in ("1", "True", "true")
        elif isinstance(cur, int): v = int(v)
        else: v = v.replace("+", " ")
        setattr(o, k, v)
    t, n = gen(o)
    open(out, "w").write(t)
    print(out, "nops inserted:", n, "lines:", t.count("\n"))
```

```python
import sys, struct
from asmlib import *
import hazard

NAME = "standalone__sliding_block_cached__sampling_kernel"
def f2u(x): return struct.unpack('<I', struct.pack('<f', x))[0]
SCALE = 0.08838834764831845 * 1.4426950408889634

WS_XID = 0x8000
WS_OF = 0x9000
WS_QS = 0x10000
WS_ST = 0x200000
WS_OS = 0x300000
WS_PS = 0x500000
WS_SIZE = 0x800000
STAMPOFF = 256 << 20
TAGINC = 0x9E3779B9

L_K = 0
L_OR = 0
L_CR = 32768
L_QR = 131072
L_P = 131072
L_CNT = 147456
L_F = L_CNT + 64
L_Q = L_CNT + 512
L_END = L_Q + 4096
CQ, CKS, CV, CO, CC, CP, CF, CQ2, CKD, FASTW = 0, 4, 8, 12, 16, 20, 36, 40, 44, 60
CWP = CO

class Opt:
    stamps = False
    kv_flags = "nt"
    w_flags = "nt"
    x_flags = ""
    ld_flags = "sc1"
    spin_limit = 30000
    a_prio = 2
    b_prio_pv = 3
    rot = 1
    thr = 7
    wo_mode = 1
    wq_ahead = 2
    force_slow = 0
    bench = 0
    a_stop = 0
    oflag = 1
    cf_late = 1
    wstamps = 0
    thr_end = 0
    end_from = 16
    wo_flags = "nt"
    srot = 1
    wq_ahead3 = 0
    k_flags = "same"
    v_flags = "same"
    cwpstamp = 0
    bpf = 0
    bpf_flags = ""
    wopf = 0
    ppoll = 3
    psleep = 6
    ptouch_flags = ""
    touch = 1
    regather = 0
    o_plain = 1
    dbgcnt = 0
    ntx = 4
    thr3 = 0
    pf = 0
    pf_flags = ""
    tstamps = 0
    wo_early = 2
    b_exit = 0
    wq_rowrot = 0
    wq_colxor = 0
    bstamps = 0
    stagger = 0
    thr_k = 0
    stag_bit = 0
    xid_tries = 4

def vr(b, n=4): return f"v[{b}:{b+n-1}]" if n > 1 else f"v{b}"

def srd(a, d, lo, hi, size, add=None):
    if add is None:
        a.i(f"s_mov_b32 s{d}, s{lo}"); a.i(f"s_mov_b32 s{d+1}, s{hi}")
    else:
        a.i(f"s_add_u32 s{d}, s{lo}, {add}"); a.i(f"s_addc_u32 s{d+1}, s{hi}, 0")
    a.i(f"s_mov_b32 s{d+2}, {size}"); a.i(f"s_mov_b32 s{d+3}, 0x20000")

class G:
    def __init__(self, opt):
        self.a = Asm(); self.o = opt; self.nl = 0
    def lab(self, p):
        self.nl += 1; return f"L{p}{self.nl}"
    def stamp(self, k, tail=None):
        if self.o.tstamps:
            if tail is None and k != 0: return
            if tail is not None: k = tail
            if k < 0: return
        elif tail is not None and k < 0: return
        if self.o.stamps:
            self.a.i(f"s_memrealtime s[{64+2*k}:{65+2*k}]")
    def signal(self, cnt, vaddr=1):
        a = self.a
        a.i("s_mov_b64 exec, 1")
        a.i(f"ds_add_u32 v{vaddr}, v6 offset:{cnt}")
        a.i("s_mov_b64 exec, -1")
    def wait_cnt(self, cnt, n, vt=10, vaddr=1, sleep=0):
        a = self.a
        L = self.lab("w")
        a.i("s_mov_b32 s15, 0")
        a.label(L)
        if sleep: a.i(f"s_sleep {sleep}")
        a.i(f"ds_read_b32 v{vt}, v{vaddr} offset:{cnt}")
        a.i("s_add_u32 s15, s15, 1")
        a.i("s_waitcnt lgkmcnt(0)")
        a.i(f"v_readfirstlane_b32 s14, v{vt}")
        a.i(f"s_cmp_gt_u32 s15, {self.o.spin_limit*16}")
        a.i(f"s_cbranch_scc1 {L}_o")
        a.i(f"s_cmp_ge_u32 s14, {n}")
        a.i(f"s_cbranch_scc0 {L}")
        a.label(f"{L}_o")
    def retry_tail(self, Lretry, Lok):
        a = self.a
        a.i("s_add_u32 s45, s45, 1")
        a.i(f"s_cmp_gt_u32 s45, {self.o.spin_limit}")
        a.i(f"s_cbranch_scc1 {Lok}")
        a.i(f"s_cbranch_vccnz {Lretry}")
        a.label(Lok)
    def store_var(self, ins):
        a = self.a; L = self.lab("s")
        a.i("s_cmp_eq_u32 s58, 1"); a.i(f"s_cbranch_scc1 {L}_f")
        a.i(ins + " sc1"); a.i(f"s_branch {L}_d")
        a.label(f"{L}_f"); a.i(ins); a.label(f"{L}_d")

def transpose4(a, dst, L):
    for e in range(4):
        w = e >> 1; sel = 's11' if (e & 1) == 0 else 's12'
        for p in range(4):
            a.i(f"v_perm_b32 v{dst+4*e+p}, v{L(2*p+1,w)}, v{L(2*p,w)}, {sel}")

def kvbase(a):
    a.i("s_lshr_b32 s14, s5, 1"); a.i("s_lshl_b32 s14, s14, 3"); a.i("s_add_u32 s14, s14, s4"); a.i("s_lshl_b32 s14, s14, 12")
    a.i("s_lshl_b32 s15, s9, 9"); a.i("s_add_u32 s14, s14, s15"); a.i("s_lshl_b32 s15, s3, 7"); a.i("s_add_u32 s14, s14, s15")
    a.i("s_add_u32 s14, s14, 3072"); a.i("s_lshl_b32 s14, s14, 8")

def astop(g, n):
    opt = g.o; a = g.a
    if opt.a_stop == n:
        for k in range(n + 1, 8): g.stamp(k)
        if opt.stamps:
            a.i("s_cmp_lg_u32 s3, 0"); a.i("s_cbranch_scc1 L_end")
            emit_stamps(g, 0, 8)
        a.i("s_branch L_end")

def gen(opt):
    g = G(opt); a = g.a
    kernel_begin(a, NAME)
    a.i("s_cmp_ge_u32 s2, 256"); a.i("s_cbranch_scc1 L_end")
    g.stamp(0)
    a.i("s_load_dwordx16 s[16:31], s[0:1], 0")
    a.i("v_lshrrev_b32 v1, 6, v0"); a.i("v_and_b32 v2, 63, v0")
    a.i("v_readfirstlane_b32 s3, v1")
    a.i("s_and_b32 s4, s2, 7")
    a.i("s_lshr_b32 s5, s2, 3")
    a.i("s_lshr_b32 s6, s5, 3")
    a.i("s_and_b32 s7, s5, 7")
    a.i(f"s_xor_b32 s59, s7, {opt.ntx}")
    a.i("s_bfe_u32 s8, s5, 0x20001")
    a.i("s_and_b32 s9, s5, 1")
    a.i("v_lshrrev_b32 v3, 4, v2"); a.i("v_and_b32 v4, 15, v2")
    a.i("v_mov_b32 v5, 0"); a.i("v_mov_b32 v6, 1")
    a.i(f"v_mov_b32 v1, {L_CNT}")
    a.i("s_mov_b32 s11, 0x05040100"); a.i("s_mov_b32 s12, 0x07060302")
    a.i("s_lshl_b32 s40, s4, 5"); a.i("s_add_u32 s41, s40, s5")
    a.i("s_and_b32 s42, s41, 0xfffffff8")
    a.i("s_cmp_ge_u32 s3, 4"); a.i("s_cbranch_scc1 L_B")

    if opt.a_prio: a.i(f"s_setprio {opt.a_prio}")
    a.i("s_cmp_lg_u32 s3, 0"); a.i("s_cbranch_scc1 L_P1")
    a.i("v_lshl_add_u32 v7, v2, 2, v1"); a.i("ds_write_b32 v7, v5 offset:0")
    a.label("L_P1")
    XA, WB, T, ACC = 16, 32, 96, 128
    a.i("v_lshlrev_b32 v8, 10, v4"); a.i("v_lshl_add_u32 v8, v3, 4, v8")
    a.i("v_lshlrev_b32 v9, 16, v3"); a.i("v_lshl_add_u32 v9, v4, 3, v9")
    a.i("s_lshl_b32 s14, s6, 14"); a.i("s_lshl_b32 s15, s3, 8"); a.i("s_add_u32 s45, s14, s15")
    a.i("s_lshl_b32 s44, s3, 20"); a.i("s_lshl_b32 s14, s4, 10"); a.i("s_add_u32 s44, s44, s14"); a.i(f"s_xor_b32 s14, s7, {opt.wq_colxor}"); a.i("s_lshl_b32 s14, s14, 7"); a.i("s_add_u32 s44, s44, s14")
    a.i("s_lshl_b32 s47, s3, 15")
    a.i("s_lshl_b32 s15, s6, 7")
    a.i("s_waitcnt lgkmcnt(0)")
    a.i("s_load_dword s10, s[30:31], s15")
    srd(a, 48, 22, 23, 4 << 20)
    srd(a, 52, 16, 17, 65536)
    srd(a, 32, 30, 31, WS_SIZE)
    def xidpub():
        a.i("s_getreg_b32 s57, hwreg(HW_REG_XCC_ID, 0, 4)")
        a.i("s_waitcnt lgkmcnt(0)")
        a.i(f"s_add_u32 s10, s10, {TAGINC:#x}")
        a.i("s_and_b32 s14, s10, 0xfffffff0"); a.i("s_or_b32 s14, s14, s57"); a.i("v_mov_b32 v144, s14")
        a.i("s_lshl_b32 s14, s41, 2"); a.i(f"s_add_u32 s14, s14, {WS_XID}")
        a.i("s_mov_b64 exec, 1")
        a.i("buffer_store_dword v144, v5, s[32:35], s14 offen")
        a.i("s_mov_b64 exec, -1")
    if opt.stagger: xidpub()
    if opt.stagger:
        a.i(f"s_bitcmp1_b32 s5, {opt.stag_bit}"); a.i("s_cbranch_scc0 L_A_nostag")
        g.wait_cnt(CKS, 4)
        a.label("L_A_nostag")
    if opt.pf:
        a.i("s_lshl_b32 s14, s6, 7"); a.i("s_lshl_b32 s15, s3, 5"); a.i("s_add_u32 s14, s14, s15"); a.i("s_lshl_b32 s14, s14, 13")
        a.i("s_lshl_b32 s15, s4, 10"); a.i("s_add_u32 s14, s14, s15"); a.i("s_lshl_b32 s15, s7, 7"); a.i("s_add_u32 s14, s14, s15")
        a.i("v_lshlrev_b32 v10, 13, v2")
        a.i("s_mov_b32 exec_hi, 0")
        a.i(f"buffer_load_dword v146, v10, s[48:51], s14 offen {opt.pf_flags}")
        a.i("s_lshl_b32 s14, s6, 14"); a.i("s_lshl_b32 s15, s7, 11"); a.i("s_add_u32 s14, s14, s15"); a.i("s_lshl_b32 s15, s3, 9"); a.i("s_add_u32 s14, s14, s15")
        a.i("v_lshlrev_b32 v10, 7, v2")
        a.i("s_mov_b64 exec, 0xf")
        a.i(f"buffer_load_dword v147, v10, s[52:55], s14 offen")
        a.i("s_mov_b64 exec, -1")
        if not opt.stagger: xidpub()
        a.i("s_waitcnt vmcnt(0)")
    if opt.bpf:
        g.wait_cnt(CWP, 4)
        if opt.cwpstamp: g.stamp(1)
    def qproj(AHEAD, SFX):
        seq = []
        def wqstep(s_):
            if opt.srot:
                a.i(f"s_add_u32 s14, s6, {s_}"); a.i("s_and_b32 s14, s14, 3"); a.i("s_lshl_b32 s14, s14, 18"); a.i("s_add_u32 s15, s44, s14")
                for i in range(8):
                    a.i(f"buffer_load_dwordx2 {vr(WB+16*s_+2*i,2)}, v9, s[48:51], s15 offen {opt.w_flags}")
                    if i < 7: a.i(f"s_add_u32 s15, s15, 8192")
                    seq.append(('w', s_))
                return
            for i in range(8):
                a.i(f"buffer_load_dwordx2 {vr(WB+16*s_+2*i,2)}, v9, s[48:51], s44 offen {opt.w_flags}")
                a.i(f"s_add_u32 s44, s44, 8192")
                seq.append(('w', s_))
            if s_ < 3: a.i(f"s_add_u32 s44, s44, {24*8192}")
        wqstep(0)
        for s2 in range(4):
            if opt.srot:
                a.i(f"s_add_u32 s14, s6, {s2}"); a.i("s_and_b32 s14, s14, 3"); a.i("s_lshl_b32 s14, s14, 6"); a.i("s_add_u32 s14, s14, s45")
                a.i(f"buffer_load_dwordx4 {vr(XA+4*s2)}, v8, s[52:55], s14 offen {opt.x_flags}")
            else:
                a.i(f"buffer_load_dwordx4 {vr(XA+4*s2)}, v8, s[52:55], s45 offen offset:{s2*64} {opt.x_flags}")
            seq.append(('x', 0))
        a.i("s_barrier")
        a.i("s_lshl_b32 s46, s42, 2"); a.i(f"s_add_u32 s46, s46, {WS_XID}")
        a.i("v_lshlrev_b32 v145, 2, v2")
        def xidload():
            a.i("s_mov_b64 exec, 0xff")
            a.i("buffer_load_dword v146, v145, s[32:35], s46 offen sc1")
            a.i("s_mov_b64 exec, -1")
        issued = 1
        while issued < min(4, AHEAD):
            wqstep(issued); issued += 1
        xidpub(); seq.append(('s', 0))
        a.i("v_mov_b32 v8, s10")
        for s_ in range(4):
            last = max([i for i, e in enumerate(seq) if e == ('w', s_) or (s_ == 0 and e[0] == 'x') or (s_ == 2 and e[0] == 'i')])
            a.i(f"s_waitcnt vmcnt({len(seq)-1-last})")
            if s_ == 0:
                xidload(); seq.append(('i', 0))
                if opt.touch & 2:
                    a.i("v_lshlrev_b32 v7, 4, v2")
                    a.i("s_lshl_b32 s14, s41, 12"); a.i("s_lshl_b32 s15, s3, 10"); a.i("s_add_u32 s14, s14, s15"); a.i(f"s_add_u32 s14, s14, {WS_QS}")
                    a.i("buffer_load_dwordx4 v[240:243], v7, s[32:35], s14 offen sc1"); seq.append(('t', 0))
                    a.i("s_lshl_b32 s14, s41, 10"); a.i("s_lshl_b32 s15, s3, 8"); a.i("s_add_u32 s14, s14, s15"); a.i(f"s_add_u32 s14, s14, {WS_ST}")
                    a.i("s_mov_b64 exec, 0xffff")
                    a.i("buffer_load_dwordx4 v[244:247], v7, s[32:35], s14 offen sc1"); seq.append(('t', 0))
                    a.i("s_mov_b64 exec, -1")
            if issued < 4:
                wqstep(issued); issued += 1
            if s_ == 0 and not opt.cwpstamp: g.stamp(1)
            if s_ == 2:
                a.i("s_mov_b32 s45, 0"); a.i("s_mov_b32 s58, 0")
                a.i(f"s_branch L_A_xchk{SFX}")
                a.label(f"L_A_xretry{SFX}")
                xidload()
                a.i("s_waitcnt vmcnt(0)")
                a.label(f"L_A_xchk{SFX}")
                a.i("s_mov_b64 exec, 0xff")
                a.i("v_xor_b32 v147, v146, v8"); a.i("v_and_b32 v147, 0xfffffff0, v147"); a.i("v_cmp_ne_u32 vcc, 0, v147")
                a.i("s_mov_b64 exec, -1")
                a.i(f"s_cbranch_vccz L_A_xok{SFX}")
                a.i("s_add_u32 s45, s45, 1")
                a.i(f"s_cmp_lt_u32 s45, {opt.xid_tries}")
                a.i(f"s_cbranch_scc1 L_A_xretry{SFX}")
                a.i(f"s_branch L_A_xdone{SFX}")
                a.label(f"L_A_xok{SFX}")
                a.i("s_mov_b64 exec, 0xff")
                a.i("v_and_b32 v147, 15, v146"); a.i("v_cmp_ne_u32 vcc, s57, v147")
                a.i("s_mov_b64 exec, -1")
                a.i("s_cmp_eq_u64 vcc, 0"); a.i("s_cselect_b32 s58, 1, 0")
                a.label(f"L_A_xdone{SFX}")
                if opt.force_slow: a.i("s_mov_b32 s58, 0")
                for r in range(4): a.i(f"v_mov_b32 v{148+r}, -1")
                a.i("v_lshlrev_b32 v7, 4, v2")
                a.i("s_lshl_b32 s43, s41, 12"); a.i("s_lshl_b32 s14, s3, 10"); a.i("s_add_u32 s43, s43, s14"); a.i(f"s_add_u32 s46, s43, {WS_OS}")
                g.store_var("buffer_store_dwordx4 v[148:151], v7, s[32:35], s46 offen"); seq.append(('p', 0))
            tb = T + (s_ & 1) * 16
            transpose4(a, tb, lambda i, w: WB + 16*s_ + 2*i + w)
            for e in range(4):
                c = "0" if s_ == 0 else vr(ACC+4*e)
                a.i(f"v_mfma_f32_16x16x32_bf16 {vr(ACC+4*e)}, {vr(XA+4*s_)}, {vr(tb+4*e)}, {c}")
    if opt.wq_ahead3 and opt.wq_ahead3 != opt.wq_ahead:
        a.i("s_cmp_eq_u32 s7, 3"); a.i("s_cbranch_scc1 L_A_q3")
        qproj(opt.wq_ahead, "a")
        a.i("s_branch L_A_qdone")
        a.label("L_A_q3")
        qproj(opt.wq_ahead3, "b")
        a.label("L_A_qdone")
    else:
        qproj(opt.wq_ahead, "a")
    a.i("v_lshlrev_b32 v9, 2, v2"); a.i("s_lshl_b32 s14, s3, 10"); a.i(f"s_add_u32 s14, s14, {L_QR}"); a.i("v_add_u32 v7, s14, v9")
    for r in range(4):
        for e in range(0, 4, 2):
            a.i(f"ds_write2st64_b32 v7, v{ACC+4*e+r}, v{ACC+4*(e+1)+r} offset0:{r*16+e} offset1:{r*16+e+1}")
    a.i("v_mov_b32 v10, s58"); a.i(f"ds_write_b32 v1, v10 offset:{FASTW}")
    a.i("s_waitcnt lgkmcnt(0)")
    g.signal(CQ)
    g.wait_cnt(CQ, 4)
    a.i("s_lshl_b32 s14, s3, 12"); a.i(f"s_add_u32 s14, s14, {L_QR}"); a.i("v_add_u32 v7, s14, v9")
    R = 152
    for src in range(4):
        for e in range(0, 4, 2):
            a.i(f"ds_read2st64_b32 {vr(R+4*src+e,2)}, v7 offset0:{src*4+e} offset1:{src*4+e+1}")
    a.i("v_lshlrev_b32 v9, 10, v3"); a.i("v_and_b32 v10, 1, v4"); a.i("v_lshl_add_u32 v9, v10, 9, v9")
    a.i("v_lshrrev_b32 v10, 3, v4"); a.i("v_lshl_add_u32 v9, v10, 8, v9"); a.i("v_bfe_u32 v10, v4, 1, 2"); a.i("v_lshl_add_u32 v9, v10, 4, v9")
    a.i("s_lshl_b32 s43, s41, 12"); a.i("s_lshl_b32 s14, s3, 6"); a.i("s_add_u32 s43, s43, s14"); a.i(f"s_add_u32 s43, s43, {WS_QS}")
    a.i("s_waitcnt lgkmcnt(0)")
    for e in range(4):
        a.i(f"v_add_f32 v{R+e}, v{R+e}, v{R+4+e}"); a.i(f"v_add_f32 v{R+8+e}, v{R+8+e}, v{R+12+e}")
    for e in range(4): a.i(f"v_add_f32 v{R+e}, v{R+e}, v{R+8+e}")
    a.i(f"v_cvt_pk_bf16_f32 v{R+4}, v{R}, v{R+1}"); a.i(f"v_cvt_pk_bf16_f32 v{R+5}, v{R+2}, v{R+3}")
    a.i(f"v_perm_b32 v{R+8}, v{R+4}, v8, s11"); a.i(f"v_perm_b32 v{R+9}, v{R+4}, v8, s12")
    a.i(f"v_perm_b32 v{R+10}, v{R+5}, v8, s11"); a.i(f"v_perm_b32 v{R+11}, v{R+5}, v8, s12")
    a.i("s_waitcnt vmcnt(0)")
    if opt.touch & 1:
        a.i("v_lshlrev_b32 v7, 4, v2")
        a.i("buffer_load_dwordx4 v[248:251], v7, s[32:35], s46 offen sc1")
    g.store_var(f"buffer_store_dwordx4 {vr(R+8)}, v9, s[32:35], s43 offen")
    g.stamp(2)
    astop(g, 2)
    QR = 176
    a.i("v_lshrrev_b32 v9, 2, v4"); a.i("v_lshlrev_b32 v9, 13, v9"); a.i("v_and_b32 v10, 3, v4"); a.i("v_lshl_add_u32 v9, v10, 6, v9"); a.i("v_lshl_add_u32 v9, v3, 4, v9")
    a.i("s_lshl_b32 s43, s42, 12"); a.i("s_lshl_b32 s14, s8, 10"); a.i("s_add_u32 s43, s43, s14"); a.i(f"s_add_u32 s43, s43, {WS_QS}")
    a.i("s_lshr_b32 s14, s3, 1"); a.i("s_lshl_b32 s14, s14, 12"); a.i("s_add_u32 s43, s43, s14")
    a.i("s_and_b32 s14, s3, 1"); a.i("s_lshl_b32 s14, s14, 8"); a.i("s_add_u32 s43, s43, s14")
    a.i("s_mov_b32 s45, 0")
    a.label("L_A_qretry")
    for u in range(2):
        a.i(f"buffer_load_dwordx4 {vr(QR+4*u)}, v9, s[32:35], s43 offen offset:{u*512} {opt.ld_flags}")
    a.i("v_mov_b32 v10, 0")
    a.i("s_waitcnt vmcnt(0)")
    for k in range(4):
        a.i(f"v_perm_b32 v11, v{QR+2*k+1}, v{QR+2*k}, s11")
        a.i(f"v_xor_b32 v11, v11, v8")
        a.i(f"v_or_b32 v10, v10, v11")
    a.i("v_cmp_ne_u32 vcc, 0, v10")
    g.retry_tail("L_A_qretry", "L_A_qok")
    for k in range(4):
        a.i(f"v_perm_b32 v{QR+8+k}, v{QR+2*k+1}, v{QR+2*k}, s12")
    a.i("v_lshlrev_b32 v9, 4, v2"); a.i("s_lshl_b32 s14, s3, 10"); a.i(f"s_add_u32 s14, s14, {L_Q}"); a.i("v_add_u32 v10, s14, v9")
    a.i(f"ds_write_b128 v10, {vr(QR+8)}")
    for st in range(4):
        a.i(f"v_add_u32 v10, {4*st}, v3"); a.i("v_xor_b32 v10, v10, v4"); a.i("v_lshlrev_b32 v10, 4, v10"); a.i("v_lshl_add_u32 v10, v4, 8, v10"); a.i(f"v_add_u32 v{12+st}, s47, v10")
    a.i("s_waitcnt lgkmcnt(0)")
    g.signal(CQ2)
    g.stamp(3)
    astop(g, 3)
    WR, WF = 32, 96
    srd(a, 48, 24, 25, 4 << 20)
    a.i("v_lshlrev_b32 v16, 15, v3"); a.i("v_lshl_add_u32 v16, v4, 3, v16")
    a.i("s_lshl_b32 s46, s4, 2"); a.i("s_add_u32 s46, s46, s3"); a.i("s_lshl_b32 s46, s46, 17"); a.i("s_lshl_b32 s15, s59, 7"); a.i("s_add_u32 s46, s46, s15")
    def wostep(st):
        if opt.srot:
            a.i(f"s_add_u32 s14, s6, {st}"); a.i("s_and_b32 s14, s14, 3"); a.i("s_lshl_b32 s14, s14, 13"); a.i("s_add_u32 s15, s46, s14")
            for i in range(8):
                if i == 4: a.i("s_add_u32 s15, s15, 4096")
                a.i(f"buffer_load_dwordx2 {vr(WR+16*st+2*i,2)}, v16, s[48:51], s15 offen offset:{(i&3)*1024} {opt.wo_flags}")
            return
        for i in range(8):
            if i % 4 == 0 and (st or i): a.i("s_add_u32 s46, s46, 4096")
            a.i(f"buffer_load_dwordx2 {vr(WR+16*st+2*i,2)}, v16, s[48:51], s46 offen offset:{(i&3)*1024} {opt.wo_flags}")
    KB = [96, 128]; QF = 160; SA = 192; PF = 224; ST = 240
    def kread(p):
        for tt in range(2):
            for st in range(4):
                a.i(f"ds_read_b128 {vr(KB[p&1]+16*tt+4*st)}, v{12+st} offset:{(2*p+tt)*4096}")
    g.wait_cnt(CQ2, 4)
    a.i(f"v_add_u32 v10, {L_Q}, v9")
    for st in range(4): a.i(f"ds_read_b128 {vr(QF+4*st)}, v10 offset:{st*1024}")
    a.i("s_lshl_b32 s14, s3, 2"); a.i("v_add_u32 v7, s14, v1")
    g.wait_cnt(CKD, 1, vaddr=7)
    kread(0); kread(1)
    for p in range(4):
        a.i(f"s_waitcnt lgkmcnt({8 if p < 3 else 0})")
        for tt in range(2):
            t = 2*p + tt
            for st in range(4):
                c = "0" if st == 0 else vr(SA+4*t)
                a.i(f"v_mfma_f32_16x16x32_bf16 {vr(SA+4*t)}, {vr(KB[p&1]+16*tt+4*st)}, {vr(QF+4*st)}, {c}")
        if p + 2 < 4: kread(p + 2)
    a.i(f"s_mov_b32 s13, {f2u(SCALE):#x}")
    a.i(f"v_max3_f32 v10, v{SA}, v{SA+1}, v{SA+2}")
    for r in range(3, 31, 2): a.i(f"v_max3_f32 v10, v10, v{SA+r}, v{SA+r+1}")
    a.i(f"v_max_f32 v10, v10, v{SA+31}")
    a.i("v_mov_b32 v11, v10"); a.i("v_permlane16_swap_b32 v10, v11"); a.i("v_max_f32 v10, v10, v11")
    a.i("v_mov_b32 v11, v10"); a.i("v_permlane32_swap_b32 v10, v11"); a.i("v_max_f32 v10, v10, v11")
    a.i("v_mul_f32 v12, s13, v10")
    for r in range(32): a.i(f"v_fma_f32 v{SA+r}, v{SA+r}, s13, -v12")
    for r in range(32): a.i(f"v_exp_f32 v{SA+r}, v{SA+r}")
    for k in range(16): a.i(f"v_cvt_pk_bf16_f32 v{PF+k}, v{SA+2*k}, v{SA+2*k+1}")
    a.i("v_lshlrev_b32 v9, 4, v2"); a.i("s_lshl_b32 s14, s3, 12"); a.i(f"s_add_u32 s14, s14, {L_P}"); a.i("v_add_u32 v9, s14, v9")
    for u in range(4): a.i(f"ds_write_b128 v9, {vr(PF+4*u)} offset:{u*1024}")
    a.i(f"v_add_f32 v10, v{SA}, v{SA+1}"); a.i(f"v_add_f32 v11, v{SA+2}, v{SA+3}")
    for r in range(4, 32, 2):
        a.i(f"v_add_f32 v10, v10, v{SA+r}"); a.i(f"v_add_f32 v11, v11, v{SA+r+1}")
    a.i("s_waitcnt lgkmcnt(0)")
    g.signal(CP, vaddr=7)
    a.i("v_add_f32 v10, v10, v11")
    a.i("v_mov_b32 v11, v10"); a.i("v_permlane16_swap_b32 v10, v11"); a.i("v_add_f32 v10, v10, v11")
    a.i("v_mov_b32 v11, v10"); a.i("v_permlane32_swap_b32 v10, v11"); a.i("v_add_f32 v13, v10, v11")
    a.i("v_mov_b32 v14, v8"); a.i("v_mov_b32 v15, v8")
    a.i("s_lshl_b32 s43, s41, 10"); a.i("s_lshl_b32 s14, s3, 8"); a.i("s_add_u32 s43, s43, s14"); a.i(f"s_add_u32 s43, s43, {WS_ST}")
    a.i("v_lshlrev_b32 v9, 4, v4")
    a.i("s_mov_b64 exec, 0xffff")
    g.store_var("buffer_store_dwordx4 v[12:15], v9, s[32:35], s43 offen")
    a.i("s_mov_b64 exec, -1")
    g.stamp(4)
    if opt.touch & 4:
        a.i("v_lshlrev_b32 v10, 4, v2")
        a.i("s_lshl_b32 s14, s41, 12"); a.i("s_lshl_b32 s15, s3, 10"); a.i("s_add_u32 s14, s14, s15"); a.i(f"s_add_u32 s14, s14, {WS_PS}")
        a.i(f"buffer_load_dwordx4 v[252:255], v10, s[32:35], s14 offen {opt.ptouch_flags}")
    if opt.pf:
        a.i("s_lshl_b32 s14, s4, 9"); a.i("s_lshl_b32 s15, s6, 7"); a.i("s_add_u32 s14, s14, s15"); a.i("s_lshl_b32 s15, s3, 5"); a.i("s_add_u32 s14, s14, s15"); a.i("s_lshl_b32 s14, s14, 10")
        a.i("s_lshl_b32 s15, s7, 7"); a.i("s_add_u32 s14, s14, s15")
        a.i("v_lshlrev_b32 v10, 10, v2")
        a.i("s_mov_b32 exec_hi, 0")
        a.i(f"buffer_load_dword v17, v10, s[48:51], s14 offen {opt.pf_flags}")
        a.i("s_mov_b64 exec, -1")
    a.i("s_and_b32 s43, s41, 0xfffffffe"); a.i("s_lshl_b32 s43, s43, 10"); a.i(f"s_add_u32 s43, s43, {WS_ST}")
    a.i("v_lshl_add_u32 v9, v3, 9, v9")
    a.i("s_mov_b32 s45, 0")
    a.label("L_A_sretry")
    a.i(f"buffer_load_dwordx4 {vr(ST)}, v9, s[32:35], s43 offen {opt.ld_flags}")
    a.i(f"buffer_load_dwordx4 {vr(ST+4)}, v9, s[32:35], s43 offen offset:256 {opt.ld_flags}")
    a.i("s_waitcnt vmcnt(0)")
    a.i(f"v_xor_b32 v10, v{ST+2}, v8"); a.i(f"v_xor_b32 v11, v{ST+3}, v8"); a.i("v_or_b32 v10, v10, v11")
    a.i(f"v_xor_b32 v11, v{ST+6}, v8"); a.i("v_or_b32 v10, v10, v11"); a.i(f"v_xor_b32 v11, v{ST+7}, v8"); a.i("v_or_b32 v10, v10, v11")
    a.i("v_cmp_ne_u32 vcc, 0, v10")
    g.retry_tail("L_A_sretry", "L_A_sok")
    a.i(f"v_max_f32 v10, v{ST}, v{ST+4}")
    a.i("v_mov_b32 v11, v10"); a.i("v_permlane16_swap_b32 v10, v11"); a.i("v_max_f32 v10, v10, v11")
    a.i("v_mov_b32 v11, v10"); a.i("v_permlane32_swap_b32 v10, v11"); a.i("v_max_f32 v10, v10, v11")
    a.i(f"v_sub_f32 v{ST}, v{ST}, v10"); a.i(f"v_sub_f32 v{ST+4}, v{ST+4}, v10")
    a.i(f"v_exp_f32 v{ST}, v{ST}"); a.i(f"v_exp_f32 v{ST+4}, v{ST+4}")
    a.i(f"v_mul_f32 v{ST+1}, v{ST+1}, v{ST}"); a.i(f"v_fmac_f32 v{ST+1}, v{ST+5}, v{ST+4}")
    a.i(f"v_mov_b32 v11, v{ST+1}"); a.i(f"v_permlane16_swap_b32 v{ST+1}, v11"); a.i(f"v_add_f32 v{ST+1}, v{ST+1}, v11")
    a.i(f"v_mov_b32 v11, v{ST+1}"); a.i(f"v_permlane32_swap_b32 v{ST+1}, v11"); a.i(f"v_add_f32 v11, v{ST+1}, v11")
    a.i("v_sub_f32 v12, v12, v10"); a.i("v_exp_f32 v12, v12"); a.i("v_rcp_f32 v11, v11"); a.i("v_mul_f32 v12, v12, v11")
    a.i("v_lshlrev_b32 v9, 2, v4"); a.i("s_lshl_b32 s14, s3, 6"); a.i(f"s_add_u32 s14, s14, {L_F}"); a.i("v_add_u32 v9, s14, v9")
    a.i("ds_write_b32 v9, v12")
    a.i("s_waitcnt lgkmcnt(0)")
    g.signal(CF)
    for st in range(opt.wo_early): wostep(st)
    if opt.wo_early < 4:
        g.wait_cnt(CV, 4)
        for st in range(opt.wo_early, 4): wostep(st)
    OG, CA = 192, 176
    a.i("v_add_u32 v10, s3, v4"); a.i("v_and_b32 v10, 3, v10")
    a.i("v_lshrrev_b32 v9, 2, v4"); a.i("v_lshlrev_b32 v9, 13, v9"); a.i("v_lshl_add_u32 v9, v10, 6, v9"); a.i("v_lshl_add_u32 v9, v3, 4, v9")
    a.i("s_lshl_b32 s43, s42, 12"); a.i("s_lshl_b32 s14, s3, 10"); a.i("s_add_u32 s43, s43, s14"); a.i(f"s_add_u32 s43, s43, {WS_OS}")
    a.i("s_add_u32 s44, s43, 4096")
    if opt.srot:
        for sp in range(2):
            for st in range(4):
                a.i(f"s_add_u32 s14, s6, {st}"); a.i("s_and_b32 s14, s14, 3"); a.i("s_lshl_b32 s14, s14, 8"); a.i(f"s_add_u32 s{80+4*sp+st}, s14, {'s43' if sp == 0 else 's44'}")
    a.i("s_lshl_b32 s46, s42, 4"); a.i(f"s_add_u32 s46, s46, {WS_OF}")
    a.i("v_lshlrev_b32 v7, 2, v2")
    for r in range(1, 4):
        a.i(f"s_add_u32 s14, s3, {r}"); a.i("s_and_b32 s14, s14, 3"); a.i("s_lshl_b32 s14, s14, 12"); a.i(f"s_add_u32 s14, s14, {L_CR + (r-1)*1024}"); a.i(f"v_add_u32 v{12+r}, s14, v7")
    a.i("s_lshl_b32 s14, s3, 12"); a.i(f"s_add_u32 s14, s14, {L_CR}"); a.i("v_add_u32 v12, s14, v7")
    a.i("v_lshlrev_b32 v17, 10, v3"); a.i("v_lshl_add_u32 v17, v4, 4, v17")
    a.i("s_lshl_b32 s47, s41, 12"); a.i("s_lshl_b32 s14, s3, 8"); a.i("s_add_u32 s47, s47, s14"); a.i(f"s_add_u32 s47, s47, {WS_PS}")
    for e in range(4): a.i(f"s_mov_b32 s{60+e}, {0x07060500+e:#x}")
    for st in range(opt.wo_early):
        a.i(f"s_waitcnt vmcnt({8*(3-st)})")
        transpose4(a, WF+16*st, lambda i, w: WR + 16*st + 2*i + w)
    a.i("s_barrier")
    g.stamp(-1, tail=1)
    for st in range(opt.wo_early, 4):
        a.i(f"s_waitcnt vmcnt({8*(3-st)})")
        transpose4(a, WF+16*st, lambda i, w: WR + 16*st + 2*i + w)
    g.stamp(5, tail=2)
    a.i("s_mov_b32 s45, 0")
    a.label("L_A_fretry")
    a.i("s_mov_b32 exec_hi, 0")
    a.i(f"buffer_load_dword v10, v7, s[32:35], s46 offen {opt.ld_flags}")
    a.i("s_waitcnt vmcnt(0)")
    a.i("v_cmp_ne_u32 vcc, v10, v8")
    a.i("s_mov_b64 exec, -1")
    g.retry_tail("L_A_fretry", "L_A_fok")
    g.stamp(-1, tail=3)
    if opt.dbgcnt: a.i("s_mov_b32 s92, s45")
    a.i("s_mov_b32 s45, 0")
    def ogather(fl):
        for sp in range(2):
            for st in range(4):
                if opt.srot:
                    a.i(f"buffer_load_dwordx4 {vr(OG+16*sp+4*st)}, v9, s[32:35], s{80+4*sp+st} offen {fl}")
                else:
                    a.i(f"buffer_load_dwordx4 {vr(OG+16*sp+4*st)}, v9, s[32:35], {'s43' if sp == 0 else 's44'} offen offset:{st*256} {fl}")
    if opt.o_plain:
        a.i("s_cmp_eq_u32 s58, 1"); a.i("s_cbranch_scc0 L_A_oretry")
        ogather("")
        a.i("s_branch L_A_ogo")
    a.label("L_A_oretry")
    ogather(opt.ld_flags)
    a.label("L_A_ogo")
    k = 0
    for sp in range(2):
        for st in range(4):
            a.i(f"s_waitcnt vmcnt({7-k})")
            for e in range(4):
                c = "0" if k == 0 else vr(CA+4*e)
                a.i(f"v_mfma_f32_16x16x32_bf16 {vr(CA+4*e)}, {vr(OG+16*sp+4*st)}, {vr(WF+16*st+4*e)}, {c}")
            b = OG+16*sp+4*st
            if k == 0: a.i(f"v_max3_u32 v10, v{b}, v{b+1}, v{b+2}"); a.i(f"v_max_u32 v10, v10, v{b+3}")
            else: a.i(f"v_max3_u32 v10, v10, v{b}, v{b+1}"); a.i(f"v_max3_u32 v10, v10, v{b+2}, v{b+3}")
            k += 1
    a.i("v_cmp_eq_u32 vcc, -1, v10")
    g.retry_tail("L_A_oretry", "L_A_ook")
    g.stamp(6, tail=4)
    if opt.regather:
        ogather("sc1")
        a.i("s_waitcnt vmcnt(0)")
        g.stamp(-1, tail=5)
    if opt.dbgcnt:
        a.i("s_mov_b64 exec, 1")
        a.i("v_mov_b32 v18, s45"); a.i("v_mov_b32 v19, s92")
        a.i("global_atomic_add v5, v18, s[28:29]"); a.i("global_atomic_add v5, v19, s[28:29] offset:4")
        a.i("global_atomic_add v5, v6, s[28:29] offset:8")
        a.i("s_mov_b64 exec, -1")
    for r in range(1, 4):
        for e in range(0, 4, 2):
            a.i(f"ds_write2st64_b32 v{12+r}, v{CA+4*e+r}, v{CA+4*(e+1)+r} offset0:{e} offset1:{e+1}")
    a.i("s_waitcnt lgkmcnt(0)")
    a.i("s_barrier")
    if not opt.regather: g.stamp(-1, tail=5)
    R = 20
    for slot in range(3):
        for e in range(0, 4, 2):
            a.i(f"ds_read2st64_b32 {vr(R+4*slot+e,2)}, v12 offset0:{slot*4+e} offset1:{slot*4+e+1}")
    a.i("s_waitcnt lgkmcnt(0)")
    for e in range(4):
        a.i(f"v_add_f32 v{R+e}, v{R+e}, v{R+4+e}"); a.i(f"v_add_f32 v{R+8+e}, v{R+8+e}, v{CA+4*e}")
    for e in range(4): a.i(f"v_add_f32 v{R+e}, v{R+e}, v{R+8+e}")
    for e in range(4): a.i(f"v_perm_b32 v{R+12+e}, v{R+e}, v8, s{60+e}")
    a.i(f"buffer_store_dwordx4 {vr(R+12)}, v17, s[32:35], s47 offen sc1")
    g.stamp(7, tail=6)
    if opt.tstamps:
        a.i("s_waitcnt vmcnt(0)")
        g.stamp(-1, tail=7)
    if opt.stamps:
        a.i("s_cmp_lg_u32 s3, 0"); a.i("s_cbranch_scc1 L_end")
        emit_stamps(g, 0, 8)
    a.i("s_branch L_end")

    a.label("L_B")
    a.i("s_sub_u32 s3, s3, 4")
    if opt.b_exit:
        for k in range(1, 8): g.stamp(k)
        a.i("s_cmp_lg_u32 s3, 0"); a.i("s_cbranch_scc1 L_end")
        emit_stamps(g, 8, 8, first=1)
        a.i("s_branch L_end")
    VF, PF2, T2, OA = 16, 144, 160, 192
    kvbase(a)
    a.i("s_mov_b32 s57, s14")
    if opt.rot:
        a.i("s_add_u32 s56, s5, s3"); a.i("s_and_b32 s56, s56, 7"); a.i("s_lshl_b32 s56, s56, 12")
    else:
        a.i("s_mov_b32 s56, 0")
    for n in range(4):
        a.i(f"v_add_u32 v10, {4*n}, v3"); a.i("v_xor_b32 v10, v10, v4"); a.i("v_lshlrev_b32 v10, 4, v10"); a.i(f"v_lshl_add_u32 v{12+n}, v3, 8, v10")
    a.i("s_lshl_b32 s47, s3, 15")
    a.i("s_lshl_b32 s15, s6, 7")
    a.i("s_waitcnt lgkmcnt(0)")
    srd(a, 48, 18, 19, 128*256, add="s57")
    a.i("s_load_dword s10, s[30:31], s15")
    srd(a, 36, 20, 21, 128*256, add="s57")
    srd(a, 32, 30, 31, WS_SIZE)
    if opt.bpf:
        srd(a, 52, 22, 23, 4 << 20)
        srd(a, 60, 16, 17, 65536)
        a.i("v_lshlrev_b32 v8, 4, v2")
        a.i("s_lshl_b32 s14, s5, 4"); a.i("s_lshl_b32 s15, s3, 2"); a.i("s_add_u32 s14, s14, s15"); a.i("s_lshl_b32 s14, s14, 13"); a.i("s_lshl_b32 s15, s4, 10"); a.i("s_add_u32 s14, s14, s15")
        for k in range(4):
            a.i(f"buffer_load_dwordx4 {vr(16+4*k)}, v8, s[52:55], s14 offen {opt.bpf_flags}")
            if k < 3: a.i("s_add_u32 s14, s14, 8192")
        a.i("s_lshl_b32 s14, s5, 1"); a.i("s_and_b32 s15, s3, 1"); a.i("s_add_u32 s14, s14, s15"); a.i("s_lshl_b32 s14, s14, 10")
        a.i(f"buffer_load_dwordx4 {vr(32)}, v8, s[60:63], s14 offen")
    NPF = 5 if opt.bpf else 0
    def stream(TH, THK):
        cnt = [NPF]
        pfsig = [not opt.bpf]
        def throttle():
            th = THK if (THK and cnt[0] < 32 + NPF) else TH
            if opt.thr_end and cnt[0] >= 32 + NPF + opt.end_from: th = max(th, opt.thr_end)
            if cnt[0] >= th: a.i(f"s_waitcnt vmcnt({th-1})")
            if not pfsig[0] and cnt[0] - th >= NPF - 1:
                g.signal(CWP); pfsig[0] = True
            cnt[0] += 1
        for t in range(8):
            a.i(f"s_add_u32 s14, s47, {t*4096}"); a.i("s_mov_b32 m0, s14"); a.i(f"s_xor_b32 s14, s56, {t*4096}")
            for n in range(4):
                throttle()
                a.i(f"buffer_load_dwordx4 v{12+n}, s[48:51], s14 offen offset:{n*1024} {opt.kv_flags if opt.k_flags == 'same' else opt.k_flags} lds")
            if t == 0:
                a.i("s_barrier")
                a.i("v_add_u32 v7, s3, v4"); a.i("v_and_b32 v7, 3, v7"); a.i("v_and_b32 v10, 12, v4"); a.i("v_or_b32 v7, v7, v10")
                a.i("v_lshlrev_b32 v7, 4, v7"); a.i("v_lshl_add_u32 v7, v3, 10, v7")
                a.i("s_lshl_b32 s15, s3, 2"); a.i("v_add_u32 v11, s15, v1")
            if opt.stagger and t == opt.stagger - 1: g.signal(CKS)
            if opt.bstamps and t in (1, 3, 5, 7): g.stamp(1 + t // 2)
        if not opt.bstamps: g.stamp(1)
        signaled = False
        for u in range(4):
            for i in range(8):
                if i % 4 == 0: a.i(f"s_xor_b32 s14, s56, {u*8192 + (i>>2)*4096}")
                throttle()
                n = cnt[0] - 1 - NPF
                if opt.wopf and u == opt.wopf - 1 and i == 0:
                    pass
                if not signaled and n - TH >= 31:
                    g.signal(CKD, vaddr=11)
                    signaled = True
                a.i(f"buffer_load_dwordx4 {vr(VF+32*u+4*i)}, v7, s[36:39], s14 offen offset:{(i&3)*256} {opt.kv_flags if opt.v_flags == 'same' else opt.v_flags}")
            if opt.bstamps and u in (0, 1, 3): g.stamp({0: 5, 1: 6, 3: 7}[u])
        assert signaled
    if opt.thr3:
        a.i("s_cmp_eq_u32 s7, 3"); a.i("s_cbranch_scc1 L_B_s3")
        stream(opt.thr, opt.thr_k)
        a.i("s_branch L_B_sdone")
        a.label("L_B_s3")
        stream(opt.thr3, opt.thr3)
        a.label("L_B_sdone")
    else:
        stream(opt.thr, opt.thr_k)
    g.signal(CV)
    if opt.bstamps:
        a.i("s_waitcnt vmcnt(0)")
        a.i("s_cmp_lg_u32 s3, 0"); a.i("s_cbranch_scc1 L_end")
        emit_stamps(g, 8, 8, first=1)
        a.i("s_branch L_end")
    g.stamp(2, tail=1)
    if opt.bench:
        a.i("s_waitcnt vmcnt(0)")
        for k in range(3, 8): g.stamp(k)
        a.i("s_cmp_lg_u32 s3, 0"); a.i("s_cbranch_scc1 L_end")
        emit_stamps(g, 8, 8, first=1)
        a.i("s_branch L_end")
    g.wait_cnt(CP, 1, vaddr=11)
    a.i("v_lshlrev_b32 v9, 4, v2"); a.i("s_lshl_b32 s14, s3, 12"); a.i(f"s_add_u32 s14, s14, {L_P}"); a.i("v_add_u32 v9, s14, v9")
    for u in range(4): a.i(f"ds_read_b128 {vr(PF2+4*u)}, v9 offset:{u*1024}")
    a.i(f"ds_read_b32 v10, v1 offset:{FASTW}")
    a.i("s_waitcnt lgkmcnt(0)")
    a.i(f"s_add_u32 s10, s10, {TAGINC:#x}")
    a.i("v_mov_b32 v8, s10")
    a.i("v_readfirstlane_b32 s58, v10")
    g.stamp(3, tail=2)
    if opt.b_prio_pv: a.i(f"s_setprio {opt.b_prio_pv}")
    def factors(wait=True):
        if wait: g.wait_cnt(CF, 4)
        for k in range(4):
            a.i(f"s_sub_u32 s14, s3, {k}"); a.i("s_and_b32 s14, s14, 3"); a.i("s_lshl_b32 s14, s14, 6"); a.i(f"s_add_u32 s14, s14, {L_F}")
            a.i(f"v_lshl_add_u32 v10, v4, 2, s14"); a.i(f"ds_read_b32 v{148+k}, v10")
    for u in range(4):
        L = lambda i, w: VF + 32*u + 4*i + w
        if u < 3:
            a.i(f"s_waitcnt vmcnt({(3-u)*8})")
            for e in range(8):
                w = e >> 1; sel = 's11' if (e & 1) == 0 else 's12'
                for p in range(4):
                    a.i(f"v_perm_b32 v{T2+4*e+p}, v{L(2*p+1,w)}, v{L(2*p,w)}, {sel}")
        else:
            for p in range(4):
                a.i(f"s_waitcnt vmcnt({6-2*p})")
                for e in range(8):
                    w = e >> 1; sel = 's11' if (e & 1) == 0 else 's12'
                    a.i(f"v_perm_b32 v{T2+4*e+p}, v{L(2*p+1,w)}, v{L(2*p,w)}, {sel}")
        for e in range(8):
            c = "0" if u == 0 else vr(OA+4*e)
            a.i(f"v_mfma_f32_16x16x32_bf16 {vr(OA+4*e)}, {vr(T2+4*e)}, {vr(PF2+4*u)}, {c}")
        if u == 2:
            if not opt.cf_late: factors()
            if opt.cf_late == 2:
                a.i(f"ds_read_b32 v10, v1 offset:{CF}"); a.i("s_waitcnt lgkmcnt(0)"); a.i("v_readfirstlane_b32 s93, v10")
                a.i("s_cmp_ge_u32 s93, 4"); a.i("s_cbranch_scc0 L_B_fskip")
                factors(False)
                a.label("L_B_fskip")
            a.i("v_lshrrev_b32 v12, 2, v4"); a.i("v_lshlrev_b32 v12, 10, v12"); a.i("v_and_b32 v10, 3, v4"); a.i("v_lshl_add_u32 v12, v10, 6, v12"); a.i("v_lshl_add_u32 v12, v3, 4, v12")
            a.i("s_lshl_b32 s43, s41, 12"); a.i("s_lshl_b32 s14, s3, 8"); a.i("s_add_u32 s43, s43, s14"); a.i(f"s_add_u32 s43, s43, {WS_OS}")
            a.i("s_lshl_b32 s44, s41, 4"); a.i("s_lshl_b32 s14, s3, 2"); a.i("s_add_u32 s44, s44, s14"); a.i(f"s_add_u32 s44, s44, {WS_OF}")
            a.i("v_lshlrev_b32 v9, 2, v2")
            for r in range(1, 4):
                a.i(f"s_add_u32 s14, s3, {r}"); a.i("s_and_b32 s14, s14, 3"); a.i("s_lshl_b32 s14, s14, 13"); a.i(f"s_add_u32 s14, s14, {L_OR + (r-1)*2048}"); a.i(f"v_add_u32 v{12+r}, s14, v9")
            a.i("s_lshl_b32 s14, s3, 13"); a.i(f"s_add_u32 s14, s14, {L_OR}"); a.i("v_add_u32 v7, s14, v9")
    if opt.cf_late == 1: factors()
    if opt.cf_late == 2:
        a.i("s_cmp_ge_u32 s93, 4"); a.i("s_cbranch_scc1 L_B_fdone")
        factors()
        a.label("L_B_fdone")
    g.stamp(4, tail=3)
    for r in range(1, 4):
        for e in range(0, 8, 2):
            a.i(f"ds_write2st64_b32 v{12+r}, v{OA+4*e+r}, v{OA+4*(e+1)+r} offset0:{e} offset1:{e+1}")
    a.i("s_waitcnt lgkmcnt(0)")
    a.i("s_barrier")
    g.stamp(-1, tail=4)
    R = 16
    for slot in range(3):
        for e in range(0, 8, 2):
            a.i(f"ds_read2st64_b32 {vr(R+8*slot+e,2)}, v7 offset0:{slot*8+e} offset1:{slot*8+e+1}")
    FR = 148
    for e in range(8): a.i(f"v_mul_f32 v{OA+4*e}, v{OA+4*e}, v{FR}")
    for slot in range(3):
        a.i(f"s_waitcnt lgkmcnt({4*(2-slot)})")
        for e in range(8): a.i(f"v_fmac_f32 v{OA+4*e}, v{R+8*slot+e}, v{FR+1+slot}")
    for p in range(4): a.i(f"v_cvt_pk_bf16_f32 v{R+32+p}, v{OA+8*p}, v{OA+8*p+4}")
    g.store_var(f"buffer_store_dwordx4 {vr(R+32)}, v12, s[32:35], s43 offen")
    a.i("s_mov_b64 exec, 1")
    g.store_var("buffer_store_dword v8, v5, s[32:35], s44 offen")
    a.i("s_mov_b64 exec, -1")
    g.stamp(5, tail=5)
    if opt.wstamps:
        a.i("s_waitcnt lgkmcnt(0)")
        a.i(f"s_add_u32 s90, s30, {STAMPOFF}"); a.i("s_addc_u32 s91, s31, 0")
        a.i("s_lshl_b32 s14, s2, 7"); a.i("s_add_u32 s90, s90, s14"); a.i("s_addc_u32 s91, s91, 0")
        a.i("s_lshl_b32 s14, s3, 3"); a.i("s_add_u32 s90, s90, s14"); a.i("s_addc_u32 s91, s91, 0")
        a.i("s_mov_b64 exec, 1")
        a.i("v_mov_b32 v60, s72"); a.i("v_mov_b32 v61, s73")
        a.i("global_store_dwordx2 v5, v[60:61], s[90:91] offset:64")
        a.i("v_mov_b32 v62, s68"); a.i("v_mov_b32 v63, s69")
        a.i("global_store_dwordx2 v5, v[62:63], s[90:91] offset:96")
        a.i("s_mov_b64 exec, -1")
    a.i("s_cmp_lg_u32 s3, 0"); a.i("s_cbranch_scc1 L_end")
    a.i("v_lshrrev_b32 v9, 5, v2"); a.i("v_lshlrev_b32 v9, 19, v9")
    a.i("v_and_b32 v10, 1, v3"); a.i("v_lshl_add_u32 v9, v10, 8, v9"); a.i("v_lshl_add_u32 v9, v4, 4, v9")
    a.i("s_lshl_b32 s43, s5, 12"); a.i("s_lshl_b32 s14, s4, 9"); a.i("s_add_u32 s43, s43, s14"); a.i(f"s_add_u32 s43, s43, {WS_PS}")
    srd(a, 36, 26, 27, 65536)
    a.i("v_and_b32 v10, 1, v3"); a.i("v_lshlrev_b32 v13, 10, v10"); a.i("v_lshl_add_u32 v13, v4, 3, v13")
    a.i("s_lshl_b32 s46, s6, 14"); a.i("s_lshl_b32 s14, s4, 11"); a.i("s_add_u32 s46, s46, s14"); a.i("s_lshl_b32 s14, s59, 7"); a.i("s_add_u32 s46, s46, s14")
    a.i("s_barrier")
    NP = opt.ppoll
    a.i("s_mov_b32 s14, 0x0c0c0400"); a.i("s_mov_b32 s15, 0x04000c0c")
    for k in range(4): a.i(f"s_add_u32 s{48+k}, s43, {k*32*4096}")
    def pissue(z):
        for k in range(4):
            a.i(f"buffer_load_dwordx4 {vr(16+16*z+4*k)}, v9, s[32:35], s{48+k} offen sc1")
    a.i("s_mov_b32 s45, 0")
    for z in range(NP):
        pissue(z)
        if z < NP - 1 and opt.psleep: a.i(f"s_sleep {opt.psleep}")
    a.label("L_B_pretry")
    for z in range(NP):
        R = 16 + 16*z
        a.i(f"s_waitcnt vmcnt({4*(NP-1)})")
        for k in range(4):
            d = 10 if k == 0 else 11
            a.i(f"v_perm_b32 v{d}, v{R+4*k+1}, v{R+4*k}, s14"); a.i(f"v_perm_b32 v12, v{R+4*k+3}, v{R+4*k+2}, s15")
            if k == 0:
                a.i("v_or_b32 v10, v10, v12"); a.i("v_xor_b32 v10, v10, v8")
            else:
                a.i("v_or_b32 v11, v11, v12"); a.i("v_xor_b32 v11, v11, v8"); a.i("v_or_b32 v10, v10, v11")
        a.i("v_cmp_ne_u32 vcc, 0, v10")
        a.i(f"s_cbranch_vccz L_B_pok{z}")
        pissue(z)
    a.i("s_add_u32 s45, s45, 1")
    a.i(f"s_cmp_le_u32 s45, {opt.spin_limit}")
    a.i("s_cbranch_scc1 L_B_pretry")
    a.i("s_waitcnt vmcnt(0)")
    for z in range(NP):
        R = 16 + 16*z
        a.label(f"L_B_pok{z}")
        for e in range(4):
            a.i(f"v_add_f32 v{80+e}, v{R+e}, v{R+4+e}"); a.i(f"v_add_f32 v{84+e}, v{R+8+e}, v{R+12+e}")
        if z < NP - 1: a.i("s_branch L_B_psum")
    a.label("L_B_psum")
    g.stamp(6, tail=6)
    R = 80
    for e in range(4): a.i(f"v_add_f32 v{R+e}, v{R+e}, v{R+4+e}")
    for e in range(4): a.i(f"v_mov_b32 v{R+4+e}, v{R+e}")
    for e in range(4): a.i(f"v_permlane32_swap_b32 v{R+e}, v{R+4+e}")
    for e in range(4): a.i(f"v_add_f32 v{R+e}, v{R+e}, v{R+4+e}")
    a.i(f"v_cvt_pk_bf16_f32 v{R+8}, v{R}, v{R+1}"); a.i(f"v_cvt_pk_bf16_f32 v{R+9}, v{R+2}, v{R+3}")
    a.i("s_mov_b32 exec_hi, 0")
    a.i(f"buffer_store_dwordx2 {vr(R+8,2)}, v13, s[36:39], s46 offen")
    a.i("s_or_b32 s14, s4, s7"); a.i("s_cmp_lg_u32 s14, 0"); a.i("s_cbranch_scc1 L_B_fin")
    a.i("s_mov_b64 exec, 1")
    a.i("s_lshl_b32 s14, s6, 7")
    a.i(f"buffer_store_dword v8, v5, s[32:35], s14 offen sc1")
    a.label("L_B_fin")
    a.i("s_mov_b64 exec, -1")
    if opt.stamps:
        a.i("s_waitcnt vmcnt(0)")
        a.i("s_memrealtime s[78:79]")
        if not opt.wstamps: emit_stamps(g, 8, 8, first=1)
    a.label("L_end"); a.i("s_endpgm")

    out = Asm()
    out(HEADER + f"; @launch grid=(256,1,1) block=(512,1,1) lds={L_END}")
    out('.amdgcn_target "amdgcn-amd-amdhsa--gfx950"\n.text')
    lines, n = hazard.fix(a.lines)
    out.lines += lines
    out('.section .rodata,"a"')
    out(kernel_desc(NAME, 256))
    return out.text(), n

def emit_stamps(g, slot0, n, first=0):
    a = g.a
    a.i("s_waitcnt lgkmcnt(0)")
    a.i(f"s_add_u32 s90, s30, {STAMPOFF}"); a.i("s_addc_u32 s91, s31, 0")
    a.i("s_lshl_b32 s14, s2, 7"); a.i("s_add_u32 s90, s90, s14"); a.i("s_addc_u32 s91, s91, 0")
    a.i("s_mov_b64 exec, 1")
    for k in range(first, n):
        a.i(f"v_mov_b32 v20, s{64+2*k}"); a.i(f"v_mov_b32 v21, s{65+2*k}")
        a.i(f"global_store_dwordx2 v5, v[20:21], s[90:91] offset:{(slot0+k-first)*8}")
        a.i("s_nop 1")
    a.i("s_mov_b64 exec, -1")

if __name__ == "__main__":
    o = Opt()
    out = sys.argv[1]
    for kv in sys.argv[2:]:
        k, v = kv.split("=")
        cur = getattr(o, k)
        if isinstance(cur, bool): v = v in ("1", "True", "true")
        elif isinstance(cur, int): v = int(v)
        else: v = v.replace("+", " ")
        setattr(o, k, v)
    t, n = gen(o)
    open(out, "w").write(t)
    print(out, "nops inserted:", n, "lines:", t.count("\n"))
```

```python
import sys, struct
from asmlib import *
import hazard

NAME = "standalone__sliding_block_cached__sampling_kernel"
def f2u(x): return struct.unpack('<I', struct.pack('<f', x))[0]
SCALE = 0.08838834764831845 * 1.4426950408889634

WS_XID = 0x8000
WS_OF = 0x9000
WS_QS = 0x10000
WS_ST = 0x200000
WS_OS = 0x300000
WS_PS = 0x500000
WS_SIZE = 0x800000
STAMPOFF = 256 << 20
TAGINC = 0x9E3779B9

L_K = 0
L_OR = 0
L_CR = 32768
L_QR = 131072
L_P = 131072
L_CNT = 147456
L_F = L_CNT + 64
L_Q = L_CNT + 512
L_END = L_Q + 4096
CQ, CKS, CV, CO, CC, CP, CF, CQ2, CKD, FASTW = 0, 4, 8, 12, 16, 20, 36, 40, 44, 60
CWP = CO

class Opt:
    stamps = False
    kv_flags = "nt"
    w_flags = "nt"
    x_flags = ""
    ld_flags = "sc1"
    spin_limit = 30000
    a_prio = 2
    b_prio_pv = 3
    rot = 1
    thr = 7
    wo_mode = 1
    wq_ahead = 2
    force_slow = 0
    bench = 0
    a_stop = 0
    oflag = 1
    bsync = 1
    t2 = 0
    perm = 0
    pst_flags = "sc1"
    pld_flags = "sc1"
    cf_late = 1
    wstamps = 0
    thr_end = 0
    end_from = 16
    wo_flags = "nt"
    srot = 1
    wq_ahead3 = 0
    k_flags = "same"
    v_flags = "same"
    cwpstamp = 0
    bpf = 0
    bpf_flags = ""
    wopf = 0
    ppoll = 3
    psleep = 6
    ptouch_flags = ""
    touch = 1
    regather = 0
    o_plain = 1
    dbgcnt = 0
    ntx = 4
    thr3 = 0
    pf = 0
    pf_flags = ""
    tstamps = 0
    wo_early = 2
    b_exit = 0
    wq_rowrot = 0
    wq_colxor = 0
    bstamps = 0
    stagger = 0
    thr_k = 0
    stag_bit = 0
    xid_tries = 4

def vr(b, n=4): return f"v[{b}:{b+n-1}]" if n > 1 else f"v{b}"

def srd(a, d, lo, hi, size, add=None):
    if add is None:
        a.i(f"s_mov_b32 s{d}, s{lo}"); a.i(f"s_mov_b32 s{d+1}, s{hi}")
    else:
        a.i(f"s_add_u32 s{d}, s{lo}, {add}"); a.i(f"s_addc_u32 s{d+1}, s{hi}, 0")
    a.i(f"s_mov_b32 s{d+2}, {size}"); a.i(f"s_mov_b32 s{d+3}, 0x20000")

class G:
    def __init__(self, opt):
        self.a = Asm(); self.o = opt; self.nl = 0
    def lab(self, p):
        self.nl += 1; return f"L{p}{self.nl}"
    def stamp(self, k, tail=None):
        if self.o.tstamps:
            if tail is None and k != 0: return
            if tail is not None: k = tail
            if k < 0: return
        elif tail is not None and k < 0: return
        if self.o.stamps:
            self.a.i(f"s_memrealtime s[{64+2*k}:{65+2*k}]")
    def signal(self, cnt, vaddr=1):
        a = self.a
        a.i("s_mov_b64 exec, 1")
        a.i(f"ds_add_u32 v{vaddr}, v6 offset:{cnt}")
        a.i("s_mov_b64 exec, -1")
    def wait_cnt(self, cnt, n, vt=10, vaddr=1, sleep=0):
        a = self.a
        L = self.lab("w")
        a.i("s_mov_b32 s15, 0")
        a.label(L)
        if sleep: a.i(f"s_sleep {sleep}")
        a.i(f"ds_read_b32 v{vt}, v{vaddr} offset:{cnt}")
        a.i("s_add_u32 s15, s15, 1")
        a.i("s_waitcnt lgkmcnt(0)")
        a.i(f"v_readfirstlane_b32 s14, v{vt}")
        a.i(f"s_cmp_gt_u32 s15, {self.o.spin_limit*16}")
        a.i(f"s_cbranch_scc1 {L}_o")
        a.i(f"s_cmp_ge_u32 s14, {n}")
        a.i(f"s_cbranch_scc0 {L}")
        a.label(f"{L}_o")
    def retry_tail(self, Lretry, Lok):
        a = self.a
        a.i("s_add_u32 s45, s45, 1")
        a.i(f"s_cmp_gt_u32 s45, {self.o.spin_limit}")
        a.i(f"s_cbranch_scc1 {Lok}")
        a.i(f"s_cbranch_vccnz {Lretry}")
        a.label(Lok)
    def store_var(self, ins):
        a = self.a; L = self.lab("s")
        a.i("s_cmp_eq_u32 s58, 1"); a.i(f"s_cbranch_scc1 {L}_f")
        a.i(ins + " sc1"); a.i(f"s_branch {L}_d")
        a.label(f"{L}_f"); a.i(ins); a.label(f"{L}_d")

def transpose4(a, dst, L):
    for e in range(4):
        w = e >> 1; sel = 's11' if (e & 1) == 0 else 's12'
        for p in range(4):
            a.i(f"v_perm_b32 v{dst+4*e+p}, v{L(2*p+1,w)}, v{L(2*p,w)}, {sel}")

def kvbase(a):
    a.i("s_lshr_b32 s14, s5, 1"); a.i("s_lshl_b32 s14, s14, 3"); a.i("s_add_u32 s14, s14, s4"); a.i("s_lshl_b32 s14, s14, 12")
    a.i("s_lshl_b32 s15, s9, 9"); a.i("s_add_u32 s14, s14, s15"); a.i("s_lshl_b32 s15, s3, 7"); a.i("s_add_u32 s14, s14, s15")
    a.i("s_add_u32 s14, s14, 3072"); a.i("s_lshl_b32 s14, s14, 8")

def astop(g, n):
    opt = g.o; a = g.a
    if opt.a_stop == n:
        for k in range(n + 1, 8): g.stamp(k)
        if opt.stamps:
            a.i("s_cmp_lg_u32 s3, 0"); a.i("s_cbranch_scc1 L_end")
            emit_stamps(g, 0, 8)
        a.i("s_branch L_end")

def gen(opt):
    g = G(opt); a = g.a
    kernel_begin(a, NAME)
    a.i("s_cmp_ge_u32 s2, 256"); a.i("s_cbranch_scc1 L_end")
    if opt.perm == 1:
        a.i("s_lshl_b32 s3, s2, 3"); a.i("s_lshr_b32 s4, s2, 5"); a.i("s_or_b32 s2, s3, s4"); a.i("s_and_b32 s2, s2, 255")
    if opt.perm == 2:
        a.i("s_xor_b32 s2, s2, 8"); a.i("s_lshr_b32 s3, s2, 6"); a.i("s_xor_b32 s2, s2, s3")
    g.stamp(0)
    a.i("s_load_dwordx16 s[16:31], s[0:1], 0")
    a.i("v_lshrrev_b32 v1, 6, v0"); a.i("v_and_b32 v2, 63, v0")
    a.i("v_readfirstlane_b32 s3, v1")
    a.i("s_and_b32 s4, s2, 7")
    a.i("s_lshr_b32 s5, s2, 3")
    a.i("s_lshr_b32 s6, s5, 3")
    a.i("s_and_b32 s7, s5, 7")
    a.i(f"s_xor_b32 s59, s7, {opt.ntx}")
    a.i("s_bfe_u32 s8, s5, 0x20001")
    a.i("s_and_b32 s9, s5, 1")
    a.i("v_lshrrev_b32 v3, 4, v2"); a.i("v_and_b32 v4, 15, v2")
    a.i("v_mov_b32 v5, 0"); a.i("v_mov_b32 v6, 1")
    a.i(f"v_mov_b32 v1, {L_CNT}")
    a.i("s_mov_b32 s11, 0x05040100"); a.i("s_mov_b32 s12, 0x07060302")
    a.i("s_lshl_b32 s40, s4, 5"); a.i("s_add_u32 s41, s40, s5")
    a.i("s_and_b32 s42, s41, 0xfffffff8")
    a.i("s_cmp_ge_u32 s3, 4"); a.i("s_cbranch_scc1 L_B")

    if opt.a_prio: a.i(f"s_setprio {opt.a_prio}")
    a.i("s_cmp_lg_u32 s3, 0"); a.i("s_cbranch_scc1 L_P1")
    a.i("v_lshl_add_u32 v7, v2, 2, v1"); a.i("ds_write_b32 v7, v5 offset:0")
    a.label("L_P1")
    XA, WB, T, ACC = 16, 32, 96, 128
    a.i("v_lshlrev_b32 v8, 10, v4"); a.i("v_lshl_add_u32 v8, v3, 4, v8")
    a.i("v_lshlrev_b32 v9, 16, v3"); a.i("v_lshl_add_u32 v9, v4, 3, v9")
    a.i("s_lshl_b32 s14, s6, 14"); a.i("s_lshl_b32 s15, s3, 8"); a.i("s_add_u32 s45, s14, s15")
    a.i("s_lshl_b32 s44, s3, 20"); a.i("s_lshl_b32 s14, s4, 10"); a.i("s_add_u32 s44, s44, s14"); a.i(f"s_xor_b32 s14, s7, {opt.wq_colxor}"); a.i("s_lshl_b32 s14, s14, 7"); a.i("s_add_u32 s44, s44, s14")
    a.i("s_lshl_b32 s47, s3, 15")
    a.i("s_lshl_b32 s15, s6, 7")
    a.i("s_waitcnt lgkmcnt(0)")
    a.i("s_load_dword s10, s[30:31], s15")
    srd(a, 48, 22, 23, 4 << 20)
    srd(a, 52, 16, 17, 65536)
    srd(a, 32, 30, 31, WS_SIZE)
    def xidpub():
        a.i("s_getreg_b32 s57, hwreg(HW_REG_XCC_ID, 0, 4)")
        a.i("s_waitcnt lgkmcnt(0)")
        a.i(f"s_add_u32 s10, s10, {TAGINC:#x}")
        a.i("s_and_b32 s14, s10, 0xfffffff0"); a.i("s_or_b32 s14, s14, s57"); a.i("v_mov_b32 v144, s14")
        a.i("s_lshl_b32 s14, s41, 2"); a.i(f"s_add_u32 s14, s14, {WS_XID}")
        a.i("s_mov_b64 exec, 1")
        a.i("buffer_store_dword v144, v5, s[32:35], s14 offen")
        a.i("s_mov_b64 exec, -1")
    if opt.stagger: xidpub()
    if opt.stagger:
        a.i(f"s_bitcmp1_b32 s5, {opt.stag_bit}"); a.i("s_cbranch_scc0 L_A_nostag")
        g.wait_cnt(CKS, 4)
        a.label("L_A_nostag")
    if opt.pf:
        a.i("s_lshl_b32 s14, s6, 7"); a.i("s_lshl_b32 s15, s3, 5"); a.i("s_add_u32 s14, s14, s15"); a.i("s_lshl_b32 s14, s14, 13")
        a.i("s_lshl_b32 s15, s4, 10"); a.i("s_add_u32 s14, s14, s15"); a.i("s_lshl_b32 s15, s7, 7"); a.i("s_add_u32 s14, s14, s15")
        a.i("v_lshlrev_b32 v10, 13, v2")
        a.i("s_mov_b32 exec_hi, 0")
        a.i(f"buffer_load_dword v146, v10, s[48:51], s14 offen {opt.pf_flags}")
        a.i("s_lshl_b32 s14, s6, 14"); a.i("s_lshl_b32 s15, s7, 11"); a.i("s_add_u32 s14, s14, s15"); a.i("s_lshl_b32 s15, s3, 9"); a.i("s_add_u32 s14, s14, s15")
        a.i("v_lshlrev_b32 v10, 7, v2")
        a.i("s_mov_b64 exec, 0xf")
        a.i(f"buffer_load_dword v147, v10, s[52:55], s14 offen")
        a.i("s_mov_b64 exec, -1")
        if not opt.stagger: xidpub()
        a.i("s_waitcnt vmcnt(0)")
    if opt.bpf:
        g.wait_cnt(CWP, 4)
        if opt.cwpstamp: g.stamp(1)
    def qproj(AHEAD, SFX):
        seq = []
        def wqstep(s_):
            if opt.srot:
                a.i(f"s_add_u32 s14, s6, {s_}"); a.i("s_and_b32 s14, s14, 3"); a.i("s_lshl_b32 s14, s14, 18"); a.i("s_add_u32 s15, s44, s14")
                for i in range(8):
                    a.i(f"buffer_load_dwordx2 {vr(WB+16*s_+2*i,2)}, v9, s[48:51], s15 offen {opt.w_flags}")
                    if i < 7: a.i(f"s_add_u32 s15, s15, 8192")
                    seq.append(('w', s_))
                return
            for i in range(8):
                a.i(f"buffer_load_dwordx2 {vr(WB+16*s_+2*i,2)}, v9, s[48:51], s44 offen {opt.w_flags}")
                a.i(f"s_add_u32 s44, s44, 8192")
                seq.append(('w', s_))
            if s_ < 3: a.i(f"s_add_u32 s44, s44, {24*8192}")
        wqstep(0)
        for s2 in range(4):
            if opt.srot:
                a.i(f"s_add_u32 s14, s6, {s2}"); a.i("s_and_b32 s14, s14, 3"); a.i("s_lshl_b32 s14, s14, 6"); a.i("s_add_u32 s14, s14, s45")
                a.i(f"buffer_load_dwordx4 {vr(XA+4*s2)}, v8, s[52:55], s14 offen {opt.x_flags}")
            else:
                a.i(f"buffer_load_dwordx4 {vr(XA+4*s2)}, v8, s[52:55], s45 offen offset:{s2*64} {opt.x_flags}")
            seq.append(('x', 0))
        a.i("s_barrier")
        a.i("s_lshl_b32 s46, s42, 2"); a.i(f"s_add_u32 s46, s46, {WS_XID}")
        a.i("v_lshlrev_b32 v145, 2, v2")
        def xidload():
            a.i("s_mov_b64 exec, 0xff")
            a.i("buffer_load_dword v146, v145, s[32:35], s46 offen sc1")
            a.i("s_mov_b64 exec, -1")
        issued = 1
        while issued < min(4, AHEAD):
            wqstep(issued); issued += 1
        xidpub(); seq.append(('s', 0))
        a.i("v_mov_b32 v8, s10")
        for s_ in range(4):
            last = max([i for i, e in enumerate(seq) if e == ('w', s_) or (s_ == 0 and e[0] == 'x') or (s_ == 2 and e[0] == 'i')])
            a.i(f"s_waitcnt vmcnt({len(seq)-1-last})")
            if s_ == 0:
                xidload(); seq.append(('i', 0))
                if opt.touch & 2:
                    a.i("v_lshlrev_b32 v7, 4, v2")
                    a.i("s_lshl_b32 s14, s41, 12"); a.i("s_lshl_b32 s15, s3, 10"); a.i("s_add_u32 s14, s14, s15"); a.i(f"s_add_u32 s14, s14, {WS_QS}")
                    a.i("buffer_load_dwordx4 v[240:243], v7, s[32:35], s14 offen sc1"); seq.append(('t', 0))
                    a.i("s_lshl_b32 s14, s41, 10"); a.i("s_lshl_b32 s15, s3, 8"); a.i("s_add_u32 s14, s14, s15"); a.i(f"s_add_u32 s14, s14, {WS_ST}")
                    a.i("s_mov_b64 exec, 0xffff")
                    a.i("buffer_load_dwordx4 v[244:247], v7, s[32:35], s14 offen sc1"); seq.append(('t', 0))
                    a.i("s_mov_b64 exec, -1")
            if issued < 4:
                wqstep(issued); issued += 1
            if s_ == 0 and not opt.cwpstamp: g.stamp(1)
            if s_ == 2:
                a.i("s_mov_b32 s45, 0"); a.i("s_mov_b32 s58, 0")
                a.i(f"s_branch L_A_xchk{SFX}")
                a.label(f"L_A_xretry{SFX}")
                xidload()
                a.i("s_waitcnt vmcnt(0)")
                a.label(f"L_A_xchk{SFX}")
                a.i("s_mov_b64 exec, 0xff")
                a.i("v_xor_b32 v147, v146, v8"); a.i("v_and_b32 v147, 0xfffffff0, v147"); a.i("v_cmp_ne_u32 vcc, 0, v147")
                a.i("s_mov_b64 exec, -1")
                a.i(f"s_cbranch_vccz L_A_xok{SFX}")
                a.i("s_add_u32 s45, s45, 1")
                a.i(f"s_cmp_lt_u32 s45, {opt.xid_tries}")
                a.i(f"s_cbranch_scc1 L_A_xretry{SFX}")
                a.i(f"s_branch L_A_xdone{SFX}")
                a.label(f"L_A_xok{SFX}")
                a.i("s_mov_b64 exec, 0xff")
                a.i("v_and_b32 v147, 15, v146"); a.i("v_cmp_ne_u32 vcc, s57, v147")
                a.i("s_mov_b64 exec, -1")
                a.i("s_cmp_eq_u64 vcc, 0"); a.i("s_cselect_b32 s58, 1, 0")
                a.label(f"L_A_xdone{SFX}")
                if opt.force_slow: a.i("s_mov_b32 s58, 0")
                for r in range(4): a.i(f"v_mov_b32 v{148+r}, -1")
                a.i("v_lshlrev_b32 v7, 4, v2")
                a.i("s_lshl_b32 s43, s41, 12"); a.i("s_lshl_b32 s14, s3, 10"); a.i("s_add_u32 s43, s43, s14"); a.i(f"s_add_u32 s46, s43, {WS_OS}")
                g.store_var("buffer_store_dwordx4 v[148:151], v7, s[32:35], s46 offen"); seq.append(('p', 0))
            tb = T + (s_ & 1) * 16
            transpose4(a, tb, lambda i, w: WB + 16*s_ + 2*i + w)
            for e in range(4):
                c = "0" if s_ == 0 else vr(ACC+4*e)
                a.i(f"v_mfma_f32_16x16x32_bf16 {vr(ACC+4*e)}, {vr(XA+4*s_)}, {vr(tb+4*e)}, {c}")
    if opt.wq_ahead3 and opt.wq_ahead3 != opt.wq_ahead:
        a.i("s_cmp_eq_u32 s7, 3"); a.i("s_cbranch_scc1 L_A_q3")
        qproj(opt.wq_ahead, "a")
        a.i("s_branch L_A_qdone")
        a.label("L_A_q3")
        qproj(opt.wq_ahead3, "b")
        a.label("L_A_qdone")
    else:
        qproj(opt.wq_ahead, "a")
    a.i("v_lshlrev_b32 v9, 2, v2"); a.i("s_lshl_b32 s14, s3, 10"); a.i(f"s_add_u32 s14, s14, {L_QR}"); a.i("v_add_u32 v7, s14, v9")
    for r in range(4):
        for e in range(0, 4, 2):
            a.i(f"ds_write2st64_b32 v7, v{ACC+4*e+r}, v{ACC+4*(e+1)+r} offset0:{r*16+e} offset1:{r*16+e+1}")
    a.i("v_mov_b32 v10, s58"); a.i(f"ds_write_b32 v1, v10 offset:{FASTW}")
    a.i("s_waitcnt lgkmcnt(0)")
    g.signal(CQ)
    g.wait_cnt(CQ, 4)
    a.i("s_lshl_b32 s14, s3, 12"); a.i(f"s_add_u32 s14, s14, {L_QR}"); a.i("v_add_u32 v7, s14, v9")
    R = 152
    for src in range(4):
        for e in range(0, 4, 2):
            a.i(f"ds_read2st64_b32 {vr(R+4*src+e,2)}, v7 offset0:{src*4+e} offset1:{src*4+e+1}")
    a.i("v_lshlrev_b32 v9, 10, v3"); a.i("v_and_b32 v10, 1, v4"); a.i("v_lshl_add_u32 v9, v10, 9, v9")
    a.i("v_lshrrev_b32 v10, 3, v4"); a.i("v_lshl_add_u32 v9, v10, 8, v9"); a.i("v_bfe_u32 v10, v4, 1, 2"); a.i("v_lshl_add_u32 v9, v10, 4, v9")
    a.i("s_lshl_b32 s43, s41, 12"); a.i("s_lshl_b32 s14, s3, 6"); a.i("s_add_u32 s43, s43, s14"); a.i(f"s_add_u32 s43, s43, {WS_QS}")
    a.i("s_waitcnt lgkmcnt(0)")
    for e in range(4):
        a.i(f"v_add_f32 v{R+e}, v{R+e}, v{R+4+e}"); a.i(f"v_add_f32 v{R+8+e}, v{R+8+e}, v{R+12+e}")
    for e in range(4): a.i(f"v_add_f32 v{R+e}, v{R+e}, v{R+8+e}")
    a.i(f"v_cvt_pk_bf16_f32 v{R+4}, v{R}, v{R+1}"); a.i(f"v_cvt_pk_bf16_f32 v{R+5}, v{R+2}, v{R+3}")
    a.i(f"v_perm_b32 v{R+8}, v{R+4}, v8, s11"); a.i(f"v_perm_b32 v{R+9}, v{R+4}, v8, s12")
    a.i(f"v_perm_b32 v{R+10}, v{R+5}, v8, s11"); a.i(f"v_perm_b32 v{R+11}, v{R+5}, v8, s12")
    a.i("s_waitcnt vmcnt(0)")
    if opt.touch & 1:
        a.i("v_lshlrev_b32 v7, 4, v2")
        a.i("buffer_load_dwordx4 v[248:251], v7, s[32:35], s46 offen sc1")
    g.store_var(f"buffer_store_dwordx4 {vr(R+8)}, v9, s[32:35], s43 offen")
    g.stamp(2)
    astop(g, 2)
    QR = 176
    a.i("v_lshrrev_b32 v9, 2, v4"); a.i("v_lshlrev_b32 v9, 13, v9"); a.i("v_and_b32 v10, 3, v4"); a.i("v_lshl_add_u32 v9, v10, 6, v9"); a.i("v_lshl_add_u32 v9, v3, 4, v9")
    a.i("s_lshl_b32 s43, s42, 12"); a.i("s_lshl_b32 s14, s8, 10"); a.i("s_add_u32 s43, s43, s14"); a.i(f"s_add_u32 s43, s43, {WS_QS}")
    a.i("s_lshr_b32 s14, s3, 1"); a.i("s_lshl_b32 s14, s14, 12"); a.i("s_add_u32 s43, s43, s14")
    a.i("s_and_b32 s14, s3, 1"); a.i("s_lshl_b32 s14, s14, 8"); a.i("s_add_u32 s43, s43, s14")
    a.i("s_mov_b32 s45, 0")
    a.label("L_A_qretry")
    for u in range(2):
        a.i(f"buffer_load_dwordx4 {vr(QR+4*u)}, v9, s[32:35], s43 offen offset:{u*512} {opt.ld_flags}")
    a.i("v_mov_b32 v10, 0")
    a.i("s_waitcnt vmcnt(0)")
    for k in range(4):
        a.i(f"v_perm_b32 v11, v{QR+2*k+1}, v{QR+2*k}, s11")
        a.i(f"v_xor_b32 v11, v11, v8")
        a.i(f"v_or_b32 v10, v10, v11")
    a.i("v_cmp_ne_u32 vcc, 0, v10")
    g.retry_tail("L_A_qretry", "L_A_qok")
    for k in range(4):
        a.i(f"v_perm_b32 v{QR+8+k}, v{QR+2*k+1}, v{QR+2*k}, s12")
    a.i("v_lshlrev_b32 v9, 4, v2"); a.i("s_lshl_b32 s14, s3, 10"); a.i(f"s_add_u32 s14, s14, {L_Q}"); a.i("v_add_u32 v10, s14, v9")
    a.i(f"ds_write_b128 v10, {vr(QR+8)}")
    for st in range(4):
        a.i(f"v_add_u32 v10, {4*st}, v3"); a.i("v_xor_b32 v10, v10, v4"); a.i("v_lshlrev_b32 v10, 4, v10"); a.i("v_lshl_add_u32 v10, v4, 8, v10"); a.i(f"v_add_u32 v{12+st}, s47, v10")
    a.i("s_waitcnt lgkmcnt(0)")
    g.signal(CQ2)
    g.stamp(3)
    astop(g, 3)
    WR, WF = 32, 96
    srd(a, 48, 24, 25, 4 << 20)
    a.i("v_lshlrev_b32 v16, 15, v3"); a.i("v_lshl_add_u32 v16, v4, 3, v16")
    a.i("s_lshl_b32 s46, s4, 2"); a.i("s_add_u32 s46, s46, s3"); a.i("s_lshl_b32 s46, s46, 17"); a.i("s_lshl_b32 s15, s59, 7"); a.i("s_add_u32 s46, s46, s15")
    def wostep(st):
        if opt.srot:
            a.i(f"s_add_u32 s14, s6, {st}"); a.i("s_and_b32 s14, s14, 3"); a.i("s_lshl_b32 s14, s14, 13"); a.i("s_add_u32 s15, s46, s14")
            for i in range(8):
                if i == 4: a.i("s_add_u32 s15, s15, 4096")
                a.i(f"buffer_load_dwordx2 {vr(WR+16*st+2*i,2)}, v16, s[48:51], s15 offen offset:{(i&3)*1024} {opt.wo_flags}")
            return
        for i in range(8):
            if i % 4 == 0 and (st or i): a.i("s_add_u32 s46, s46, 4096")
            a.i(f"buffer_load_dwordx2 {vr(WR+16*st+2*i,2)}, v16, s[48:51], s46 offen offset:{(i&3)*1024} {opt.wo_flags}")
    KB = [96, 128]; QF = 160; SA = 192; PF = 224; ST = 240
    def kread(p):
        for tt in range(2):
            for st in range(4):
                a.i(f"ds_read_b128 {vr(KB[p&1]+16*tt+4*st)}, v{12+st} offset:{(2*p+tt)*4096}")
    g.wait_cnt(CQ2, 4)
    a.i(f"v_add_u32 v10, {L_Q}, v9")
    for st in range(4): a.i(f"ds_read_b128 {vr(QF+4*st)}, v10 offset:{st*1024}")
    a.i("s_lshl_b32 s14, s3, 2"); a.i("v_add_u32 v7, s14, v1")
    g.wait_cnt(CKD, 1, vaddr=7)
    kread(0); kread(1)
    for p in range(4):
        a.i(f"s_waitcnt lgkmcnt({8 if p < 3 else 0})")
        for tt in range(2):
            t = 2*p + tt
            for st in range(4):
                c = "0" if st == 0 else vr(SA+4*t)
                a.i(f"v_mfma_f32_16x16x32_bf16 {vr(SA+4*t)}, {vr(KB[p&1]+16*tt+4*st)}, {vr(QF+4*st)}, {c}")
        if p + 2 < 4: kread(p + 2)
    a.i(f"s_mov_b32 s13, {f2u(SCALE):#x}")
    a.i(f"v_max3_f32 v10, v{SA}, v{SA+1}, v{SA+2}")
    for r in range(3, 31, 2): a.i(f"v_max3_f32 v10, v10, v{SA+r}, v{SA+r+1}")
    a.i(f"v_max_f32 v10, v10, v{SA+31}")
    a.i("v_mov_b32 v11, v10"); a.i("v_permlane16_swap_b32 v10, v11"); a.i("v_max_f32 v10, v10, v11")
    a.i("v_mov_b32 v11, v10"); a.i("v_permlane32_swap_b32 v10, v11"); a.i("v_max_f32 v10, v10, v11")
    a.i("v_mul_f32 v12, s13, v10")
    for r in range(32): a.i(f"v_fma_f32 v{SA+r}, v{SA+r}, s13, -v12")
    for r in range(32): a.i(f"v_exp_f32 v{SA+r}, v{SA+r}")
    for k in range(16): a.i(f"v_cvt_pk_bf16_f32 v{PF+k}, v{SA+2*k}, v{SA+2*k+1}")
    a.i("v_lshlrev_b32 v9, 4, v2"); a.i("s_lshl_b32 s14, s3, 12"); a.i(f"s_add_u32 s14, s14, {L_P}"); a.i("v_add_u32 v9, s14, v9")
    for u in range(4): a.i(f"ds_write_b128 v9, {vr(PF+4*u)} offset:{u*1024}")
    a.i(f"v_add_f32 v10, v{SA}, v{SA+1}"); a.i(f"v_add_f32 v11, v{SA+2}, v{SA+3}")
    for r in range(4, 32, 2):
        a.i(f"v_add_f32 v10, v10, v{SA+r}"); a.i(f"v_add_f32 v11, v11, v{SA+r+1}")
    a.i("s_waitcnt lgkmcnt(0)")
    g.signal(CP, vaddr=7)
    a.i("v_add_f32 v10, v10, v11")
    a.i("v_mov_b32 v11, v10"); a.i("v_permlane16_swap_b32 v10, v11"); a.i("v_add_f32 v10, v10, v11")
    a.i("v_mov_b32 v11, v10"); a.i("v_permlane32_swap_b32 v10, v11"); a.i("v_add_f32 v13, v10, v11")
    a.i("v_mov_b32 v14, v8"); a.i("v_mov_b32 v15, v8")
    a.i("s_lshl_b32 s43, s41, 10"); a.i("s_lshl_b32 s14, s3, 8"); a.i("s_add_u32 s43, s43, s14"); a.i(f"s_add_u32 s43, s43, {WS_ST}")
    a.i("v_lshlrev_b32 v9, 4, v4")
    a.i("s_mov_b64 exec, 0xffff")
    g.store_var("buffer_store_dwordx4 v[12:15], v9, s[32:35], s43 offen")
    a.i("s_mov_b64 exec, -1")
    g.stamp(4)
    if opt.touch & 4:
        a.i("v_lshlrev_b32 v10, 4, v2")
        a.i("s_lshl_b32 s14, s41, 12"); a.i("s_lshl_b32 s15, s3, 10"); a.i("s_add_u32 s14, s14, s15"); a.i(f"s_add_u32 s14, s14, {WS_PS}")
        a.i(f"buffer_load_dwordx4 v[252:255], v10, s[32:35], s14 offen {opt.ptouch_flags}")
    if opt.pf:
        a.i("s_lshl_b32 s14, s4, 9"); a.i("s_lshl_b32 s15, s6, 7"); a.i("s_add_u32 s14, s14, s15"); a.i("s_lshl_b32 s15, s3, 5"); a.i("s_add_u32 s14, s14, s15"); a.i("s_lshl_b32 s14, s14, 10")
        a.i("s_lshl_b32 s15, s7, 7"); a.i("s_add_u32 s14, s14, s15")
        a.i("v_lshlrev_b32 v10, 10, v2")
        a.i("s_mov_b32 exec_hi, 0")
        a.i(f"buffer_load_dword v17, v10, s[48:51], s14 offen {opt.pf_flags}")
        a.i("s_mov_b64 exec, -1")
    a.i("s_and_b32 s43, s41, 0xfffffffe"); a.i("s_lshl_b32 s43, s43, 10"); a.i(f"s_add_u32 s43, s43, {WS_ST}")
    a.i("v_lshl_add_u32 v9, v3, 9, v9")
    a.i("s_mov_b32 s45, 0")
    a.label("L_A_sretry")
    a.i(f"buffer_load_dwordx4 {vr(ST)}, v9, s[32:35], s43 offen {opt.ld_flags}")
    a.i(f"buffer_load_dwordx4 {vr(ST+4)}, v9, s[32:35], s43 offen offset:256 {opt.ld_flags}")
    a.i("s_waitcnt vmcnt(0)")
    a.i(f"v_xor_b32 v10, v{ST+2}, v8"); a.i(f"v_xor_b32 v11, v{ST+3}, v8"); a.i("v_or_b32 v10, v10, v11")
    a.i(f"v_xor_b32 v11, v{ST+6}, v8"); a.i("v_or_b32 v10, v10, v11"); a.i(f"v_xor_b32 v11, v{ST+7}, v8"); a.i("v_or_b32 v10, v10, v11")
    a.i("v_cmp_ne_u32 vcc, 0, v10")
    g.retry_tail("L_A_sretry", "L_A_sok")
    a.i(f"v_max_f32 v10, v{ST}, v{ST+4}")
    a.i("v_mov_b32 v11, v10"); a.i("v_permlane16_swap_b32 v10, v11"); a.i("v_max_f32 v10, v10, v11")
    a.i("v_mov_b32 v11, v10"); a.i("v_permlane32_swap_b32 v10, v11"); a.i("v_max_f32 v10, v10, v11")
    a.i(f"v_sub_f32 v{ST}, v{ST}, v10"); a.i(f"v_sub_f32 v{ST+4}, v{ST+4}, v10")
    a.i(f"v_exp_f32 v{ST}, v{ST}"); a.i(f"v_exp_f32 v{ST+4}, v{ST+4}")
    a.i(f"v_mul_f32 v{ST+1}, v{ST+1}, v{ST}"); a.i(f"v_fmac_f32 v{ST+1}, v{ST+5}, v{ST+4}")
    a.i(f"v_mov_b32 v11, v{ST+1}"); a.i(f"v_permlane16_swap_b32 v{ST+1}, v11"); a.i(f"v_add_f32 v{ST+1}, v{ST+1}, v11")
    a.i(f"v_mov_b32 v11, v{ST+1}"); a.i(f"v_permlane32_swap_b32 v{ST+1}, v11"); a.i(f"v_add_f32 v11, v{ST+1}, v11")
    a.i("v_sub_f32 v12, v12, v10"); a.i("v_exp_f32 v12, v12"); a.i("v_rcp_f32 v11, v11"); a.i("v_mul_f32 v12, v12, v11")
    a.i("v_lshlrev_b32 v9, 2, v4"); a.i("s_lshl_b32 s14, s3, 6"); a.i(f"s_add_u32 s14, s14, {L_F}"); a.i("v_add_u32 v9, s14, v9")
    a.i("ds_write_b32 v9, v12")
    a.i("s_waitcnt lgkmcnt(0)")
    g.signal(CF)
    for st in range(opt.wo_early): wostep(st)
    if opt.wo_early < 4:
        g.wait_cnt(CV, 4)
        for st in range(opt.wo_early, 4): wostep(st)
    OG, CA = 192, 176
    a.i("v_add_u32 v10, s3, v4"); a.i("v_and_b32 v10, 3, v10")
    a.i("v_lshrrev_b32 v9, 2, v4"); a.i("v_lshlrev_b32 v9, 13, v9"); a.i("v_lshl_add_u32 v9, v10, 6, v9"); a.i("v_lshl_add_u32 v9, v3, 4, v9")
    a.i("s_lshl_b32 s43, s42, 12"); a.i("s_lshl_b32 s14, s3, 10"); a.i("s_add_u32 s43, s43, s14"); a.i(f"s_add_u32 s43, s43, {WS_OS}")
    a.i("s_add_u32 s44, s43, 4096")
    if opt.srot:
        for sp in range(2):
            for st in range(4):
                a.i(f"s_add_u32 s14, s6, {st}"); a.i("s_and_b32 s14, s14, 3"); a.i("s_lshl_b32 s14, s14, 8"); a.i(f"s_add_u32 s{80+4*sp+st}, s14, {'s43' if sp == 0 else 's44'}")
    a.i("s_lshl_b32 s46, s42, 4"); a.i(f"s_add_u32 s46, s46, {WS_OF}")
    a.i("v_lshlrev_b32 v7, 2, v2")
    for r in range(1, 4):
        a.i(f"s_add_u32 s14, s3, {r}"); a.i("s_and_b32 s14, s14, 3"); a.i("s_lshl_b32 s14, s14, 12"); a.i(f"s_add_u32 s14, s14, {L_CR + (r-1)*1024}"); a.i(f"v_add_u32 v{12+r}, s14, v7")
    a.i("s_lshl_b32 s14, s3, 12"); a.i(f"s_add_u32 s14, s14, {L_CR}"); a.i("v_add_u32 v12, s14, v7")
    a.i("v_lshlrev_b32 v17, 10, v3"); a.i("v_lshl_add_u32 v17, v4, 4, v17")
    a.i("s_lshl_b32 s47, s41, 12"); a.i("s_lshl_b32 s14, s3, 8"); a.i("s_add_u32 s47, s47, s14"); a.i(f"s_add_u32 s47, s47, {WS_PS}")
    for e in range(4): a.i(f"s_mov_b32 s{60+e}, {0x07060500+e:#x}")
    for st in range(opt.wo_early):
        a.i(f"s_waitcnt vmcnt({8*(3-st)})")
        transpose4(a, WF+16*st, lambda i, w: WR + 16*st + 2*i + w)
    if opt.t2: g.stamp(-1, tail=7)
    if not opt.bsync: a.i("s_barrier")
    g.stamp(-1, tail=1)
    for st in range(opt.wo_early, 4):
        a.i(f"s_waitcnt vmcnt({8*(3-st)})")
        transpose4(a, WF+16*st, lambda i, w: WR + 16*st + 2*i + w)
    g.stamp(5, tail=2)
    a.i("s_mov_b32 s45, 0")
    a.label("L_A_fretry")
    a.i("s_mov_b32 exec_hi, 0")
    a.i(f"buffer_load_dword v10, v7, s[32:35], s46 offen {opt.ld_flags}")
    a.i("s_waitcnt vmcnt(0)")
    a.i("v_cmp_ne_u32 vcc, v10, v8")
    a.i("s_mov_b64 exec, -1")
    g.retry_tail("L_A_fretry", "L_A_fok")
    g.stamp(-1, tail=3)
    if opt.dbgcnt: a.i("s_mov_b32 s92, s45")
    a.i("s_mov_b32 s45, 0")
    def ogather(fl):
        for sp in range(2):
            for st in range(4):
                if opt.srot:
                    a.i(f"buffer_load_dwordx4 {vr(OG+16*sp+4*st)}, v9, s[32:35], s{80+4*sp+st} offen {fl}")
                else:
                    a.i(f"buffer_load_dwordx4 {vr(OG+16*sp+4*st)}, v9, s[32:35], {'s43' if sp == 0 else 's44'} offen offset:{st*256} {fl}")
    if opt.o_plain:
        a.i("s_cmp_eq_u32 s58, 1"); a.i("s_cbranch_scc0 L_A_oretry")
        ogather("")
        a.i("s_branch L_A_ogo")
    a.label("L_A_oretry")
    ogather(opt.ld_flags)
    a.label("L_A_ogo")
    k = 0
    for sp in range(2):
        for st in range(4):
            a.i(f"s_waitcnt vmcnt({7-k})")
            for e in range(4):
                c = "0" if k == 0 else vr(CA+4*e)
                a.i(f"v_mfma_f32_16x16x32_bf16 {vr(CA+4*e)}, {vr(OG+16*sp+4*st)}, {vr(WF+16*st+4*e)}, {c}")
            b = OG+16*sp+4*st
            if k == 0: a.i(f"v_max3_u32 v10, v{b}, v{b+1}, v{b+2}"); a.i(f"v_max_u32 v10, v10, v{b+3}")
            else: a.i(f"v_max3_u32 v10, v10, v{b}, v{b+1}"); a.i(f"v_max3_u32 v10, v10, v{b+2}, v{b+3}")
            k += 1
    a.i("v_cmp_eq_u32 vcc, -1, v10")
    g.retry_tail("L_A_oretry", "L_A_ook")
    g.stamp(6, tail=4)
    if opt.regather:
        ogather("sc1")
        a.i("s_waitcnt vmcnt(0)")
        g.stamp(-1, tail=5)
    if opt.dbgcnt:
        a.i("s_mov_b64 exec, 1")
        a.i("v_mov_b32 v18, s45"); a.i("v_mov_b32 v19, s92")
        a.i("global_atomic_add v5, v18, s[28:29]"); a.i("global_atomic_add v5, v19, s[28:29] offset:4")
        a.i("global_atomic_add v5, v6, s[28:29] offset:8")
        a.i("s_mov_b64 exec, -1")
    for r in range(1, 4):
        for e in range(0, 4, 2):
            a.i(f"ds_write2st64_b32 v{12+r}, v{CA+4*e+r}, v{CA+4*(e+1)+r} offset0:{e} offset1:{e+1}")
    a.i("s_waitcnt lgkmcnt(0)")
    a.i("s_barrier")
    if not opt.regather: g.stamp(-1, tail=5)
    R = 20
    for slot in range(3):
        for e in range(0, 4, 2):
            a.i(f"ds_read2st64_b32 {vr(R+4*slot+e,2)}, v12 offset0:{slot*4+e} offset1:{slot*4+e+1}")
    a.i("s_waitcnt lgkmcnt(0)")
    for e in range(4):
        a.i(f"v_add_f32 v{R+e}, v{R+e}, v{R+4+e}"); a.i(f"v_add_f32 v{R+8+e}, v{R+8+e}, v{CA+4*e}")
    for e in range(4): a.i(f"v_add_f32 v{R+e}, v{R+e}, v{R+8+e}")
    for e in range(4): a.i(f"v_perm_b32 v{R+12+e}, v{R+e}, v8, s{60+e}")
    a.i(f"buffer_store_dwordx4 {vr(R+12)}, v17, s[32:35], s47 offen {opt.pst_flags}")
    g.stamp(7, tail=6)
    if opt.tstamps and not opt.t2:
        a.i("s_waitcnt vmcnt(0)")
        g.stamp(-1, tail=7)
    if opt.stamps:
        a.i("s_cmp_lg_u32 s3, 0"); a.i("s_cbranch_scc1 L_end")
        emit_stamps(g, 0, 8)
    a.i("s_branch L_end")

    a.label("L_B")
    a.i("s_sub_u32 s3, s3, 4")
    if opt.b_exit:
        for k in range(1, 8): g.stamp(k)
        a.i("s_cmp_lg_u32 s3, 0"); a.i("s_cbranch_scc1 L_end")
        emit_stamps(g, 8, 8, first=1)
        a.i("s_branch L_end")
    VF, PF2, T2, OA = 16, 144, 160, 192
    kvbase(a)
    a.i("s_mov_b32 s57, s14")
    if opt.rot:
        a.i("s_add_u32 s56, s5, s3"); a.i("s_and_b32 s56, s56, 7"); a.i("s_lshl_b32 s56, s56, 12")
    else:
        a.i("s_mov_b32 s56, 0")
    for n in range(4):
        a.i(f"v_add_u32 v10, {4*n}, v3"); a.i("v_xor_b32 v10, v10, v4"); a.i("v_lshlrev_b32 v10, 4, v10"); a.i(f"v_lshl_add_u32 v{12+n}, v3, 8, v10")
    a.i("s_lshl_b32 s47, s3, 15")
    a.i("s_lshl_b32 s15, s6, 7")
    a.i("s_waitcnt lgkmcnt(0)")
    srd(a, 48, 18, 19, 128*256, add="s57")
    a.i("s_load_dword s10, s[30:31], s15")
    srd(a, 36, 20, 21, 128*256, add="s57")
    srd(a, 32, 30, 31, WS_SIZE)
    if opt.bpf:
        srd(a, 52, 22, 23, 4 << 20)
        srd(a, 60, 16, 17, 65536)
        a.i("v_lshlrev_b32 v8, 4, v2")
        a.i("s_lshl_b32 s14, s5, 4"); a.i("s_lshl_b32 s15, s3, 2"); a.i("s_add_u32 s14, s14, s15"); a.i("s_lshl_b32 s14, s14, 13"); a.i("s_lshl_b32 s15, s4, 10"); a.i("s_add_u32 s14, s14, s15")
        for k in range(4):
            a.i(f"buffer_load_dwordx4 {vr(16+4*k)}, v8, s[52:55], s14 offen {opt.bpf_flags}")
            if k < 3: a.i("s_add_u32 s14, s14, 8192")
        a.i("s_lshl_b32 s14, s5, 1"); a.i("s_and_b32 s15, s3, 1"); a.i("s_add_u32 s14, s14, s15"); a.i("s_lshl_b32 s14, s14, 10")
        a.i(f"buffer_load_dwordx4 {vr(32)}, v8, s[60:63], s14 offen")
    NPF = 5 if opt.bpf else 0
    def stream(TH, THK):
        cnt = [NPF]
        pfsig = [not opt.bpf]
        def throttle():
            th = THK if (THK and cnt[0] < 32 + NPF) else TH
            if opt.thr_end and cnt[0] >= 32 + NPF + opt.end_from: th = max(th, opt.thr_end)
            if cnt[0] >= th: a.i(f"s_waitcnt vmcnt({th-1})")
            if not pfsig[0] and cnt[0] - th >= NPF - 1:
                g.signal(CWP); pfsig[0] = True
            cnt[0] += 1
        for t in range(8):
            a.i(f"s_add_u32 s14, s47, {t*4096}"); a.i("s_mov_b32 m0, s14"); a.i(f"s_xor_b32 s14, s56, {t*4096}")
            for n in range(4):
                throttle()
                a.i(f"buffer_load_dwordx4 v{12+n}, s[48:51], s14 offen offset:{n*1024} {opt.kv_flags if opt.k_flags == 'same' else opt.k_flags} lds")
            if t == 0:
                a.i("s_barrier")
                a.i("v_add_u32 v7, s3, v4"); a.i("v_and_b32 v7, 3, v7"); a.i("v_and_b32 v10, 12, v4"); a.i("v_or_b32 v7, v7, v10")
                a.i("v_lshlrev_b32 v7, 4, v7"); a.i("v_lshl_add_u32 v7, v3, 10, v7")
                a.i("s_lshl_b32 s15, s3, 2"); a.i("v_add_u32 v11, s15, v1")
            if opt.stagger and t == opt.stagger - 1: g.signal(CKS)
            if opt.bstamps and t in (1, 3, 5, 7): g.stamp(1 + t // 2)
        if not opt.bstamps: g.stamp(1)
        signaled = False
        for u in range(4):
            for i in range(8):
                if i % 4 == 0: a.i(f"s_xor_b32 s14, s56, {u*8192 + (i>>2)*4096}")
                throttle()
                n = cnt[0] - 1 - NPF
                if opt.wopf and u == opt.wopf - 1 and i == 0:
                    pass
                if not signaled and n - TH >= 31:
                    g.signal(CKD, vaddr=11)
                    signaled = True
                a.i(f"buffer_load_dwordx4 {vr(VF+32*u+4*i)}, v7, s[36:39], s14 offen offset:{(i&3)*256} {opt.kv_flags if opt.v_flags == 'same' else opt.v_flags}")
            if opt.bstamps and u in (0, 1, 3): g.stamp({0: 5, 1: 6, 3: 7}[u])
        assert signaled
    if opt.thr3:
        a.i("s_cmp_eq_u32 s7, 3"); a.i("s_cbranch_scc1 L_B_s3")
        stream(opt.thr, opt.thr_k)
        a.i("s_branch L_B_sdone")
        a.label("L_B_s3")
        stream(opt.thr3, opt.thr3)
        a.label("L_B_sdone")
    else:
        stream(opt.thr, opt.thr_k)
    g.signal(CV)
    if opt.bstamps:
        a.i("s_waitcnt vmcnt(0)")
        a.i("s_cmp_lg_u32 s3, 0"); a.i("s_cbranch_scc1 L_end")
        emit_stamps(g, 8, 8, first=1)
        a.i("s_branch L_end")
    g.stamp(2, tail=1)
    if opt.bench:
        a.i("s_waitcnt vmcnt(0)")
        for k in range(3, 8): g.stamp(k)
        a.i("s_cmp_lg_u32 s3, 0"); a.i("s_cbranch_scc1 L_end")
        emit_stamps(g, 8, 8, first=1)
        a.i("s_branch L_end")
    g.wait_cnt(CP, 1, vaddr=11)
    a.i("v_lshlrev_b32 v9, 4, v2"); a.i("s_lshl_b32 s14, s3, 12"); a.i(f"s_add_u32 s14, s14, {L_P}"); a.i("v_add_u32 v9, s14, v9")
    for u in range(4): a.i(f"ds_read_b128 {vr(PF2+4*u)}, v9 offset:{u*1024}")
    a.i(f"ds_read_b32 v10, v1 offset:{FASTW}")
    a.i("s_waitcnt lgkmcnt(0)")
    a.i(f"s_add_u32 s10, s10, {TAGINC:#x}")
    a.i("v_mov_b32 v8, s10")
    a.i("v_readfirstlane_b32 s58, v10")
    if not opt.t2: g.stamp(3, tail=2)
    if opt.b_prio_pv: a.i(f"s_setprio {opt.b_prio_pv}")
    def factors(wait=True):
        if wait: g.wait_cnt(CF, 4)
        for k in range(4):
            a.i(f"s_sub_u32 s14, s3, {k}"); a.i("s_and_b32 s14, s14, 3"); a.i("s_lshl_b32 s14, s14, 6"); a.i(f"s_add_u32 s14, s14, {L_F}")
            a.i(f"v_lshl_add_u32 v10, v4, 2, s14"); a.i(f"ds_read_b32 v{148+k}, v10")
    for u in range(4):
        L = lambda i, w: VF + 32*u + 4*i + w
        if u < 3:
            a.i(f"s_waitcnt vmcnt({(3-u)*8})")
            for e in range(8):
                w = e >> 1; sel = 's11' if (e & 1) == 0 else 's12'
                for p in range(4):
                    a.i(f"v_perm_b32 v{T2+4*e+p}, v{L(2*p+1,w)}, v{L(2*p,w)}, {sel}")
        else:
            for p in range(4):
                a.i(f"s_waitcnt vmcnt({6-2*p})")
                for e in range(8):
                    w = e >> 1; sel = 's11' if (e & 1) == 0 else 's12'
                    a.i(f"v_perm_b32 v{T2+4*e+p}, v{L(2*p+1,w)}, v{L(2*p,w)}, {sel}")
        for e in range(8):
            c = "0" if u == 0 else vr(OA+4*e)
            a.i(f"v_mfma_f32_16x16x32_bf16 {vr(OA+4*e)}, {vr(T2+4*e)}, {vr(PF2+4*u)}, {c}")
        if u == 2:
            if not opt.cf_late: factors()
            if opt.cf_late == 2:
                a.i(f"ds_read_b32 v10, v1 offset:{CF}"); a.i("s_waitcnt lgkmcnt(0)"); a.i("v_readfirstlane_b32 s93, v10")
                a.i("s_cmp_ge_u32 s93, 4"); a.i("s_cbranch_scc0 L_B_fskip")
                factors(False)
                a.label("L_B_fskip")
            a.i("v_lshrrev_b32 v12, 2, v4"); a.i("v_lshlrev_b32 v12, 10, v12"); a.i("v_and_b32 v10, 3, v4"); a.i("v_lshl_add_u32 v12, v10, 6, v12"); a.i("v_lshl_add_u32 v12, v3, 4, v12")
            a.i("s_lshl_b32 s43, s41, 12"); a.i("s_lshl_b32 s14, s3, 8"); a.i("s_add_u32 s43, s43, s14"); a.i(f"s_add_u32 s43, s43, {WS_OS}")
            a.i("s_lshl_b32 s44, s41, 4"); a.i("s_lshl_b32 s14, s3, 2"); a.i("s_add_u32 s44, s44, s14"); a.i(f"s_add_u32 s44, s44, {WS_OF}")
            a.i("v_lshlrev_b32 v9, 2, v2")
            for r in range(1, 4):
                a.i(f"s_add_u32 s14, s3, {r}"); a.i("s_and_b32 s14, s14, 3"); a.i("s_lshl_b32 s14, s14, 13"); a.i(f"s_add_u32 s14, s14, {L_OR + (r-1)*2048}"); a.i(f"v_add_u32 v{12+r}, s14, v9")
            a.i("s_lshl_b32 s14, s3, 13"); a.i(f"s_add_u32 s14, s14, {L_OR}"); a.i("v_add_u32 v7, s14, v9")
    if opt.cf_late == 1: factors()
    if opt.cf_late == 2:
        a.i("s_cmp_ge_u32 s93, 4"); a.i("s_cbranch_scc1 L_B_fdone")
        factors()
        a.label("L_B_fdone")
    g.stamp(4, tail=3)
    for r in range(1, 4):
        for e in range(0, 8, 2):
            a.i(f"ds_write2st64_b32 v{12+r}, v{OA+4*e+r}, v{OA+4*(e+1)+r} offset0:{e} offset1:{e+1}")
    a.i("s_waitcnt lgkmcnt(0)")
    if opt.t2: g.stamp(-1, tail=2)
    if opt.bsync:
        g.signal(CO)
        g.wait_cnt(CO, 4)
    else:
        a.i("s_barrier")
    g.stamp(-1, tail=4)
    R = 16
    for slot in range(3):
        for e in range(0, 8, 2):
            a.i(f"ds_read2st64_b32 {vr(R+8*slot+e,2)}, v7 offset0:{slot*8+e} offset1:{slot*8+e+1}")
    FR = 148
    for e in range(8): a.i(f"v_mul_f32 v{OA+4*e}, v{OA+4*e}, v{FR}")
    for slot in range(3):
        a.i(f"s_waitcnt lgkmcnt({4*(2-slot)})")
        for e in range(8): a.i(f"v_fmac_f32 v{OA+4*e}, v{R+8*slot+e}, v{FR+1+slot}")
    for p in range(4): a.i(f"v_cvt_pk_bf16_f32 v{R+32+p}, v{OA+8*p}, v{OA+8*p+4}")
    g.store_var(f"buffer_store_dwordx4 {vr(R+32)}, v12, s[32:35], s43 offen")
    a.i("s_mov_b64 exec, 1")
    g.store_var("buffer_store_dword v8, v5, s[32:35], s44 offen")
    a.i("s_mov_b64 exec, -1")
    g.stamp(5, tail=5)
    if opt.wstamps:
        a.i("s_waitcnt lgkmcnt(0)")
        a.i(f"s_add_u32 s90, s30, {STAMPOFF}"); a.i("s_addc_u32 s91, s31, 0")
        a.i("s_lshl_b32 s14, s2, 7"); a.i("s_add_u32 s90, s90, s14"); a.i("s_addc_u32 s91, s91, 0")
        a.i("s_lshl_b32 s14, s3, 3"); a.i("s_add_u32 s90, s90, s14"); a.i("s_addc_u32 s91, s91, 0")
        a.i("s_mov_b64 exec, 1")
        a.i("v_mov_b32 v60, s72"); a.i("v_mov_b32 v61, s73")
        a.i("global_store_dwordx2 v5, v[60:61], s[90:91] offset:64")
        a.i("v_mov_b32 v62, s68"); a.i("v_mov_b32 v63, s69")
        a.i("global_store_dwordx2 v5, v[62:63], s[90:91] offset:96")
        a.i("s_mov_b64 exec, -1")
    a.i("s_cmp_lg_u32 s3, 0"); a.i("s_cbranch_scc1 L_end")
    a.i("v_lshrrev_b32 v9, 5, v2"); a.i("v_lshlrev_b32 v9, 19, v9")
    a.i("v_and_b32 v10, 1, v3"); a.i("v_lshl_add_u32 v9, v10, 8, v9"); a.i("v_lshl_add_u32 v9, v4, 4, v9")
    a.i("s_lshl_b32 s43, s5, 12"); a.i("s_lshl_b32 s14, s4, 9"); a.i("s_add_u32 s43, s43, s14"); a.i(f"s_add_u32 s43, s43, {WS_PS}")
    srd(a, 36, 26, 27, 65536)
    a.i("v_and_b32 v10, 1, v3"); a.i("v_lshlrev_b32 v13, 10, v10"); a.i("v_lshl_add_u32 v13, v4, 3, v13")
    a.i("s_lshl_b32 s46, s6, 14"); a.i("s_lshl_b32 s14, s4, 11"); a.i("s_add_u32 s46, s46, s14"); a.i("s_lshl_b32 s14, s59, 7"); a.i("s_add_u32 s46, s46, s14")
    a.i("s_barrier")
    NP = opt.ppoll
    a.i("s_mov_b32 s14, 0x0c0c0400"); a.i("s_mov_b32 s15, 0x04000c0c")
    for k in range(4): a.i(f"s_add_u32 s{48+k}, s43, {k*32*4096}")
    def pissue(z):
        for k in range(4):
            a.i(f"buffer_load_dwordx4 {vr(16+16*z+4*k)}, v9, s[32:35], s{48+k} offen {opt.pld_flags}")
    a.i("s_mov_b32 s45, 0")
    for z in range(NP):
        pissue(z)
        if z < NP - 1 and opt.psleep: a.i(f"s_sleep {opt.psleep}")
    a.label("L_B_pretry")
    for z in range(NP):
        R = 16 + 16*z
        a.i(f"s_waitcnt vmcnt({4*(NP-1)})")
        for k in range(4):
            d = 10 if k == 0 else 11
            a.i(f"v_perm_b32 v{d}, v{R+4*k+1}, v{R+4*k}, s14"); a.i(f"v_perm_b32 v12, v{R+4*k+3}, v{R+4*k+2}, s15")
            if k == 0:
                a.i("v_or_b32 v10, v10, v12"); a.i("v_xor_b32 v10, v10, v8")
            else:
                a.i("v_or_b32 v11, v11, v12"); a.i("v_xor_b32 v11, v11, v8"); a.i("v_or_b32 v10, v10, v11")
        a.i("v_cmp_ne_u32 vcc, 0, v10")
        a.i(f"s_cbranch_vccz L_B_pok{z}")
        pissue(z)
    a.i("s_add_u32 s45, s45, 1")
    a.i(f"s_cmp_le_u32 s45, {opt.spin_limit}")
    a.i("s_cbranch_scc1 L_B_pretry")
    a.i("s_waitcnt vmcnt(0)")
    for z in range(NP):
        R = 16 + 16*z
        a.label(f"L_B_pok{z}")
        for e in range(4):
            a.i(f"v_add_f32 v{80+e}, v{R+e}, v{R+4+e}"); a.i(f"v_add_f32 v{84+e}, v{R+8+e}, v{R+12+e}")
        if z < NP - 1: a.i("s_branch L_B_psum")
    a.label("L_B_psum")
    g.stamp(6, tail=6)
    R = 80
    for e in range(4): a.i(f"v_add_f32 v{R+e}, v{R+e}, v{R+4+e}")
    for e in range(4): a.i(f"v_mov_b32 v{R+4+e}, v{R+e}")
    for e in range(4): a.i(f"v_permlane32_swap_b32 v{R+e}, v{R+4+e}")
    for e in range(4): a.i(f"v_add_f32 v{R+e}, v{R+e}, v{R+4+e}")
    a.i(f"v_cvt_pk_bf16_f32 v{R+8}, v{R}, v{R+1}"); a.i(f"v_cvt_pk_bf16_f32 v{R+9}, v{R+2}, v{R+3}")
    a.i("s_mov_b32 exec_hi, 0")
    a.i(f"buffer_store_dwordx2 {vr(R+8,2)}, v13, s[36:39], s46 offen")
    a.i("s_or_b32 s14, s4, s7"); a.i("s_cmp_lg_u32 s14, 0"); a.i("s_cbranch_scc1 L_B_fin")
    a.i("s_mov_b64 exec, 1")
    a.i("s_lshl_b32 s14, s6, 7")
    a.i(f"buffer_store_dword v8, v5, s[32:35], s14 offen sc1")
    a.label("L_B_fin")
    a.i("s_mov_b64 exec, -1")
    if opt.stamps:
        a.i("s_waitcnt vmcnt(0)")
        a.i("s_memrealtime s[78:79]")
        if not opt.wstamps: emit_stamps(g, 8, 8, first=1)
    a.label("L_end"); a.i("s_endpgm")

    out = Asm()
    out(HEADER + f"; @launch grid=(256,1,1) block=(512,1,1) lds={L_END}")
    out('.amdgcn_target "amdgcn-amd-amdhsa--gfx950"\n.text')
    lines, n = hazard.fix(a.lines)
    out.lines += lines
    out('.section .rodata,"a"')
    out(kernel_desc(NAME, 256))
    return out.text(), n

def emit_stamps(g, slot0, n, first=0):
    a = g.a
    a.i("s_waitcnt lgkmcnt(0)")
    a.i(f"s_add_u32 s90, s30, {STAMPOFF}"); a.i("s_addc_u32 s91, s31, 0")
    a.i("s_lshl_b32 s14, s2, 7"); a.i("s_add_u32 s90, s90, s14"); a.i("s_addc_u32 s91, s91, 0")
    a.i("s_mov_b64 exec, 1")
    for k in range(first, n):
        a.i(f"v_mov_b32 v20, s{64+2*k}"); a.i(f"v_mov_b32 v21, s{65+2*k}")
        a.i(f"global_store_dwordx2 v5, v[20:21], s[90:91] offset:{(slot0+k-first)*8}")
        a.i("s_nop 1")
    a.i("s_mov_b64 exec, -1")

if __name__ == "__main__":
    o = Opt()
    out = sys.argv[1]
    for kv in sys.argv[2:]:
        k, v = kv.split("=")
        cur = getattr(o, k)
        if isinstance(cur, bool): v = v in ("1", "True", "true")
        elif isinstance(cur, int): v = int(v)
        else: v = v.replace("+", " ")
        setattr(o, k, v)
    t, n = gen(o)
    open(out, "w").write(t)
    print(out, "nops inserted:", n, "lines:", t.count("\n"))
```

```python
import sys, struct
from asmlib import *
import hazard

NAME = "standalone__sliding_block_cached__sampling_kernel"
def f2u(x): return struct.unpack('<I', struct.pack('<f', x))[0]
SCALE = 0.08838834764831845 * 1.4426950408889634

WS_XID = 0x8000
WS_OF = 0x9000
WS_QS = 0x10000
WS_ST = 0x200000
WS_OS = 0x300000
WS_PS = 0x500000
WS_SIZE = 0x800000
STAMPOFF = 256 << 20
TAGINC = 0x9E3779B9

L_K = 0
L_OR = 0
L_CR = 32768
L_QR = 131072
L_P = 131072
L_CNT = 147456
L_F = L_CNT + 64
L_Q = L_CNT + 512
L_END = L_Q + 4096
CQ, CKS, CV, CO, CC, CP, CF, CQ2, CKD, FASTW = 0, 4, 8, 12, 16, 20, 36, 40, 44, 60
CWP = CO

class Opt:
    stamps = False
    kv_flags = "nt"
    w_flags = "nt"
    x_flags = ""
    ld_flags = "sc1"
    spin_limit = 30000
    a_prio = 2
    b_prio_pv = 3
    rot = 1
    thr = 7
    wo_mode = 1
    wq_ahead = 2
    force_slow = 0
    bench = 0
    a_stop = 0
    oflag = 1
    dyn = 1
    late_th = 0
    late_at = 3
    emu = 0
    bsync = 1
    t2 = 0
    perm = 0
    pst_flags = "sc1"
    pld_flags = "sc1"
    cf_late = 1
    wstamps = 0
    thr_end = 0
    end_from = 16
    wo_flags = "nt"
    srot = 1
    wq_ahead3 = 0
    k_flags = "same"
    v_flags = "same"
    cwpstamp = 0
    bpf = 0
    bpf_flags = ""
    wopf = 0
    ppoll = 3
    psleep = 6
    ptouch_flags = ""
    touch = 1
    regather = 0
    o_plain = 1
    dbgcnt = 0
    ntx = 4
    thr3 = 0
    pf = 0
    pf_flags = ""
    tstamps = 0
    wo_early = 2
    b_exit = 0
    wq_rowrot = 0
    wq_colxor = 0
    bstamps = 0
    stagger = 0
    thr_k = 0
    stag_bit = 0
    xid_tries = 4

def vr(b, n=4): return f"v[{b}:{b+n-1}]" if n > 1 else f"v{b}"

def srd(a, d, lo, hi, size, add=None):
    if add is None:
        a.i(f"s_mov_b32 s{d}, s{lo}"); a.i(f"s_mov_b32 s{d+1}, s{hi}")
    else:
        a.i(f"s_add_u32 s{d}, s{lo}, {add}"); a.i(f"s_addc_u32 s{d+1}, s{hi}, 0")
    a.i(f"s_mov_b32 s{d+2}, {size}"); a.i(f"s_mov_b32 s{d+3}, 0x20000")

class G:
    def __init__(self, opt):
        self.a = Asm(); self.o = opt; self.nl = 0
    def lab(self, p):
        self.nl += 1; return f"L{p}{self.nl}"
    def stamp(self, k, tail=None):
        if self.o.tstamps:
            if tail is None and k != 0: return
            if tail is not None: k = tail
            if k < 0: return
        elif tail is not None and k < 0: return
        if self.o.stamps:
            self.a.i(f"s_memrealtime s[{64+2*k}:{65+2*k}]")
    def signal(self, cnt, vaddr=1):
        a = self.a
        a.i("s_mov_b64 exec, 1")
        a.i(f"ds_add_u32 v{vaddr}, v6 offset:{cnt}")
        a.i("s_mov_b64 exec, -1")
    def wait_cnt(self, cnt, n, vt=10, vaddr=1, sleep=0):
        a = self.a
        L = self.lab("w")
        a.i("s_mov_b32 s15, 0")
        a.label(L)
        if sleep: a.i(f"s_sleep {sleep}")
        a.i(f"ds_read_b32 v{vt}, v{vaddr} offset:{cnt}")
        a.i("s_add_u32 s15, s15, 1")
        a.i("s_waitcnt lgkmcnt(0)")
        a.i(f"v_readfirstlane_b32 s14, v{vt}")
        a.i(f"s_cmp_gt_u32 s15, {self.o.spin_limit*16}")
        a.i(f"s_cbranch_scc1 {L}_o")
        a.i(f"s_cmp_ge_u32 s14, {n}")
        a.i(f"s_cbranch_scc0 {L}")
        a.label(f"{L}_o")
    def retry_tail(self, Lretry, Lok):
        a = self.a
        a.i("s_add_u32 s45, s45, 1")
        a.i(f"s_cmp_gt_u32 s45, {self.o.spin_limit}")
        a.i(f"s_cbranch_scc1 {Lok}")
        a.i(f"s_cbranch_vccnz {Lretry}")
        a.label(Lok)
    def store_var(self, ins):
        a = self.a; L = self.lab("s")
        a.i("s_cmp_eq_u32 s58, 1"); a.i(f"s_cbranch_scc1 {L}_f")
        a.i(ins + " sc1"); a.i(f"s_branch {L}_d")
        a.label(f"{L}_f"); a.i(ins); a.label(f"{L}_d")

def transpose4(a, dst, L):
    for e in range(4):
        w = e >> 1; sel = 's11' if (e & 1) == 0 else 's12'
        for p in range(4):
            a.i(f"v_perm_b32 v{dst+4*e+p}, v{L(2*p+1,w)}, v{L(2*p,w)}, {sel}")

def kvbase(a):
    a.i("s_lshr_b32 s14, s5, 1"); a.i("s_lshl_b32 s14, s14, 3"); a.i("s_add_u32 s14, s14, s4"); a.i("s_lshl_b32 s14, s14, 12")
    a.i("s_lshl_b32 s15, s9, 9"); a.i("s_add_u32 s14, s14, s15"); a.i("s_lshl_b32 s15, s3, 7"); a.i("s_add_u32 s14, s14, s15")
    a.i("s_add_u32 s14, s14, 3072"); a.i("s_lshl_b32 s14, s14, 8")

def astop(g, n):
    opt = g.o; a = g.a
    if opt.a_stop == n:
        for k in range(n + 1, 8): g.stamp(k)
        if opt.stamps:
            a.i("s_cmp_lg_u32 s3, 0"); a.i("s_cbranch_scc1 L_end")
            emit_stamps(g, 0, 8)
        a.i("s_branch L_end")

def gen(opt):
    g = G(opt); a = g.a
    kernel_begin(a, NAME)
    a.i("s_cmp_ge_u32 s2, 256"); a.i("s_cbranch_scc1 L_end")
    if opt.perm == 1:
        a.i("s_lshl_b32 s3, s2, 3"); a.i("s_lshr_b32 s4, s2, 5"); a.i("s_or_b32 s2, s3, s4"); a.i("s_and_b32 s2, s2, 255")
    if opt.perm == 2:
        a.i("s_xor_b32 s2, s2, 8"); a.i("s_lshr_b32 s3, s2, 6"); a.i("s_xor_b32 s2, s2, s3")
    g.stamp(0)
    a.i("s_load_dwordx16 s[16:31], s[0:1], 0")
    a.i("v_lshrrev_b32 v1, 6, v0"); a.i("v_and_b32 v2, 63, v0")
    a.i("v_readfirstlane_b32 s3, v1")
    a.i("s_and_b32 s4, s2, 7")
    a.i("s_lshr_b32 s5, s2, 3")
    a.i("s_lshr_b32 s6, s5, 3")
    a.i("s_and_b32 s7, s5, 7")
    a.i(f"s_xor_b32 s59, s7, {opt.ntx}")
    a.i("s_bfe_u32 s8, s5, 0x20001")
    a.i("s_and_b32 s9, s5, 1")
    a.i("v_lshrrev_b32 v3, 4, v2"); a.i("v_and_b32 v4, 15, v2")
    a.i("v_mov_b32 v5, 0"); a.i("v_mov_b32 v6, 1")
    a.i(f"v_mov_b32 v1, {L_CNT}")
    a.i("s_mov_b32 s11, 0x05040100"); a.i("s_mov_b32 s12, 0x07060302")
    a.i("s_lshl_b32 s40, s4, 5"); a.i("s_add_u32 s41, s40, s5")
    a.i("s_and_b32 s42, s41, 0xfffffff8")
    a.i("s_cmp_ge_u32 s3, 4"); a.i("s_cbranch_scc1 L_B")

    if opt.a_prio: a.i(f"s_setprio {opt.a_prio}")
    a.i("s_cmp_lg_u32 s3, 0"); a.i("s_cbranch_scc1 L_P1")
    a.i("v_lshl_add_u32 v7, v2, 2, v1"); a.i("ds_write_b32 v7, v5 offset:0")
    a.label("L_P1")
    XA, WB, T, ACC = 16, 32, 96, 128
    a.i("v_lshlrev_b32 v8, 10, v4"); a.i("v_lshl_add_u32 v8, v3, 4, v8")
    a.i("v_lshlrev_b32 v9, 16, v3"); a.i("v_lshl_add_u32 v9, v4, 3, v9")
    a.i("s_lshl_b32 s14, s6, 14"); a.i("s_lshl_b32 s15, s3, 8"); a.i("s_add_u32 s45, s14, s15")
    a.i("s_lshl_b32 s44, s3, 20"); a.i("s_lshl_b32 s14, s4, 10"); a.i("s_add_u32 s44, s44, s14"); a.i(f"s_xor_b32 s14, s7, {opt.wq_colxor}"); a.i("s_lshl_b32 s14, s14, 7"); a.i("s_add_u32 s44, s44, s14")
    a.i("s_lshl_b32 s47, s3, 15")
    a.i("s_lshl_b32 s15, s6, 7")
    a.i("s_waitcnt lgkmcnt(0)")
    a.i("s_load_dword s10, s[30:31], s15")
    srd(a, 48, 22, 23, 4 << 20)
    srd(a, 52, 16, 17, 65536)
    srd(a, 32, 30, 31, WS_SIZE)
    def xidpub():
        a.i("s_getreg_b32 s57, hwreg(HW_REG_XCC_ID, 0, 4)")
        a.i("s_waitcnt lgkmcnt(0)")
        a.i(f"s_add_u32 s10, s10, {TAGINC:#x}")
        a.i("s_and_b32 s14, s10, 0xfffffff0"); a.i("s_or_b32 s14, s14, s57"); a.i("v_mov_b32 v144, s14")
        a.i("s_lshl_b32 s14, s41, 2"); a.i(f"s_add_u32 s14, s14, {WS_XID}")
        a.i("s_mov_b64 exec, 1")
        a.i("buffer_store_dword v144, v5, s[32:35], s14 offen")
        a.i("s_mov_b64 exec, -1")
    if opt.stagger: xidpub()
    if opt.stagger:
        a.i(f"s_bitcmp1_b32 s5, {opt.stag_bit}"); a.i("s_cbranch_scc0 L_A_nostag")
        g.wait_cnt(CKS, 4)
        a.label("L_A_nostag")
    if opt.pf:
        a.i("s_lshl_b32 s14, s6, 7"); a.i("s_lshl_b32 s15, s3, 5"); a.i("s_add_u32 s14, s14, s15"); a.i("s_lshl_b32 s14, s14, 13")
        a.i("s_lshl_b32 s15, s4, 10"); a.i("s_add_u32 s14, s14, s15"); a.i("s_lshl_b32 s15, s7, 7"); a.i("s_add_u32 s14, s14, s15")
        a.i("v_lshlrev_b32 v10, 13, v2")
        a.i("s_mov_b32 exec_hi, 0")
        a.i(f"buffer_load_dword v146, v10, s[48:51], s14 offen {opt.pf_flags}")
        a.i("s_lshl_b32 s14, s6, 14"); a.i("s_lshl_b32 s15, s7, 11"); a.i("s_add_u32 s14, s14, s15"); a.i("s_lshl_b32 s15, s3, 9"); a.i("s_add_u32 s14, s14, s15")
        a.i("v_lshlrev_b32 v10, 7, v2")
        a.i("s_mov_b64 exec, 0xf")
        a.i(f"buffer_load_dword v147, v10, s[52:55], s14 offen")
        a.i("s_mov_b64 exec, -1")
        if not opt.stagger: xidpub()
        a.i("s_waitcnt vmcnt(0)")
    if opt.bpf:
        g.wait_cnt(CWP, 4)
        if opt.cwpstamp: g.stamp(1)
    if opt.emu == 2:
        a.i("s_barrier")
        for k in range(1, 8): g.stamp(k)
        a.i("s_cmp_lg_u32 s3, 0"); a.i("s_cbranch_scc1 L_end")
        emit_stamps(g, 0, 8)
        a.i("s_branch L_end")
    if opt.emu == 1:
        a.i("v_lshrrev_b32 v10, 3, v2"); a.i("v_and_b32 v11, 7, v2"); a.i("v_lshlrev_b32 v10, 13, v10"); a.i("v_lshl_add_u32 v10, v11, 4, v10")
        a.i("s_lshl_b32 s14, s6, 7"); a.i("s_lshl_b32 s15, s3, 5"); a.i("s_add_u32 s14, s14, s15"); a.i("s_lshl_b32 s14, s14, 13")
        a.i("s_lshl_b32 s15, s4, 10"); a.i("s_add_u32 s14, s14, s15"); a.i("s_lshl_b32 s15, s7, 7"); a.i("s_add_u32 s14, s14, s15")
        for k in range(4):
            a.i(f"buffer_load_dwordx4 {vr(32+4*k)}, v10, s[48:51], s14 offen {opt.w_flags}"); a.i("s_add_u32 s14, s14, 65536")
        a.i("v_lshlrev_b32 v10, 10, v3"); a.i("v_lshl_add_u32 v10, v4, 4, v10")
        a.i("s_lshl_b32 s14, s3, 14"); a.i("s_lshl_b32 s15, s6, 8"); a.i("s_add_u32 s14, s14, s15")
        for k in range(4):
            a.i(f"buffer_load_dwordx4 {vr(16+4*k)}, v10, s[52:55], s14 offen"); a.i("s_add_u32 s14, s14, 4096")
        a.i("s_barrier")
        a.i("s_waitcnt lgkmcnt(0)")
        a.i(f"s_add_u32 s10, s10, {TAGINC:#x}"); a.i("v_mov_b32 v8, s10"); a.i("s_mov_b32 s58, 1")
        a.i("s_waitcnt vmcnt(0)")
        g.stamp(1)
        a.i("v_lshlrev_b32 v7, 4, v2")
        a.i("s_lshl_b32 s14, s41, 14"); a.i("s_lshl_b32 s15, s3, 12"); a.i("s_add_u32 s14, s14, s15"); a.i("s_add_u32 s14, s14, 0x800000")
        a.i("s_mov_b32 s34, 0x2000000")
        for k in range(4):
            a.i(f"buffer_store_dwordx4 {vr(32+4*k)}, v7, s[32:35], s14 offen offset:{k*1024}")
        for k in range(4):
            a.i(f"s_and_b32 s14, s41, 0xffffffe7"); a.i(f"s_or_b32 s14, s14, {k*8}"); a.i("s_lshl_b32 s14, s14, 14"); a.i("s_lshl_b32 s15, s6, 12"); a.i("s_add_u32 s14, s14, s15"); a.i("s_lshl_b32 s15, s3, 10"); a.i("s_add_u32 s14, s14, s15"); a.i("s_add_u32 s14, s14, 0x800000")
            a.i(f"buffer_load_dwordx4 {vr(48+4*k)}, v7, s[32:35], s14 offen sc1")
        a.i("s_waitcnt vmcnt(0)")
        a.i("s_lshl_b32 s14, s41, 12"); a.i("s_lshl_b32 s15, s3, 10"); a.i("s_add_u32 s14, s14, s15"); a.i(f"s_add_u32 s14, s14, {WS_QS}")
        a.i(f"buffer_store_dwordx4 {vr(48)}, v7, s[32:35], s14 offen")
        g.stamp(2)
        for k in range(3, 8): g.stamp(k)
        a.i("s_cmp_lg_u32 s3, 0"); a.i("s_cbranch_scc1 L_end")
        emit_stamps(g, 0, 8)
        a.i("s_branch L_end")
    def qproj(AHEAD, SFX):
        seq = []
        def wqstep(s_):
            if opt.srot:
                a.i(f"s_add_u32 s14, s6, {s_}"); a.i("s_and_b32 s14, s14, 3"); a.i("s_lshl_b32 s14, s14, 18"); a.i("s_add_u32 s15, s44, s14")
                for i in range(8):
                    a.i(f"buffer_load_dwordx2 {vr(WB+16*s_+2*i,2)}, v9, s[48:51], s15 offen {opt.w_flags}")
                    if i < 7: a.i(f"s_add_u32 s15, s15, 8192")
                    seq.append(('w', s_))
                return
            for i in range(8):
                a.i(f"buffer_load_dwordx2 {vr(WB+16*s_+2*i,2)}, v9, s[48:51], s44 offen {opt.w_flags}")
                a.i(f"s_add_u32 s44, s44, 8192")
                seq.append(('w', s_))
            if s_ < 3: a.i(f"s_add_u32 s44, s44, {24*8192}")
        wqstep(0)
        for s2 in range(4):
            if opt.srot:
                a.i(f"s_add_u32 s14, s6, {s2}"); a.i("s_and_b32 s14, s14, 3"); a.i("s_lshl_b32 s14, s14, 6"); a.i("s_add_u32 s14, s14, s45")
                a.i(f"buffer_load_dwordx4 {vr(XA+4*s2)}, v8, s[52:55], s14 offen {opt.x_flags}")
            else:
                a.i(f"buffer_load_dwordx4 {vr(XA+4*s2)}, v8, s[52:55], s45 offen offset:{s2*64} {opt.x_flags}")
            seq.append(('x', 0))
        a.i("s_barrier")
        a.i("s_lshl_b32 s46, s42, 2"); a.i(f"s_add_u32 s46, s46, {WS_XID}")
        a.i("v_lshlrev_b32 v145, 2, v2")
        def xidload():
            a.i("s_mov_b64 exec, 0xff")
            a.i("buffer_load_dword v146, v145, s[32:35], s46 offen sc1")
            a.i("s_mov_b64 exec, -1")
        issued = 1
        while issued < min(4, AHEAD):
            wqstep(issued); issued += 1
        xidpub(); seq.append(('s', 0))
        a.i("v_mov_b32 v8, s10")
        for s_ in range(4):
            last = max([i for i, e in enumerate(seq) if e == ('w', s_) or (s_ == 0 and e[0] == 'x') or (s_ == 2 and e[0] == 'i')])
            a.i(f"s_waitcnt vmcnt({len(seq)-1-last})")
            if s_ == 0:
                xidload(); seq.append(('i', 0))
                if opt.touch & 2:
                    a.i("v_lshlrev_b32 v7, 4, v2")
                    a.i("s_lshl_b32 s14, s41, 12"); a.i("s_lshl_b32 s15, s3, 10"); a.i("s_add_u32 s14, s14, s15"); a.i(f"s_add_u32 s14, s14, {WS_QS}")
                    a.i("buffer_load_dwordx4 v[240:243], v7, s[32:35], s14 offen sc1"); seq.append(('t', 0))
                    a.i("s_lshl_b32 s14, s41, 10"); a.i("s_lshl_b32 s15, s3, 8"); a.i("s_add_u32 s14, s14, s15"); a.i(f"s_add_u32 s14, s14, {WS_ST}")
                    a.i("s_mov_b64 exec, 0xffff")
                    a.i("buffer_load_dwordx4 v[244:247], v7, s[32:35], s14 offen sc1"); seq.append(('t', 0))
                    a.i("s_mov_b64 exec, -1")
            if issued < 4:
                wqstep(issued); issued += 1
            if s_ == 0 and not opt.cwpstamp: g.stamp(1)
            if s_ == 2:
                a.i("s_mov_b32 s45, 0"); a.i("s_mov_b32 s58, 0")
                a.i(f"s_branch L_A_xchk{SFX}")
                a.label(f"L_A_xretry{SFX}")
                xidload()
                a.i("s_waitcnt vmcnt(0)")
                a.label(f"L_A_xchk{SFX}")
                a.i("s_mov_b64 exec, 0xff")
                a.i("v_xor_b32 v147, v146, v8"); a.i("v_and_b32 v147, 0xfffffff0, v147"); a.i("v_cmp_ne_u32 vcc, 0, v147")
                a.i("s_mov_b64 exec, -1")
                a.i(f"s_cbranch_vccz L_A_xok{SFX}")
                a.i("s_add_u32 s45, s45, 1")
                a.i(f"s_cmp_lt_u32 s45, {opt.xid_tries}")
                a.i(f"s_cbranch_scc1 L_A_xretry{SFX}")
                a.i(f"s_branch L_A_xdone{SFX}")
                a.label(f"L_A_xok{SFX}")
                a.i("s_mov_b64 exec, 0xff")
                a.i("v_and_b32 v147, 15, v146"); a.i("v_cmp_ne_u32 vcc, s57, v147")
                a.i("s_mov_b64 exec, -1")
                a.i("s_cmp_eq_u64 vcc, 0"); a.i("s_cselect_b32 s58, 1, 0")
                a.label(f"L_A_xdone{SFX}")
                if opt.force_slow: a.i("s_mov_b32 s58, 0")
                for r in range(4): a.i(f"v_mov_b32 v{148+r}, -1")
                a.i("v_lshlrev_b32 v7, 4, v2")
                a.i("s_lshl_b32 s43, s41, 12"); a.i("s_lshl_b32 s14, s3, 10"); a.i("s_add_u32 s43, s43, s14"); a.i(f"s_add_u32 s46, s43, {WS_OS}")
                g.store_var("buffer_store_dwordx4 v[148:151], v7, s[32:35], s46 offen"); seq.append(('p', 0))
            tb = T + (s_ & 1) * 16
            transpose4(a, tb, lambda i, w: WB + 16*s_ + 2*i + w)
            for e in range(4):
                c = "0" if s_ == 0 else vr(ACC+4*e)
                a.i(f"v_mfma_f32_16x16x32_bf16 {vr(ACC+4*e)}, {vr(XA+4*s_)}, {vr(tb+4*e)}, {c}")
    if opt.wq_ahead3 and opt.wq_ahead3 != opt.wq_ahead:
        a.i("s_cmp_eq_u32 s7, 3"); a.i("s_cbranch_scc1 L_A_q3")
        qproj(opt.wq_ahead, "a")
        a.i("s_branch L_A_qdone")
        a.label("L_A_q3")
        qproj(opt.wq_ahead3, "b")
        a.label("L_A_qdone")
    else:
        qproj(opt.wq_ahead, "a")
    a.i("v_lshlrev_b32 v9, 2, v2"); a.i("s_lshl_b32 s14, s3, 10"); a.i(f"s_add_u32 s14, s14, {L_QR}"); a.i("v_add_u32 v7, s14, v9")
    for r in range(4):
        for e in range(0, 4, 2):
            a.i(f"ds_write2st64_b32 v7, v{ACC+4*e+r}, v{ACC+4*(e+1)+r} offset0:{r*16+e} offset1:{r*16+e+1}")
    a.i("v_mov_b32 v10, s58"); a.i(f"ds_write_b32 v1, v10 offset:{FASTW}")
    a.i("s_waitcnt lgkmcnt(0)")
    g.signal(CQ)
    g.wait_cnt(CQ, 4)
    a.i("s_lshl_b32 s14, s3, 12"); a.i(f"s_add_u32 s14, s14, {L_QR}"); a.i("v_add_u32 v7, s14, v9")
    R = 152
    for src in range(4):
        for e in range(0, 4, 2):
            a.i(f"ds_read2st64_b32 {vr(R+4*src+e,2)}, v7 offset0:{src*4+e} offset1:{src*4+e+1}")
    a.i("v_lshlrev_b32 v9, 10, v3"); a.i("v_and_b32 v10, 1, v4"); a.i("v_lshl_add_u32 v9, v10, 9, v9")
    a.i("v_lshrrev_b32 v10, 3, v4"); a.i("v_lshl_add_u32 v9, v10, 8, v9"); a.i("v_bfe_u32 v10, v4, 1, 2"); a.i("v_lshl_add_u32 v9, v10, 4, v9")
    a.i("s_lshl_b32 s43, s41, 12"); a.i("s_lshl_b32 s14, s3, 6"); a.i("s_add_u32 s43, s43, s14"); a.i(f"s_add_u32 s43, s43, {WS_QS}")
    a.i("s_waitcnt lgkmcnt(0)")
    for e in range(4):
        a.i(f"v_add_f32 v{R+e}, v{R+e}, v{R+4+e}"); a.i(f"v_add_f32 v{R+8+e}, v{R+8+e}, v{R+12+e}")
    for e in range(4): a.i(f"v_add_f32 v{R+e}, v{R+e}, v{R+8+e}")
    a.i(f"v_cvt_pk_bf16_f32 v{R+4}, v{R}, v{R+1}"); a.i(f"v_cvt_pk_bf16_f32 v{R+5}, v{R+2}, v{R+3}")
    a.i(f"v_perm_b32 v{R+8}, v{R+4}, v8, s11"); a.i(f"v_perm_b32 v{R+9}, v{R+4}, v8, s12")
    a.i(f"v_perm_b32 v{R+10}, v{R+5}, v8, s11"); a.i(f"v_perm_b32 v{R+11}, v{R+5}, v8, s12")
    a.i("s_waitcnt vmcnt(0)")
    if opt.touch & 1:
        a.i("v_lshlrev_b32 v7, 4, v2")
        a.i("buffer_load_dwordx4 v[248:251], v7, s[32:35], s46 offen sc1")
    g.store_var(f"buffer_store_dwordx4 {vr(R+8)}, v9, s[32:35], s43 offen")
    g.stamp(2)
    astop(g, 2)
    QR = 176
    a.i("v_lshrrev_b32 v9, 2, v4"); a.i("v_lshlrev_b32 v9, 13, v9"); a.i("v_and_b32 v10, 3, v4"); a.i("v_lshl_add_u32 v9, v10, 6, v9"); a.i("v_lshl_add_u32 v9, v3, 4, v9")
    a.i("s_lshl_b32 s43, s42, 12"); a.i("s_lshl_b32 s14, s8, 10"); a.i("s_add_u32 s43, s43, s14"); a.i(f"s_add_u32 s43, s43, {WS_QS}")
    a.i("s_lshr_b32 s14, s3, 1"); a.i("s_lshl_b32 s14, s14, 12"); a.i("s_add_u32 s43, s43, s14")
    a.i("s_and_b32 s14, s3, 1"); a.i("s_lshl_b32 s14, s14, 8"); a.i("s_add_u32 s43, s43, s14")
    a.i("s_mov_b32 s45, 0")
    a.label("L_A_qretry")
    for u in range(2):
        a.i(f"buffer_load_dwordx4 {vr(QR+4*u)}, v9, s[32:35], s43 offen offset:{u*512} {opt.ld_flags}")
    a.i("v_mov_b32 v10, 0")
    a.i("s_waitcnt vmcnt(0)")
    for k in range(4):
        a.i(f"v_perm_b32 v11, v{QR+2*k+1}, v{QR+2*k}, s11")
        a.i(f"v_xor_b32 v11, v11, v8")
        a.i(f"v_or_b32 v10, v10, v11")
    a.i("v_cmp_ne_u32 vcc, 0, v10")
    g.retry_tail("L_A_qretry", "L_A_qok")
    for k in range(4):
        a.i(f"v_perm_b32 v{QR+8+k}, v{QR+2*k+1}, v{QR+2*k}, s12")
    a.i("v_lshlrev_b32 v9, 4, v2"); a.i("s_lshl_b32 s14, s3, 10"); a.i(f"s_add_u32 s14, s14, {L_Q}"); a.i("v_add_u32 v10, s14, v9")
    a.i(f"ds_write_b128 v10, {vr(QR+8)}")
    for st in range(4):
        a.i(f"v_add_u32 v10, {4*st}, v3"); a.i("v_xor_b32 v10, v10, v4"); a.i("v_lshlrev_b32 v10, 4, v10"); a.i("v_lshl_add_u32 v10, v4, 8, v10"); a.i(f"v_add_u32 v{12+st}, s47, v10")
    a.i("s_waitcnt lgkmcnt(0)")
    g.signal(CQ2)
    g.stamp(3)
    astop(g, 3)
    WR, WF = 32, 96
    srd(a, 48, 24, 25, 4 << 20)
    a.i("v_lshlrev_b32 v16, 15, v3"); a.i("v_lshl_add_u32 v16, v4, 3, v16")
    a.i("s_lshl_b32 s46, s4, 2"); a.i("s_add_u32 s46, s46, s3"); a.i("s_lshl_b32 s46, s46, 17"); a.i("s_lshl_b32 s15, s59, 7"); a.i("s_add_u32 s46, s46, s15")
    def wostep(st):
        if opt.srot:
            a.i(f"s_add_u32 s14, s6, {st}"); a.i("s_and_b32 s14, s14, 3"); a.i("s_lshl_b32 s14, s14, 13"); a.i("s_add_u32 s15, s46, s14")
            for i in range(8):
                if i == 4: a.i("s_add_u32 s15, s15, 4096")
                a.i(f"buffer_load_dwordx2 {vr(WR+16*st+2*i,2)}, v16, s[48:51], s15 offen offset:{(i&3)*1024} {opt.wo_flags}")
            return
        for i in range(8):
            if i % 4 == 0 and (st or i): a.i("s_add_u32 s46, s46, 4096")
            a.i(f"buffer_load_dwordx2 {vr(WR+16*st+2*i,2)}, v16, s[48:51], s46 offen offset:{(i&3)*1024} {opt.wo_flags}")
    KB = [96, 128]; QF = 160; SA = 192; PF = 224; ST = 240
    def kread(p):
        for tt in range(2):
            for st in range(4):
                a.i(f"ds_read_b128 {vr(KB[p&1]+16*tt+4*st)}, v{12+st} offset:{(2*p+tt)*4096}")
    g.wait_cnt(CQ2, 4)
    a.i(f"v_add_u32 v10, {L_Q}, v9")
    for st in range(4): a.i(f"ds_read_b128 {vr(QF+4*st)}, v10 offset:{st*1024}")
    a.i("s_lshl_b32 s14, s3, 2"); a.i("v_add_u32 v7, s14, v1")
    g.wait_cnt(CKD, 1, vaddr=7)
    kread(0); kread(1)
    for p in range(4):
        a.i(f"s_waitcnt lgkmcnt({8 if p < 3 else 0})")
        for tt in range(2):
            t = 2*p + tt
            for st in range(4):
                c = "0" if st == 0 else vr(SA+4*t)
                a.i(f"v_mfma_f32_16x16x32_bf16 {vr(SA+4*t)}, {vr(KB[p&1]+16*tt+4*st)}, {vr(QF+4*st)}, {c}")
        if p + 2 < 4: kread(p + 2)
    a.i(f"s_mov_b32 s13, {f2u(SCALE):#x}")
    a.i(f"v_max3_f32 v10, v{SA}, v{SA+1}, v{SA+2}")
    for r in range(3, 31, 2): a.i(f"v_max3_f32 v10, v10, v{SA+r}, v{SA+r+1}")
    a.i(f"v_max_f32 v10, v10, v{SA+31}")
    a.i("v_mov_b32 v11, v10"); a.i("v_permlane16_swap_b32 v10, v11"); a.i("v_max_f32 v10, v10, v11")
    a.i("v_mov_b32 v11, v10"); a.i("v_permlane32_swap_b32 v10, v11"); a.i("v_max_f32 v10, v10, v11")
    a.i("v_mul_f32 v12, s13, v10")
    for r in range(32): a.i(f"v_fma_f32 v{SA+r}, v{SA+r}, s13, -v12")
    for r in range(32): a.i(f"v_exp_f32 v{SA+r}, v{SA+r}")
    for k in range(16): a.i(f"v_cvt_pk_bf16_f32 v{PF+k}, v{SA+2*k}, v{SA+2*k+1}")
    a.i("v_lshlrev_b32 v9, 4, v2"); a.i("s_lshl_b32 s14, s3, 12"); a.i(f"s_add_u32 s14, s14, {L_P}"); a.i("v_add_u32 v9, s14, v9")
    for u in range(4): a.i(f"ds_write_b128 v9, {vr(PF+4*u)} offset:{u*1024}")
    a.i(f"v_add_f32 v10, v{SA}, v{SA+1}"); a.i(f"v_add_f32 v11, v{SA+2}, v{SA+3}")
    for r in range(4, 32, 2):
        a.i(f"v_add_f32 v10, v10, v{SA+r}"); a.i(f"v_add_f32 v11, v11, v{SA+r+1}")
    a.i("s_waitcnt lgkmcnt(0)")
    g.signal(CP, vaddr=7)
    a.i("v_add_f32 v10, v10, v11")
    a.i("v_mov_b32 v11, v10"); a.i("v_permlane16_swap_b32 v10, v11"); a.i("v_add_f32 v10, v10, v11")
    a.i("v_mov_b32 v11, v10"); a.i("v_permlane32_swap_b32 v10, v11"); a.i("v_add_f32 v13, v10, v11")
    a.i("v_mov_b32 v14, v8"); a.i("v_mov_b32 v15, v8")
    a.i("s_lshl_b32 s43, s41, 10"); a.i("s_lshl_b32 s14, s3, 8"); a.i("s_add_u32 s43, s43, s14"); a.i(f"s_add_u32 s43, s43, {WS_ST}")
    a.i("v_lshlrev_b32 v9, 4, v4")
    a.i("s_mov_b64 exec, 0xffff")
    g.store_var("buffer_store_dwordx4 v[12:15], v9, s[32:35], s43 offen")
    a.i("s_mov_b64 exec, -1")
    g.stamp(4)
    if opt.touch & 4:
        a.i("v_lshlrev_b32 v10, 4, v2")
        a.i("s_lshl_b32 s14, s41, 12"); a.i("s_lshl_b32 s15, s3, 10"); a.i("s_add_u32 s14, s14, s15"); a.i(f"s_add_u32 s14, s14, {WS_PS}")
        a.i(f"buffer_load_dwordx4 v[252:255], v10, s[32:35], s14 offen {opt.ptouch_flags}")
    if opt.pf:
        a.i("s_lshl_b32 s14, s4, 9"); a.i("s_lshl_b32 s15, s6, 7"); a.i("s_add_u32 s14, s14, s15"); a.i("s_lshl_b32 s15, s3, 5"); a.i("s_add_u32 s14, s14, s15"); a.i("s_lshl_b32 s14, s14, 10")
        a.i("s_lshl_b32 s15, s7, 7"); a.i("s_add_u32 s14, s14, s15")
        a.i("v_lshlrev_b32 v10, 10, v2")
        a.i("s_mov_b32 exec_hi, 0")
        a.i(f"buffer_load_dword v17, v10, s[48:51], s14 offen {opt.pf_flags}")
        a.i("s_mov_b64 exec, -1")
    a.i("s_and_b32 s43, s41, 0xfffffffe"); a.i("s_lshl_b32 s43, s43, 10"); a.i(f"s_add_u32 s43, s43, {WS_ST}")
    a.i("v_lshl_add_u32 v9, v3, 9, v9")
    a.i("s_mov_b32 s45, 0")
    a.label("L_A_sretry")
    a.i(f"buffer_load_dwordx4 {vr(ST)}, v9, s[32:35], s43 offen {opt.ld_flags}")
    a.i(f"buffer_load_dwordx4 {vr(ST+4)}, v9, s[32:35], s43 offen offset:256 {opt.ld_flags}")
    a.i("s_waitcnt vmcnt(0)")
    a.i(f"v_xor_b32 v10, v{ST+2}, v8"); a.i(f"v_xor_b32 v11, v{ST+3}, v8"); a.i("v_or_b32 v10, v10, v11")
    a.i(f"v_xor_b32 v11, v{ST+6}, v8"); a.i("v_or_b32 v10, v10, v11"); a.i(f"v_xor_b32 v11, v{ST+7}, v8"); a.i("v_or_b32 v10, v10, v11")
    a.i("v_cmp_ne_u32 vcc, 0, v10")
    g.retry_tail("L_A_sretry", "L_A_sok")
    a.i(f"v_max_f32 v10, v{ST}, v{ST+4}")
    a.i("v_mov_b32 v11, v10"); a.i("v_permlane16_swap_b32 v10, v11"); a.i("v_max_f32 v10, v10, v11")
    a.i("v_mov_b32 v11, v10"); a.i("v_permlane32_swap_b32 v10, v11"); a.i("v_max_f32 v10, v10, v11")
    a.i(f"v_sub_f32 v{ST}, v{ST}, v10"); a.i(f"v_sub_f32 v{ST+4}, v{ST+4}, v10")
    a.i(f"v_exp_f32 v{ST}, v{ST}"); a.i(f"v_exp_f32 v{ST+4}, v{ST+4}")
    a.i(f"v_mul_f32 v{ST+1}, v{ST+1}, v{ST}"); a.i(f"v_fmac_f32 v{ST+1}, v{ST+5}, v{ST+4}")
    a.i(f"v_mov_b32 v11, v{ST+1}"); a.i(f"v_permlane16_swap_b32 v{ST+1}, v11"); a.i(f"v_add_f32 v{ST+1}, v{ST+1}, v11")
    a.i(f"v_mov_b32 v11, v{ST+1}"); a.i(f"v_permlane32_swap_b32 v{ST+1}, v11"); a.i(f"v_add_f32 v11, v{ST+1}, v11")
    a.i("v_sub_f32 v12, v12, v10"); a.i("v_exp_f32 v12, v12"); a.i("v_rcp_f32 v11, v11"); a.i("v_mul_f32 v12, v12, v11")
    a.i("v_lshlrev_b32 v9, 2, v4"); a.i("s_lshl_b32 s14, s3, 6"); a.i(f"s_add_u32 s14, s14, {L_F}"); a.i("v_add_u32 v9, s14, v9")
    a.i("ds_write_b32 v9, v12")
    a.i("s_waitcnt lgkmcnt(0)")
    g.signal(CF)
    for st in range(opt.wo_early): wostep(st)
    if opt.wo_early < 4:
        g.wait_cnt(CV, 4)
        for st in range(opt.wo_early, 4): wostep(st)
    OG, CA = 192, 176
    a.i("v_add_u32 v10, s3, v4"); a.i("v_and_b32 v10, 3, v10")
    a.i("v_lshrrev_b32 v9, 2, v4"); a.i("v_lshlrev_b32 v9, 13, v9"); a.i("v_lshl_add_u32 v9, v10, 6, v9"); a.i("v_lshl_add_u32 v9, v3, 4, v9")
    a.i("s_lshl_b32 s43, s42, 12"); a.i("s_lshl_b32 s14, s3, 10"); a.i("s_add_u32 s43, s43, s14"); a.i(f"s_add_u32 s43, s43, {WS_OS}")
    a.i("s_add_u32 s44, s43, 4096")
    if opt.srot:
        for sp in range(2):
            for st in range(4):
                a.i(f"s_add_u32 s14, s6, {st}"); a.i("s_and_b32 s14, s14, 3"); a.i("s_lshl_b32 s14, s14, 8"); a.i(f"s_add_u32 s{80+4*sp+st}, s14, {'s43' if sp == 0 else 's44'}")
    a.i("s_lshl_b32 s46, s42, 4"); a.i(f"s_add_u32 s46, s46, {WS_OF}")
    a.i("v_lshlrev_b32 v7, 2, v2")
    for r in range(1, 4):
        a.i(f"s_add_u32 s14, s3, {r}"); a.i("s_and_b32 s14, s14, 3"); a.i("s_lshl_b32 s14, s14, 12"); a.i(f"s_add_u32 s14, s14, {L_CR + (r-1)*1024}"); a.i(f"v_add_u32 v{12+r}, s14, v7")
    a.i("s_lshl_b32 s14, s3, 12"); a.i(f"s_add_u32 s14, s14, {L_CR}"); a.i("v_add_u32 v12, s14, v7")
    a.i("v_lshlrev_b32 v17, 10, v3"); a.i("v_lshl_add_u32 v17, v4, 4, v17")
    a.i("s_lshl_b32 s47, s41, 12"); a.i("s_lshl_b32 s14, s3, 8"); a.i("s_add_u32 s47, s47, s14"); a.i(f"s_add_u32 s47, s47, {WS_PS}")
    for e in range(4): a.i(f"s_mov_b32 s{60+e}, {0x07060500+e:#x}")
    for st in range(opt.wo_early):
        a.i(f"s_waitcnt vmcnt({8*(3-st)})")
        transpose4(a, WF+16*st, lambda i, w: WR + 16*st + 2*i + w)
    if opt.t2: g.stamp(-1, tail=7)
    if not opt.bsync: a.i("s_barrier")
    g.stamp(-1, tail=1)
    for st in range(opt.wo_early, 4):
        a.i(f"s_waitcnt vmcnt({8*(3-st)})")
        transpose4(a, WF+16*st, lambda i, w: WR + 16*st + 2*i + w)
    g.stamp(5, tail=2)
    a.i("s_mov_b32 s45, 0")
    a.label("L_A_fretry")
    a.i("s_mov_b32 exec_hi, 0")
    a.i(f"buffer_load_dword v10, v7, s[32:35], s46 offen {opt.ld_flags}")
    a.i("s_waitcnt vmcnt(0)")
    a.i("v_cmp_ne_u32 vcc, v10, v8")
    a.i("s_mov_b64 exec, -1")
    g.retry_tail("L_A_fretry", "L_A_fok")
    g.stamp(-1, tail=3)
    if opt.dbgcnt: a.i("s_mov_b32 s92, s45")
    a.i("s_mov_b32 s45, 0")
    def ogather(fl):
        for sp in range(2):
            for st in range(4):
                if opt.srot:
                    a.i(f"buffer_load_dwordx4 {vr(OG+16*sp+4*st)}, v9, s[32:35], s{80+4*sp+st} offen {fl}")
                else:
                    a.i(f"buffer_load_dwordx4 {vr(OG+16*sp+4*st)}, v9, s[32:35], {'s43' if sp == 0 else 's44'} offen offset:{st*256} {fl}")
    if opt.o_plain:
        a.i("s_cmp_eq_u32 s58, 1"); a.i("s_cbranch_scc0 L_A_oretry")
        ogather("")
        a.i("s_branch L_A_ogo")
    a.label("L_A_oretry")
    ogather(opt.ld_flags)
    a.label("L_A_ogo")
    k = 0
    for sp in range(2):
        for st in range(4):
            a.i(f"s_waitcnt vmcnt({7-k})")
            for e in range(4):
                c = "0" if k == 0 else vr(CA+4*e)
                a.i(f"v_mfma_f32_16x16x32_bf16 {vr(CA+4*e)}, {vr(OG+16*sp+4*st)}, {vr(WF+16*st+4*e)}, {c}")
            b = OG+16*sp+4*st
            if k == 0: a.i(f"v_max3_u32 v10, v{b}, v{b+1}, v{b+2}"); a.i(f"v_max_u32 v10, v10, v{b+3}")
            else: a.i(f"v_max3_u32 v10, v10, v{b}, v{b+1}"); a.i(f"v_max3_u32 v10, v10, v{b+2}, v{b+3}")
            k += 1
    a.i("v_cmp_eq_u32 vcc, -1, v10")
    g.retry_tail("L_A_oretry", "L_A_ook")
    g.stamp(6, tail=4)
    if opt.regather:
        ogather("sc1")
        a.i("s_waitcnt vmcnt(0)")
        g.stamp(-1, tail=5)
    if opt.dbgcnt:
        a.i("s_mov_b64 exec, 1")
        a.i("v_mov_b32 v18, s45"); a.i("v_mov_b32 v19, s92")
        a.i("global_atomic_add v5, v18, s[28:29]"); a.i("global_atomic_add v5, v19, s[28:29] offset:4")
        a.i("global_atomic_add v5, v6, s[28:29] offset:8")
        a.i("s_mov_b64 exec, -1")
    for r in range(1, 4):
        for e in range(0, 4, 2):
            a.i(f"ds_write2st64_b32 v{12+r}, v{CA+4*e+r}, v{CA+4*(e+1)+r} offset0:{e} offset1:{e+1}")
    a.i("s_waitcnt lgkmcnt(0)")
    a.i("s_barrier")
    if not opt.regather: g.stamp(-1, tail=5)
    R = 20
    for slot in range(3):
        for e in range(0, 4, 2):
            a.i(f"ds_read2st64_b32 {vr(R+4*slot+e,2)}, v12 offset0:{slot*4+e} offset1:{slot*4+e+1}")
    a.i("s_waitcnt lgkmcnt(0)")
    for e in range(4):
        a.i(f"v_add_f32 v{R+e}, v{R+e}, v{R+4+e}"); a.i(f"v_add_f32 v{R+8+e}, v{R+8+e}, v{CA+4*e}")
    for e in range(4): a.i(f"v_add_f32 v{R+e}, v{R+e}, v{R+8+e}")
    for e in range(4): a.i(f"v_perm_b32 v{R+12+e}, v{R+e}, v8, s{60+e}")
    a.i(f"buffer_store_dwordx4 {vr(R+12)}, v17, s[32:35], s47 offen {opt.pst_flags}")
    g.stamp(7, tail=6)
    if opt.tstamps and not opt.t2:
        a.i("s_waitcnt vmcnt(0)")
        g.stamp(-1, tail=7)
    if opt.stamps:
        a.i("s_cmp_lg_u32 s3, 0"); a.i("s_cbranch_scc1 L_end")
        emit_stamps(g, 0, 8)
    a.i("s_branch L_end")

    a.label("L_B")
    a.i("s_sub_u32 s3, s3, 4")
    if opt.late_th: a.i("s_memrealtime s[94:95]")
    if opt.b_exit:
        for k in range(1, 8): g.stamp(k)
        a.i("s_cmp_lg_u32 s3, 0"); a.i("s_cbranch_scc1 L_end")
        emit_stamps(g, 8, 8, first=1)
        a.i("s_branch L_end")
    VF, PF2, T2, OA = 16, 144, 160, 192
    kvbase(a)
    a.i("s_mov_b32 s57, s14")
    if opt.rot:
        a.i("s_add_u32 s56, s5, s3"); a.i("s_and_b32 s56, s56, 7"); a.i("s_lshl_b32 s56, s56, 12")
    else:
        a.i("s_mov_b32 s56, 0")
    for n in range(4):
        a.i(f"v_add_u32 v10, {4*n}, v3"); a.i("v_xor_b32 v10, v10, v4"); a.i("v_lshlrev_b32 v10, 4, v10"); a.i(f"v_lshl_add_u32 v{12+n}, v3, 8, v10")
    a.i("s_lshl_b32 s47, s3, 15")
    a.i("s_lshl_b32 s15, s6, 7")
    a.i("s_waitcnt lgkmcnt(0)")
    srd(a, 48, 18, 19, 128*256, add="s57")
    a.i("s_load_dword s10, s[30:31], s15")
    srd(a, 36, 20, 21, 128*256, add="s57")
    srd(a, 32, 30, 31, WS_SIZE)
    if opt.bpf:
        srd(a, 52, 22, 23, 4 << 20)
        srd(a, 60, 16, 17, 65536)
        a.i("v_lshlrev_b32 v8, 4, v2")
        a.i("s_lshl_b32 s14, s5, 4"); a.i("s_lshl_b32 s15, s3, 2"); a.i("s_add_u32 s14, s14, s15"); a.i("s_lshl_b32 s14, s14, 13"); a.i("s_lshl_b32 s15, s4, 10"); a.i("s_add_u32 s14, s14, s15")
        for k in range(4):
            a.i(f"buffer_load_dwordx4 {vr(16+4*k)}, v8, s[52:55], s14 offen {opt.bpf_flags}")
            if k < 3: a.i("s_add_u32 s14, s14, 8192")
        a.i("s_lshl_b32 s14, s5, 1"); a.i("s_and_b32 s15, s3, 1"); a.i("s_add_u32 s14, s14, s15"); a.i("s_lshl_b32 s14, s14, 10")
        a.i(f"buffer_load_dwordx4 {vr(32)}, v8, s[60:63], s14 offen")
    NPF = 0
    LO, HI = opt.thr, max(opt.thr3, opt.thr)
    a.i("s_cmp_eq_u32 s7, 3"); a.i("s_cselect_b64 vcc, -1, 0")
    if opt.late_th:
        a.i("s_or_b32 s14, s5, s3"); a.i("s_cmp_lg_u32 s14, 0"); a.i("s_cbranch_scc1 L_B_noat")
        a.i("s_not_b32 s14, s94"); a.i("v_mov_b32 v10, s14")
        a.i("s_mov_b64 exec, 1")
        a.i("global_atomic_umax v5, v10, s[28:29] sc1")
        a.i("s_mov_b64 exec, -1")
        a.label("L_B_noat")
    cnt = [0]
    def throttle():
        n = cnt[0]
        lo, hi = LO, HI
        if opt.thr_end and n >= 32 + opt.end_from:
            lo = max(lo, opt.thr_end); hi = max(hi, opt.thr_end)
        if n >= hi: a.i(f"s_waitcnt vmcnt({hi-1})")
        if n >= lo and lo < hi:
            L = g.lab("t")
            a.i(f"s_cbranch_vccnz {L}"); a.i(f"s_waitcnt vmcnt({lo-1})"); a.label(L)
        cnt[0] += 1
    for t in range(8):
        a.i(f"s_add_u32 s14, s47, {t*4096}"); a.i("s_mov_b32 m0, s14"); a.i(f"s_xor_b32 s14, s56, {t*4096}")
        for n in range(4):
            throttle()
            a.i(f"buffer_load_dwordx4 v{12+n}, s[48:51], s14 offen offset:{n*1024} {opt.kv_flags if opt.k_flags == 'same' else opt.k_flags} lds")
        if t == 0:
            a.i("s_barrier")
            a.i("v_add_u32 v7, s3, v4"); a.i("v_and_b32 v7, 3, v7"); a.i("v_and_b32 v10, 12, v4"); a.i("v_or_b32 v7, v7, v10")
            a.i("v_lshlrev_b32 v7, 4, v7"); a.i("v_lshl_add_u32 v7, v3, 10, v7")
            a.i("s_lshl_b32 s15, s3, 2"); a.i("v_add_u32 v11, s15, v1")
        if opt.late_th and t == opt.late_at - 1:
            a.i("s_load_dword s96, s[28:29], 0 glc")
        if opt.late_th and t == opt.late_at:
            a.i("s_waitcnt lgkmcnt(0)")
            a.i("s_not_b32 s14, s96"); a.i("s_sub_u32 s14, s94, s14")
            a.i("s_cmp_eq_u32 s96, 0"); a.i("s_cselect_b32 s14, 0, s14")
            a.i(f"s_cmp_gt_i32 s14, {opt.late_th}"); a.i("s_cselect_b64 s[96:97], -1, 0"); a.i("s_or_b64 vcc, vcc, s[96:97]")
    g.stamp(1)
    for u in range(4):
        for i in range(8):
            if i % 4 == 0: a.i(f"s_xor_b32 s14, s56, {u*8192 + (i>>2)*4096}")
            throttle()
            n = cnt[0] - 1
            if n - LO == 31:
                L = g.lab("k")
                if LO < HI: a.i(f"s_cbranch_vccnz {L}")
                g.signal(CKD, vaddr=11)
                a.label(L)
            if LO < HI and n - HI == 31:
                L = g.lab("k")
                a.i(f"s_cbranch_vccz {L}")
                g.signal(CKD, vaddr=11)
                a.label(L)
            a.i(f"buffer_load_dwordx4 {vr(VF+32*u+4*i)}, v7, s[36:39], s14 offen offset:{(i&3)*256} {opt.kv_flags if opt.v_flags == 'same' else opt.v_flags}")
    g.signal(CV)
    if opt.bstamps:
        a.i("s_waitcnt vmcnt(0)")
        a.i("s_cmp_lg_u32 s3, 0"); a.i("s_cbranch_scc1 L_end")
        emit_stamps(g, 8, 8, first=1)
        a.i("s_branch L_end")
    g.stamp(2, tail=1)
    if opt.bench:
        a.i("s_waitcnt vmcnt(0)")
        for k in range(3, 8): g.stamp(k)
        a.i("s_cmp_lg_u32 s3, 0"); a.i("s_cbranch_scc1 L_end")
        emit_stamps(g, 8, 8, first=1)
        a.i("s_branch L_end")
    g.wait_cnt(CP, 1, vaddr=11)
    a.i("v_lshlrev_b32 v9, 4, v2"); a.i("s_lshl_b32 s14, s3, 12"); a.i(f"s_add_u32 s14, s14, {L_P}"); a.i("v_add_u32 v9, s14, v9")
    for u in range(4): a.i(f"ds_read_b128 {vr(PF2+4*u)}, v9 offset:{u*1024}")
    a.i(f"ds_read_b32 v10, v1 offset:{FASTW}")
    a.i("s_waitcnt lgkmcnt(0)")
    a.i(f"s_add_u32 s10, s10, {TAGINC:#x}")
    a.i("v_mov_b32 v8, s10")
    a.i("v_readfirstlane_b32 s58, v10")
    if not opt.t2: g.stamp(3, tail=2)
    if opt.b_prio_pv: a.i(f"s_setprio {opt.b_prio_pv}")
    def factors(wait=True):
        if wait: g.wait_cnt(CF, 4)
        for k in range(4):
            a.i(f"s_sub_u32 s14, s3, {k}"); a.i("s_and_b32 s14, s14, 3"); a.i("s_lshl_b32 s14, s14, 6"); a.i(f"s_add_u32 s14, s14, {L_F}")
            a.i(f"v_lshl_add_u32 v10, v4, 2, s14"); a.i(f"ds_read_b32 v{148+k}, v10")
    for u in range(4):
        L = lambda i, w: VF + 32*u + 4*i + w
        if u < 3:
            a.i(f"s_waitcnt vmcnt({(3-u)*8})")
            for e in range(8):
                w = e >> 1; sel = 's11' if (e & 1) == 0 else 's12'
                for p in range(4):
                    a.i(f"v_perm_b32 v{T2+4*e+p}, v{L(2*p+1,w)}, v{L(2*p,w)}, {sel}")
        else:
            for p in range(4):
                a.i(f"s_waitcnt vmcnt({6-2*p})")
                for e in range(8):
                    w = e >> 1; sel = 's11' if (e & 1) == 0 else 's12'
                    a.i(f"v_perm_b32 v{T2+4*e+p}, v{L(2*p+1,w)}, v{L(2*p,w)}, {sel}")
        for e in range(8):
            c = "0" if u == 0 else vr(OA+4*e)
            a.i(f"v_mfma_f32_16x16x32_bf16 {vr(OA+4*e)}, {vr(T2+4*e)}, {vr(PF2+4*u)}, {c}")
        if u == 2:
            if not opt.cf_late: factors()
            if opt.cf_late == 2:
                a.i(f"ds_read_b32 v10, v1 offset:{CF}"); a.i("s_waitcnt lgkmcnt(0)"); a.i("v_readfirstlane_b32 s93, v10")
                a.i("s_cmp_ge_u32 s93, 4"); a.i("s_cbranch_scc0 L_B_fskip")
                factors(False)
                a.label("L_B_fskip")
            a.i("v_lshrrev_b32 v12, 2, v4"); a.i("v_lshlrev_b32 v12, 10, v12"); a.i("v_and_b32 v10, 3, v4"); a.i("v_lshl_add_u32 v12, v10, 6, v12"); a.i("v_lshl_add_u32 v12, v3, 4, v12")
            a.i("s_lshl_b32 s43, s41, 12"); a.i("s_lshl_b32 s14, s3, 8"); a.i("s_add_u32 s43, s43, s14"); a.i(f"s_add_u32 s43, s43, {WS_OS}")
            a.i("s_lshl_b32 s44, s41, 4"); a.i("s_lshl_b32 s14, s3, 2"); a.i("s_add_u32 s44, s44, s14"); a.i(f"s_add_u32 s44, s44, {WS_OF}")
            a.i("v_lshlrev_b32 v9, 2, v2")
            for r in range(1, 4):
                a.i(f"s_add_u32 s14, s3, {r}"); a.i("s_and_b32 s14, s14, 3"); a.i("s_lshl_b32 s14, s14, 13"); a.i(f"s_add_u32 s14, s14, {L_OR + (r-1)*2048}"); a.i(f"v_add_u32 v{12+r}, s14, v9")
            a.i("s_lshl_b32 s14, s3, 13"); a.i(f"s_add_u32 s14, s14, {L_OR}"); a.i("v_add_u32 v7, s14, v9")
    if opt.cf_late == 1: factors()
    if opt.cf_late == 2:
        a.i("s_cmp_ge_u32 s93, 4"); a.i("s_cbranch_scc1 L_B_fdone")
        factors()
        a.label("L_B_fdone")
    g.stamp(4, tail=3)
    for r in range(1, 4):
        for e in range(0, 8, 2):
            a.i(f"ds_write2st64_b32 v{12+r}, v{OA+4*e+r}, v{OA+4*(e+1)+r} offset0:{e} offset1:{e+1}")
    a.i("s_waitcnt lgkmcnt(0)")
    if opt.t2: g.stamp(-1, tail=2)
    if opt.bsync:
        g.signal(CO)
        g.wait_cnt(CO, 4)
    else:
        a.i("s_barrier")
    g.stamp(-1, tail=4)
    R = 16
    for slot in range(3):
        for e in range(0, 8, 2):
            a.i(f"ds_read2st64_b32 {vr(R+8*slot+e,2)}, v7 offset0:{slot*8+e} offset1:{slot*8+e+1}")
    FR = 148
    for e in range(8): a.i(f"v_mul_f32 v{OA+4*e}, v{OA+4*e}, v{FR}")
    for slot in range(3):
        a.i(f"s_waitcnt lgkmcnt({4*(2-slot)})")
        for e in range(8): a.i(f"v_fmac_f32 v{OA+4*e}, v{R+8*slot+e}, v{FR+1+slot}")
    for p in range(4): a.i(f"v_cvt_pk_bf16_f32 v{R+32+p}, v{OA+8*p}, v{OA+8*p+4}")
    g.store_var(f"buffer_store_dwordx4 {vr(R+32)}, v12, s[32:35], s43 offen")
    a.i("s_mov_b64 exec, 1")
    g.store_var("buffer_store_dword v8, v5, s[32:35], s44 offen")
    a.i("s_mov_b64 exec, -1")
    g.stamp(5, tail=5)
    if opt.wstamps:
        a.i("s_waitcnt lgkmcnt(0)")
        a.i(f"s_add_u32 s90, s30, {STAMPOFF}"); a.i("s_addc_u32 s91, s31, 0")
        a.i("s_lshl_b32 s14, s2, 7"); a.i("s_add_u32 s90, s90, s14"); a.i("s_addc_u32 s91, s91, 0")
        a.i("s_lshl_b32 s14, s3, 3"); a.i("s_add_u32 s90, s90, s14"); a.i("s_addc_u32 s91, s91, 0")
        a.i("s_mov_b64 exec, 1")
        a.i("v_mov_b32 v60, s72"); a.i("v_mov_b32 v61, s73")
        a.i("global_store_dwordx2 v5, v[60:61], s[90:91] offset:64")
        a.i("v_mov_b32 v62, s68"); a.i("v_mov_b32 v63, s69")
        a.i("global_store_dwordx2 v5, v[62:63], s[90:91] offset:96")
        a.i("s_mov_b64 exec, -1")
    a.i("s_cmp_lg_u32 s3, 0"); a.i("s_cbranch_scc1 L_end")
    a.i("v_lshrrev_b32 v9, 5, v2"); a.i("v_lshlrev_b32 v9, 19, v9")
    a.i("v_and_b32 v10, 1, v3"); a.i("v_lshl_add_u32 v9, v10, 8, v9"); a.i("v_lshl_add_u32 v9, v4, 4, v9")
    a.i("s_lshl_b32 s43, s5, 12"); a.i("s_lshl_b32 s14, s4, 9"); a.i("s_add_u32 s43, s43, s14"); a.i(f"s_add_u32 s43, s43, {WS_PS}")
    srd(a, 36, 26, 27, 65536)
    a.i("v_and_b32 v10, 1, v3"); a.i("v_lshlrev_b32 v13, 10, v10"); a.i("v_lshl_add_u32 v13, v4, 3, v13")
    a.i("s_lshl_b32 s46, s6, 14"); a.i("s_lshl_b32 s14, s4, 11"); a.i("s_add_u32 s46, s46, s14"); a.i("s_lshl_b32 s14, s59, 7"); a.i("s_add_u32 s46, s46, s14")
    a.i("s_barrier")
    NP = opt.ppoll
    a.i("s_mov_b32 s14, 0x0c0c0400"); a.i("s_mov_b32 s15, 0x04000c0c")
    for k in range(4): a.i(f"s_add_u32 s{48+k}, s43, {k*32*4096}")
    def pissue(z):
        for k in range(4):
            a.i(f"buffer_load_dwordx4 {vr(16+16*z+4*k)}, v9, s[32:35], s{48+k} offen {opt.pld_flags}")
    a.i("s_mov_b32 s45, 0")
    for z in range(NP):
        pissue(z)
        if z < NP - 1 and opt.psleep: a.i(f"s_sleep {opt.psleep}")
    a.label("L_B_pretry")
    for z in range(NP):
        R = 16 + 16*z
        a.i(f"s_waitcnt vmcnt({4*(NP-1)})")
        for k in range(4):
            d = 10 if k == 0 else 11
            a.i(f"v_perm_b32 v{d}, v{R+4*k+1}, v{R+4*k}, s14"); a.i(f"v_perm_b32 v12, v{R+4*k+3}, v{R+4*k+2}, s15")
            if k == 0:
                a.i("v_or_b32 v10, v10, v12"); a.i("v_xor_b32 v10, v10, v8")
            else:
                a.i("v_or_b32 v11, v11, v12"); a.i("v_xor_b32 v11, v11, v8"); a.i("v_or_b32 v10, v10, v11")
        a.i("v_cmp_ne_u32 vcc, 0, v10")
        a.i(f"s_cbranch_vccz L_B_pok{z}")
        pissue(z)
    a.i("s_add_u32 s45, s45, 1")
    a.i(f"s_cmp_le_u32 s45, {opt.spin_limit}")
    a.i("s_cbranch_scc1 L_B_pretry")
    a.i("s_waitcnt vmcnt(0)")
    for z in range(NP):
        R = 16 + 16*z
        a.label(f"L_B_pok{z}")
        for e in range(4):
            a.i(f"v_add_f32 v{80+e}, v{R+e}, v{R+4+e}"); a.i(f"v_add_f32 v{84+e}, v{R+8+e}, v{R+12+e}")
        if z < NP - 1: a.i("s_branch L_B_psum")
    a.label("L_B_psum")
    g.stamp(6, tail=6)
    R = 80
    for e in range(4): a.i(f"v_add_f32 v{R+e}, v{R+e}, v{R+4+e}")
    for e in range(4): a.i(f"v_mov_b32 v{R+4+e}, v{R+e}")
    for e in range(4): a.i(f"v_permlane32_swap_b32 v{R+e}, v{R+4+e}")
    for e in range(4): a.i(f"v_add_f32 v{R+e}, v{R+e}, v{R+4+e}")
    a.i(f"v_cvt_pk_bf16_f32 v{R+8}, v{R}, v{R+1}"); a.i(f"v_cvt_pk_bf16_f32 v{R+9}, v{R+2}, v{R+3}")
    a.i("s_mov_b32 exec_hi, 0")
    a.i(f"buffer_store_dwordx2 {vr(R+8,2)}, v13, s[36:39], s46 offen")
    a.i("s_or_b32 s14, s4, s7"); a.i("s_cmp_lg_u32 s14, 0"); a.i("s_cbranch_scc1 L_B_fin")
    a.i("s_mov_b64 exec, 1")
    a.i("s_lshl_b32 s14, s6, 7")
    a.i(f"buffer_store_dword v8, v5, s[32:35], s14 offen sc1")
    a.label("L_B_fin")
    a.i("s_mov_b64 exec, -1")
    if opt.stamps:
        a.i("s_waitcnt vmcnt(0)")
        a.i("s_memrealtime s[78:79]")
        if not opt.wstamps: emit_stamps(g, 8, 8, first=1)
    a.label("L_end"); a.i("s_endpgm")

    out = Asm()
    out(HEADER + f"; @launch grid=(256,1,1) block=(512,1,1) lds={L_END}")
    out('.amdgcn_target "amdgcn-amd-amdhsa--gfx950"\n.text')
    lines, n = hazard.fix(a.lines)
    out.lines += lines
    out('.section .rodata,"a"')
    out(kernel_desc(NAME, 256))
    return out.text(), n

def emit_stamps(g, slot0, n, first=0):
    a = g.a
    a.i("s_waitcnt lgkmcnt(0)")
    a.i(f"s_add_u32 s90, s30, {STAMPOFF}"); a.i("s_addc_u32 s91, s31, 0")
    a.i("s_lshl_b32 s14, s2, 7"); a.i("s_add_u32 s90, s90, s14"); a.i("s_addc_u32 s91, s91, 0")
    a.i("s_mov_b64 exec, 1")
    for k in range(first, n):
        a.i(f"v_mov_b32 v20, s{64+2*k}"); a.i(f"v_mov_b32 v21, s{65+2*k}")
        a.i(f"global_store_dwordx2 v5, v[20:21], s[90:91] offset:{(slot0+k-first)*8}")
        a.i("s_nop 1")
    a.i("s_mov_b64 exec, -1")

if __name__ == "__main__":
    o = Opt()
    out = sys.argv[1]
    for kv in sys.argv[2:]:
        k, v = kv.split("=")
        cur = getattr(o, k)
        if isinstance(cur, bool): v = v in ("1", "True", "true")
        elif isinstance(cur, int): v = int(v)
        else: v = v.replace("+", " ")
        setattr(o, k, v)
    t, n = gen(o)
    open(out, "w").write(t)
    print(out, "nops inserted:", n, "lines:", t.count("\n"))
```

```python
import sys, struct
from asmlib import *
import hazard

NAME = "standalone__sliding_block_cached__sampling_kernel"
def f2u(x): return struct.unpack('<I', struct.pack('<f', x))[0]
SCALE = 0.08838834764831845 * 1.4426950408889634

WS_XID = 0x8000
WS_OF = 0x9000
WS_QS = 0x10000
WS_ST = 0x200000
WS_OS = 0x300000
WS_PS = 0x500000
WS_SIZE = 0x800000
STAMPOFF = 256 << 20
TAGINC = 0x9E3779B9

L_K = 0
L_OR = 0
L_CR = 32768
L_QR = 131072
L_P = 131072
L_CNT = 147456
L_F = L_CNT + 64
L_Q = L_CNT + 512
L_END = L_Q + 4096
CQ, CKS, CV, CO, CC, CP, CF, CQ2, CKD, FASTW = 0, 4, 8, 12, 16, 20, 36, 40, 44, 60
CWP = CO

class Opt:
    stamps = False
    kv_flags = "nt"
    w_flags = "nt"
    x_flags = ""
    ld_flags = "sc1"
    spin_limit = 30000
    a_prio = 2
    b_prio_pv = 3
    rot = 1
    thr = 7
    wo_mode = 1
    wq_ahead = 2
    force_slow = 0
    bench = 0
    a_stop = 0
    oflag = 1
    dbgtime = 0
    dyn = 1
    late_th = 0
    late_at = 3
    emu = 0
    bsync = 1
    t2 = 0
    perm = 0
    pst_flags = "sc1"
    pld_flags = "sc1"
    cf_late = 1
    wstamps = 0
    thr_end = 0
    end_from = 16
    wo_flags = "nt"
    srot = 1
    wq_ahead3 = 0
    k_flags = "same"
    v_flags = "same"
    cwpstamp = 0
    bpf = 0
    bpf_flags = ""
    wopf = 0
    ppoll = 3
    psleep = 6
    ptouch_flags = ""
    touch = 1
    regather = 0
    o_plain = 1
    dbgcnt = 0
    ntx = 4
    thr3 = 0
    pf = 0
    pf_flags = ""
    tstamps = 0
    wo_early = 2
    b_exit = 0
    wq_rowrot = 0
    wq_colxor = 0
    bstamps = 0
    stagger = 0
    thr_k = 0
    stag_bit = 0
    xid_tries = 4

def vr(b, n=4): return f"v[{b}:{b+n-1}]" if n > 1 else f"v{b}"

def srd(a, d, lo, hi, size, add=None):
    if add is None:
        a.i(f"s_mov_b32 s{d}, s{lo}"); a.i(f"s_mov_b32 s{d+1}, s{hi}")
    else:
        a.i(f"s_add_u32 s{d}, s{lo}, {add}"); a.i(f"s_addc_u32 s{d+1}, s{hi}, 0")
    a.i(f"s_mov_b32 s{d+2}, {size}"); a.i(f"s_mov_b32 s{d+3}, 0x20000")

class G:
    def __init__(self, opt):
        self.a = Asm(); self.o = opt; self.nl = 0
    def lab(self, p):
        self.nl += 1; return f"L{p}{self.nl}"
    def stamp(self, k, tail=None):
        if self.o.tstamps:
            if tail is None and k != 0: return
            if tail is not None: k = tail
            if k < 0: return
        elif tail is not None and k < 0: return
        if self.o.stamps:
            self.a.i(f"s_memrealtime s[{64+2*k}:{65+2*k}]")
    def signal(self, cnt, vaddr=1):
        a = self.a
        a.i("s_mov_b64 exec, 1")
        a.i(f"ds_add_u32 v{vaddr}, v6 offset:{cnt}")
        a.i("s_mov_b64 exec, -1")
    def wait_cnt(self, cnt, n, vt=10, vaddr=1, sleep=0):
        a = self.a
        L = self.lab("w")
        a.i("s_mov_b32 s15, 0")
        a.label(L)
        if sleep: a.i(f"s_sleep {sleep}")
        a.i(f"ds_read_b32 v{vt}, v{vaddr} offset:{cnt}")
        a.i("s_add_u32 s15, s15, 1")
        a.i("s_waitcnt lgkmcnt(0)")
        a.i(f"v_readfirstlane_b32 s14, v{vt}")
        a.i(f"s_cmp_gt_u32 s15, {self.o.spin_limit*16}")
        a.i(f"s_cbranch_scc1 {L}_o")
        a.i(f"s_cmp_ge_u32 s14, {n}")
        a.i(f"s_cbranch_scc0 {L}")
        a.label(f"{L}_o")
    def retry_tail(self, Lretry, Lok):
        a = self.a
        a.i("s_add_u32 s45, s45, 1")
        a.i(f"s_cmp_gt_u32 s45, {self.o.spin_limit}")
        a.i(f"s_cbranch_scc1 {Lok}")
        a.i(f"s_cbranch_vccnz {Lretry}")
        a.label(Lok)
    def store_var(self, ins):
        a = self.a; L = self.lab("s")
        a.i("s_cmp_eq_u32 s58, 1"); a.i(f"s_cbranch_scc1 {L}_f")
        a.i(ins + " sc1"); a.i(f"s_branch {L}_d")
        a.label(f"{L}_f"); a.i(ins); a.label(f"{L}_d")

def transpose4(a, dst, L):
    for e in range(4):
        w = e >> 1; sel = 's11' if (e & 1) == 0 else 's12'
        for p in range(4):
            a.i(f"v_perm_b32 v{dst+4*e+p}, v{L(2*p+1,w)}, v{L(2*p,w)}, {sel}")

def kvbase(a):
    a.i("s_lshr_b32 s14, s5, 1"); a.i("s_lshl_b32 s14, s14, 3"); a.i("s_add_u32 s14, s14, s4"); a.i("s_lshl_b32 s14, s14, 12")
    a.i("s_lshl_b32 s15, s9, 9"); a.i("s_add_u32 s14, s14, s15"); a.i("s_lshl_b32 s15, s3, 7"); a.i("s_add_u32 s14, s14, s15")
    a.i("s_add_u32 s14, s14, 3072"); a.i("s_lshl_b32 s14, s14, 8")

def astop(g, n):
    opt = g.o; a = g.a
    if opt.a_stop == n:
        for k in range(n + 1, 8): g.stamp(k)
        if opt.stamps:
            a.i("s_cmp_lg_u32 s3, 0"); a.i("s_cbranch_scc1 L_end")
            emit_stamps(g, 0, 8)
        a.i("s_branch L_end")

def gen(opt):
    g = G(opt); a = g.a
    kernel_begin(a, NAME)
    a.i("s_cmp_ge_u32 s2, 256"); a.i("s_cbranch_scc1 L_end")
    if opt.perm == 1:
        a.i("s_lshl_b32 s3, s2, 3"); a.i("s_lshr_b32 s4, s2, 5"); a.i("s_or_b32 s2, s3, s4"); a.i("s_and_b32 s2, s2, 255")
    if opt.perm == 2:
        a.i("s_xor_b32 s2, s2, 8"); a.i("s_lshr_b32 s3, s2, 6"); a.i("s_xor_b32 s2, s2, s3")
    g.stamp(0)
    a.i("s_load_dwordx16 s[16:31], s[0:1], 0")
    a.i("v_lshrrev_b32 v1, 6, v0"); a.i("v_and_b32 v2, 63, v0")
    a.i("v_readfirstlane_b32 s3, v1")
    a.i("s_and_b32 s4, s2, 7")
    a.i("s_lshr_b32 s5, s2, 3")
    a.i("s_lshr_b32 s6, s5, 3")
    a.i("s_and_b32 s7, s5, 7")
    a.i(f"s_xor_b32 s59, s7, {opt.ntx}")
    a.i("s_bfe_u32 s8, s5, 0x20001")
    a.i("s_and_b32 s9, s5, 1")
    a.i("v_lshrrev_b32 v3, 4, v2"); a.i("v_and_b32 v4, 15, v2")
    a.i("v_mov_b32 v5, 0"); a.i("v_mov_b32 v6, 1")
    a.i(f"v_mov_b32 v1, {L_CNT}")
    a.i("s_mov_b32 s11, 0x05040100"); a.i("s_mov_b32 s12, 0x07060302")
    a.i("s_lshl_b32 s40, s4, 5"); a.i("s_add_u32 s41, s40, s5")
    a.i("s_and_b32 s42, s41, 0xfffffff8")
    a.i("s_cmp_ge_u32 s3, 4"); a.i("s_cbranch_scc1 L_B")

    if opt.a_prio: a.i(f"s_setprio {opt.a_prio}")
    a.i("s_cmp_lg_u32 s3, 0"); a.i("s_cbranch_scc1 L_P1")
    a.i("v_lshl_add_u32 v7, v2, 2, v1"); a.i("ds_write_b32 v7, v5 offset:0")
    a.label("L_P1")
    XA, WB, T, ACC = 16, 32, 96, 128
    a.i("v_lshlrev_b32 v8, 10, v4"); a.i("v_lshl_add_u32 v8, v3, 4, v8")
    a.i("v_lshlrev_b32 v9, 16, v3"); a.i("v_lshl_add_u32 v9, v4, 3, v9")
    a.i("s_lshl_b32 s14, s6, 14"); a.i("s_lshl_b32 s15, s3, 8"); a.i("s_add_u32 s45, s14, s15")
    a.i("s_lshl_b32 s44, s3, 20"); a.i("s_lshl_b32 s14, s4, 10"); a.i("s_add_u32 s44, s44, s14"); a.i(f"s_xor_b32 s14, s7, {opt.wq_colxor}"); a.i("s_lshl_b32 s14, s14, 7"); a.i("s_add_u32 s44, s44, s14")
    a.i("s_lshl_b32 s47, s3, 15")
    a.i("s_lshl_b32 s15, s6, 7")
    a.i("s_waitcnt lgkmcnt(0)")
    a.i("s_load_dword s10, s[30:31], s15")
    srd(a, 48, 22, 23, 4 << 20)
    srd(a, 52, 16, 17, 65536)
    srd(a, 32, 30, 31, WS_SIZE)
    def xidpub():
        a.i("s_getreg_b32 s57, hwreg(HW_REG_XCC_ID, 0, 4)")
        a.i("s_waitcnt lgkmcnt(0)")
        a.i(f"s_add_u32 s10, s10, {TAGINC:#x}")
        a.i("s_and_b32 s14, s10, 0xfffffff0"); a.i("s_or_b32 s14, s14, s57"); a.i("v_mov_b32 v144, s14")
        a.i("s_lshl_b32 s14, s41, 2"); a.i(f"s_add_u32 s14, s14, {WS_XID}")
        a.i("s_mov_b64 exec, 1")
        a.i("buffer_store_dword v144, v5, s[32:35], s14 offen")
        a.i("s_mov_b64 exec, -1")
    if opt.stagger: xidpub()
    if opt.stagger:
        a.i(f"s_bitcmp1_b32 s5, {opt.stag_bit}"); a.i("s_cbranch_scc0 L_A_nostag")
        g.wait_cnt(CKS, 4)
        a.label("L_A_nostag")
    if opt.pf:
        a.i("s_lshl_b32 s14, s6, 7"); a.i("s_lshl_b32 s15, s3, 5"); a.i("s_add_u32 s14, s14, s15"); a.i("s_lshl_b32 s14, s14, 13")
        a.i("s_lshl_b32 s15, s4, 10"); a.i("s_add_u32 s14, s14, s15"); a.i("s_lshl_b32 s15, s7, 7"); a.i("s_add_u32 s14, s14, s15")
        a.i("v_lshlrev_b32 v10, 13, v2")
        a.i("s_mov_b32 exec_hi, 0")
        a.i(f"buffer_load_dword v146, v10, s[48:51], s14 offen {opt.pf_flags}")
        a.i("s_lshl_b32 s14, s6, 14"); a.i("s_lshl_b32 s15, s7, 11"); a.i("s_add_u32 s14, s14, s15"); a.i("s_lshl_b32 s15, s3, 9"); a.i("s_add_u32 s14, s14, s15")
        a.i("v_lshlrev_b32 v10, 7, v2")
        a.i("s_mov_b64 exec, 0xf")
        a.i(f"buffer_load_dword v147, v10, s[52:55], s14 offen")
        a.i("s_mov_b64 exec, -1")
        if not opt.stagger: xidpub()
        a.i("s_waitcnt vmcnt(0)")
    if opt.bpf:
        g.wait_cnt(CWP, 4)
        if opt.cwpstamp: g.stamp(1)
    if opt.emu == 2:
        a.i("s_barrier")
        for k in range(1, 8): g.stamp(k)
        a.i("s_cmp_lg_u32 s3, 0"); a.i("s_cbranch_scc1 L_end")
        emit_stamps(g, 0, 8)
        a.i("s_branch L_end")
    if opt.emu == 1:
        a.i("v_lshrrev_b32 v10, 3, v2"); a.i("v_and_b32 v11, 7, v2"); a.i("v_lshlrev_b32 v10, 13, v10"); a.i("v_lshl_add_u32 v10, v11, 4, v10")
        a.i("s_lshl_b32 s14, s6, 7"); a.i("s_lshl_b32 s15, s3, 5"); a.i("s_add_u32 s14, s14, s15"); a.i("s_lshl_b32 s14, s14, 13")
        a.i("s_lshl_b32 s15, s4, 10"); a.i("s_add_u32 s14, s14, s15"); a.i("s_lshl_b32 s15, s7, 7"); a.i("s_add_u32 s14, s14, s15")
        for k in range(4):
            a.i(f"buffer_load_dwordx4 {vr(32+4*k)}, v10, s[48:51], s14 offen {opt.w_flags}"); a.i("s_add_u32 s14, s14, 65536")
        a.i("v_lshlrev_b32 v10, 10, v3"); a.i("v_lshl_add_u32 v10, v4, 4, v10")
        a.i("s_lshl_b32 s14, s3, 14"); a.i("s_lshl_b32 s15, s6, 8"); a.i("s_add_u32 s14, s14, s15")
        for k in range(4):
            a.i(f"buffer_load_dwordx4 {vr(16+4*k)}, v10, s[52:55], s14 offen"); a.i("s_add_u32 s14, s14, 4096")
        a.i("s_barrier")
        a.i("s_waitcnt lgkmcnt(0)")
        a.i(f"s_add_u32 s10, s10, {TAGINC:#x}"); a.i("v_mov_b32 v8, s10"); a.i("s_mov_b32 s58, 1")
        a.i("s_waitcnt vmcnt(0)")
        g.stamp(1)
        a.i("v_lshlrev_b32 v7, 4, v2")
        a.i("s_lshl_b32 s14, s41, 14"); a.i("s_lshl_b32 s15, s3, 12"); a.i("s_add_u32 s14, s14, s15"); a.i("s_add_u32 s14, s14, 0x800000")
        a.i("s_mov_b32 s34, 0x2000000")
        for k in range(4):
            a.i(f"buffer_store_dwordx4 {vr(32+4*k)}, v7, s[32:35], s14 offen offset:{k*1024}")
        for k in range(4):
            a.i(f"s_and_b32 s14, s41, 0xffffffe7"); a.i(f"s_or_b32 s14, s14, {k*8}"); a.i("s_lshl_b32 s14, s14, 14"); a.i("s_lshl_b32 s15, s6, 12"); a.i("s_add_u32 s14, s14, s15"); a.i("s_lshl_b32 s15, s3, 10"); a.i("s_add_u32 s14, s14, s15"); a.i("s_add_u32 s14, s14, 0x800000")
            a.i(f"buffer_load_dwordx4 {vr(48+4*k)}, v7, s[32:35], s14 offen sc1")
        a.i("s_waitcnt vmcnt(0)")
        a.i("s_lshl_b32 s14, s41, 12"); a.i("s_lshl_b32 s15, s3, 10"); a.i("s_add_u32 s14, s14, s15"); a.i(f"s_add_u32 s14, s14, {WS_QS}")
        a.i(f"buffer_store_dwordx4 {vr(48)}, v7, s[32:35], s14 offen")
        g.stamp(2)
        for k in range(3, 8): g.stamp(k)
        a.i("s_cmp_lg_u32 s3, 0"); a.i("s_cbranch_scc1 L_end")
        emit_stamps(g, 0, 8)
        a.i("s_branch L_end")
    def qproj(AHEAD, SFX):
        seq = []
        def wqstep(s_):
            if opt.srot:
                a.i(f"s_add_u32 s14, s6, {s_}"); a.i("s_and_b32 s14, s14, 3"); a.i("s_lshl_b32 s14, s14, 18"); a.i("s_add_u32 s15, s44, s14")
                for i in range(8):
                    a.i(f"buffer_load_dwordx2 {vr(WB+16*s_+2*i,2)}, v9, s[48:51], s15 offen {opt.w_flags}")
                    if i < 7: a.i(f"s_add_u32 s15, s15, 8192")
                    seq.append(('w', s_))
                return
            for i in range(8):
                a.i(f"buffer_load_dwordx2 {vr(WB+16*s_+2*i,2)}, v9, s[48:51], s44 offen {opt.w_flags}")
                a.i(f"s_add_u32 s44, s44, 8192")
                seq.append(('w', s_))
            if s_ < 3: a.i(f"s_add_u32 s44, s44, {24*8192}")
        wqstep(0)
        for s2 in range(4):
            if opt.srot:
                a.i(f"s_add_u32 s14, s6, {s2}"); a.i("s_and_b32 s14, s14, 3"); a.i("s_lshl_b32 s14, s14, 6"); a.i("s_add_u32 s14, s14, s45")
                a.i(f"buffer_load_dwordx4 {vr(XA+4*s2)}, v8, s[52:55], s14 offen {opt.x_flags}")
            else:
                a.i(f"buffer_load_dwordx4 {vr(XA+4*s2)}, v8, s[52:55], s45 offen offset:{s2*64} {opt.x_flags}")
            seq.append(('x', 0))
        a.i("s_barrier")
        a.i("s_lshl_b32 s46, s42, 2"); a.i(f"s_add_u32 s46, s46, {WS_XID}")
        a.i("v_lshlrev_b32 v145, 2, v2")
        def xidload():
            a.i("s_mov_b64 exec, 0xff")
            a.i("buffer_load_dword v146, v145, s[32:35], s46 offen sc1")
            a.i("s_mov_b64 exec, -1")
        issued = 1
        while issued < min(4, AHEAD):
            wqstep(issued); issued += 1
        xidpub(); seq.append(('s', 0))
        a.i("v_mov_b32 v8, s10")
        for s_ in range(4):
            last = max([i for i, e in enumerate(seq) if e == ('w', s_) or (s_ == 0 and e[0] == 'x') or (s_ == 2 and e[0] == 'i')])
            a.i(f"s_waitcnt vmcnt({len(seq)-1-last})")
            if s_ == 0:
                xidload(); seq.append(('i', 0))
                if opt.touch & 2:
                    a.i("v_lshlrev_b32 v7, 4, v2")
                    a.i("s_lshl_b32 s14, s41, 12"); a.i("s_lshl_b32 s15, s3, 10"); a.i("s_add_u32 s14, s14, s15"); a.i(f"s_add_u32 s14, s14, {WS_QS}")
                    a.i("buffer_load_dwordx4 v[240:243], v7, s[32:35], s14 offen sc1"); seq.append(('t', 0))
                    a.i("s_lshl_b32 s14, s41, 10"); a.i("s_lshl_b32 s15, s3, 8"); a.i("s_add_u32 s14, s14, s15"); a.i(f"s_add_u32 s14, s14, {WS_ST}")
                    a.i("s_mov_b64 exec, 0xffff")
                    a.i("buffer_load_dwordx4 v[244:247], v7, s[32:35], s14 offen sc1"); seq.append(('t', 0))
                    a.i("s_mov_b64 exec, -1")
            if issued < 4:
                wqstep(issued); issued += 1
            if s_ == 0 and not opt.cwpstamp: g.stamp(1)
            if s_ == 2:
                a.i("s_mov_b32 s45, 0"); a.i("s_mov_b32 s58, 0")
                a.i(f"s_branch L_A_xchk{SFX}")
                a.label(f"L_A_xretry{SFX}")
                xidload()
                a.i("s_waitcnt vmcnt(0)")
                a.label(f"L_A_xchk{SFX}")
                a.i("s_mov_b64 exec, 0xff")
                a.i("v_xor_b32 v147, v146, v8"); a.i("v_and_b32 v147, 0xfffffff0, v147"); a.i("v_cmp_ne_u32 vcc, 0, v147")
                a.i("s_mov_b64 exec, -1")
                a.i(f"s_cbranch_vccz L_A_xok{SFX}")
                a.i("s_add_u32 s45, s45, 1")
                a.i(f"s_cmp_lt_u32 s45, {opt.xid_tries}")
                a.i(f"s_cbranch_scc1 L_A_xretry{SFX}")
                a.i(f"s_branch L_A_xdone{SFX}")
                a.label(f"L_A_xok{SFX}")
                a.i("s_mov_b64 exec, 0xff")
                a.i("v_and_b32 v147, 15, v146"); a.i("v_cmp_ne_u32 vcc, s57, v147")
                a.i("s_mov_b64 exec, -1")
                a.i("s_cmp_eq_u64 vcc, 0"); a.i("s_cselect_b32 s58, 1, 0")
                a.label(f"L_A_xdone{SFX}")
                if opt.force_slow: a.i("s_mov_b32 s58, 0")
                for r in range(4): a.i(f"v_mov_b32 v{148+r}, -1")
                a.i("v_lshlrev_b32 v7, 4, v2")
                a.i("s_lshl_b32 s43, s41, 12"); a.i("s_lshl_b32 s14, s3, 10"); a.i("s_add_u32 s43, s43, s14"); a.i(f"s_add_u32 s46, s43, {WS_OS}")
                g.store_var("buffer_store_dwordx4 v[148:151], v7, s[32:35], s46 offen"); seq.append(('p', 0))
            tb = T + (s_ & 1) * 16
            transpose4(a, tb, lambda i, w: WB + 16*s_ + 2*i + w)
            for e in range(4):
                c = "0" if s_ == 0 else vr(ACC+4*e)
                a.i(f"v_mfma_f32_16x16x32_bf16 {vr(ACC+4*e)}, {vr(XA+4*s_)}, {vr(tb+4*e)}, {c}")
    if opt.wq_ahead3 and opt.wq_ahead3 != opt.wq_ahead:
        a.i("s_cmp_eq_u32 s7, 3"); a.i("s_cbranch_scc1 L_A_q3")
        qproj(opt.wq_ahead, "a")
        a.i("s_branch L_A_qdone")
        a.label("L_A_q3")
        qproj(opt.wq_ahead3, "b")
        a.label("L_A_qdone")
    else:
        qproj(opt.wq_ahead, "a")
    a.i("v_lshlrev_b32 v9, 2, v2"); a.i("s_lshl_b32 s14, s3, 10"); a.i(f"s_add_u32 s14, s14, {L_QR}"); a.i("v_add_u32 v7, s14, v9")
    for r in range(4):
        for e in range(0, 4, 2):
            a.i(f"ds_write2st64_b32 v7, v{ACC+4*e+r}, v{ACC+4*(e+1)+r} offset0:{r*16+e} offset1:{r*16+e+1}")
    a.i("v_mov_b32 v10, s58"); a.i(f"ds_write_b32 v1, v10 offset:{FASTW}")
    a.i("s_waitcnt lgkmcnt(0)")
    g.signal(CQ)
    g.wait_cnt(CQ, 4)
    a.i("s_lshl_b32 s14, s3, 12"); a.i(f"s_add_u32 s14, s14, {L_QR}"); a.i("v_add_u32 v7, s14, v9")
    R = 152
    for src in range(4):
        for e in range(0, 4, 2):
            a.i(f"ds_read2st64_b32 {vr(R+4*src+e,2)}, v7 offset0:{src*4+e} offset1:{src*4+e+1}")
    a.i("v_lshlrev_b32 v9, 10, v3"); a.i("v_and_b32 v10, 1, v4"); a.i("v_lshl_add_u32 v9, v10, 9, v9")
    a.i("v_lshrrev_b32 v10, 3, v4"); a.i("v_lshl_add_u32 v9, v10, 8, v9"); a.i("v_bfe_u32 v10, v4, 1, 2"); a.i("v_lshl_add_u32 v9, v10, 4, v9")
    a.i("s_lshl_b32 s43, s41, 12"); a.i("s_lshl_b32 s14, s3, 6"); a.i("s_add_u32 s43, s43, s14"); a.i(f"s_add_u32 s43, s43, {WS_QS}")
    a.i("s_waitcnt lgkmcnt(0)")
    for e in range(4):
        a.i(f"v_add_f32 v{R+e}, v{R+e}, v{R+4+e}"); a.i(f"v_add_f32 v{R+8+e}, v{R+8+e}, v{R+12+e}")
    for e in range(4): a.i(f"v_add_f32 v{R+e}, v{R+e}, v{R+8+e}")
    a.i(f"v_cvt_pk_bf16_f32 v{R+4}, v{R}, v{R+1}"); a.i(f"v_cvt_pk_bf16_f32 v{R+5}, v{R+2}, v{R+3}")
    a.i(f"v_perm_b32 v{R+8}, v{R+4}, v8, s11"); a.i(f"v_perm_b32 v{R+9}, v{R+4}, v8, s12")
    a.i(f"v_perm_b32 v{R+10}, v{R+5}, v8, s11"); a.i(f"v_perm_b32 v{R+11}, v{R+5}, v8, s12")
    a.i("s_waitcnt vmcnt(0)")
    if opt.touch & 1:
        a.i("v_lshlrev_b32 v7, 4, v2")
        a.i("buffer_load_dwordx4 v[248:251], v7, s[32:35], s46 offen sc1")
    g.store_var(f"buffer_store_dwordx4 {vr(R+8)}, v9, s[32:35], s43 offen")
    g.stamp(2)
    astop(g, 2)
    QR = 176
    a.i("v_lshrrev_b32 v9, 2, v4"); a.i("v_lshlrev_b32 v9, 13, v9"); a.i("v_and_b32 v10, 3, v4"); a.i("v_lshl_add_u32 v9, v10, 6, v9"); a.i("v_lshl_add_u32 v9, v3, 4, v9")
    a.i("s_lshl_b32 s43, s42, 12"); a.i("s_lshl_b32 s14, s8, 10"); a.i("s_add_u32 s43, s43, s14"); a.i(f"s_add_u32 s43, s43, {WS_QS}")
    a.i("s_lshr_b32 s14, s3, 1"); a.i("s_lshl_b32 s14, s14, 12"); a.i("s_add_u32 s43, s43, s14")
    a.i("s_and_b32 s14, s3, 1"); a.i("s_lshl_b32 s14, s14, 8"); a.i("s_add_u32 s43, s43, s14")
    a.i("s_mov_b32 s45, 0")
    a.label("L_A_qretry")
    for u in range(2):
        a.i(f"buffer_load_dwordx4 {vr(QR+4*u)}, v9, s[32:35], s43 offen offset:{u*512} {opt.ld_flags}")
    a.i("v_mov_b32 v10, 0")
    a.i("s_waitcnt vmcnt(0)")
    for k in range(4):
        a.i(f"v_perm_b32 v11, v{QR+2*k+1}, v{QR+2*k}, s11")
        a.i(f"v_xor_b32 v11, v11, v8")
        a.i(f"v_or_b32 v10, v10, v11")
    a.i("v_cmp_ne_u32 vcc, 0, v10")
    g.retry_tail("L_A_qretry", "L_A_qok")
    for k in range(4):
        a.i(f"v_perm_b32 v{QR+8+k}, v{QR+2*k+1}, v{QR+2*k}, s12")
    a.i("v_lshlrev_b32 v9, 4, v2"); a.i("s_lshl_b32 s14, s3, 10"); a.i(f"s_add_u32 s14, s14, {L_Q}"); a.i("v_add_u32 v10, s14, v9")
    a.i(f"ds_write_b128 v10, {vr(QR+8)}")
    for st in range(4):
        a.i(f"v_add_u32 v10, {4*st}, v3"); a.i("v_xor_b32 v10, v10, v4"); a.i("v_lshlrev_b32 v10, 4, v10"); a.i("v_lshl_add_u32 v10, v4, 8, v10"); a.i(f"v_add_u32 v{12+st}, s47, v10")
    a.i("s_waitcnt lgkmcnt(0)")
    g.signal(CQ2)
    g.stamp(3)
    astop(g, 3)
    WR, WF = 32, 96
    srd(a, 48, 24, 25, 4 << 20)
    a.i("v_lshlrev_b32 v16, 15, v3"); a.i("v_lshl_add_u32 v16, v4, 3, v16")
    a.i("s_lshl_b32 s46, s4, 2"); a.i("s_add_u32 s46, s46, s3"); a.i("s_lshl_b32 s46, s46, 17"); a.i("s_lshl_b32 s15, s59, 7"); a.i("s_add_u32 s46, s46, s15")
    def wostep(st):
        if opt.srot:
            a.i(f"s_add_u32 s14, s6, {st}"); a.i("s_and_b32 s14, s14, 3"); a.i("s_lshl_b32 s14, s14, 13"); a.i("s_add_u32 s15, s46, s14")
            for i in range(8):
                if i == 4: a.i("s_add_u32 s15, s15, 4096")
                a.i(f"buffer_load_dwordx2 {vr(WR+16*st+2*i,2)}, v16, s[48:51], s15 offen offset:{(i&3)*1024} {opt.wo_flags}")
            return
        for i in range(8):
            if i % 4 == 0 and (st or i): a.i("s_add_u32 s46, s46, 4096")
            a.i(f"buffer_load_dwordx2 {vr(WR+16*st+2*i,2)}, v16, s[48:51], s46 offen offset:{(i&3)*1024} {opt.wo_flags}")
    KB = [96, 128]; QF = 160; SA = 192; PF = 224; ST = 240
    def kread(p):
        for tt in range(2):
            for st in range(4):
                a.i(f"ds_read_b128 {vr(KB[p&1]+16*tt+4*st)}, v{12+st} offset:{(2*p+tt)*4096}")
    g.wait_cnt(CQ2, 4)
    a.i(f"v_add_u32 v10, {L_Q}, v9")
    for st in range(4): a.i(f"ds_read_b128 {vr(QF+4*st)}, v10 offset:{st*1024}")
    a.i("s_lshl_b32 s14, s3, 2"); a.i("v_add_u32 v7, s14, v1")
    g.wait_cnt(CKD, 1, vaddr=7)
    kread(0); kread(1)
    for p in range(4):
        a.i(f"s_waitcnt lgkmcnt({8 if p < 3 else 0})")
        for tt in range(2):
            t = 2*p + tt
            for st in range(4):
                c = "0" if st == 0 else vr(SA+4*t)
                a.i(f"v_mfma_f32_16x16x32_bf16 {vr(SA+4*t)}, {vr(KB[p&1]+16*tt+4*st)}, {vr(QF+4*st)}, {c}")
        if p + 2 < 4: kread(p + 2)
    a.i(f"s_mov_b32 s13, {f2u(SCALE):#x}")
    a.i(f"v_max3_f32 v10, v{SA}, v{SA+1}, v{SA+2}")
    for r in range(3, 31, 2): a.i(f"v_max3_f32 v10, v10, v{SA+r}, v{SA+r+1}")
    a.i(f"v_max_f32 v10, v10, v{SA+31}")
    a.i("v_mov_b32 v11, v10"); a.i("v_permlane16_swap_b32 v10, v11"); a.i("v_max_f32 v10, v10, v11")
    a.i("v_mov_b32 v11, v10"); a.i("v_permlane32_swap_b32 v10, v11"); a.i("v_max_f32 v10, v10, v11")
    a.i("v_mul_f32 v12, s13, v10")
    for r in range(32): a.i(f"v_fma_f32 v{SA+r}, v{SA+r}, s13, -v12")
    for r in range(32): a.i(f"v_exp_f32 v{SA+r}, v{SA+r}")
    for k in range(16): a.i(f"v_cvt_pk_bf16_f32 v{PF+k}, v{SA+2*k}, v{SA+2*k+1}")
    a.i("v_lshlrev_b32 v9, 4, v2"); a.i("s_lshl_b32 s14, s3, 12"); a.i(f"s_add_u32 s14, s14, {L_P}"); a.i("v_add_u32 v9, s14, v9")
    for u in range(4): a.i(f"ds_write_b128 v9, {vr(PF+4*u)} offset:{u*1024}")
    a.i(f"v_add_f32 v10, v{SA}, v{SA+1}"); a.i(f"v_add_f32 v11, v{SA+2}, v{SA+3}")
    for r in range(4, 32, 2):
        a.i(f"v_add_f32 v10, v10, v{SA+r}"); a.i(f"v_add_f32 v11, v11, v{SA+r+1}")
    a.i("s_waitcnt lgkmcnt(0)")
    g.signal(CP, vaddr=7)
    a.i("v_add_f32 v10, v10, v11")
    a.i("v_mov_b32 v11, v10"); a.i("v_permlane16_swap_b32 v10, v11"); a.i("v_add_f32 v10, v10, v11")
    a.i("v_mov_b32 v11, v10"); a.i("v_permlane32_swap_b32 v10, v11"); a.i("v_add_f32 v13, v10, v11")
    a.i("v_mov_b32 v14, v8"); a.i("v_mov_b32 v15, v8")
    a.i("s_lshl_b32 s43, s41, 10"); a.i("s_lshl_b32 s14, s3, 8"); a.i("s_add_u32 s43, s43, s14"); a.i(f"s_add_u32 s43, s43, {WS_ST}")
    a.i("v_lshlrev_b32 v9, 4, v4")
    a.i("s_mov_b64 exec, 0xffff")
    g.store_var("buffer_store_dwordx4 v[12:15], v9, s[32:35], s43 offen")
    a.i("s_mov_b64 exec, -1")
    g.stamp(4)
    if opt.touch & 4:
        a.i("v_lshlrev_b32 v10, 4, v2")
        a.i("s_lshl_b32 s14, s41, 12"); a.i("s_lshl_b32 s15, s3, 10"); a.i("s_add_u32 s14, s14, s15"); a.i(f"s_add_u32 s14, s14, {WS_PS}")
        a.i(f"buffer_load_dwordx4 v[252:255], v10, s[32:35], s14 offen {opt.ptouch_flags}")
    if opt.pf:
        a.i("s_lshl_b32 s14, s4, 9"); a.i("s_lshl_b32 s15, s6, 7"); a.i("s_add_u32 s14, s14, s15"); a.i("s_lshl_b32 s15, s3, 5"); a.i("s_add_u32 s14, s14, s15"); a.i("s_lshl_b32 s14, s14, 10")
        a.i("s_lshl_b32 s15, s7, 7"); a.i("s_add_u32 s14, s14, s15")
        a.i("v_lshlrev_b32 v10, 10, v2")
        a.i("s_mov_b32 exec_hi, 0")
        a.i(f"buffer_load_dword v17, v10, s[48:51], s14 offen {opt.pf_flags}")
        a.i("s_mov_b64 exec, -1")
    a.i("s_and_b32 s43, s41, 0xfffffffe"); a.i("s_lshl_b32 s43, s43, 10"); a.i(f"s_add_u32 s43, s43, {WS_ST}")
    a.i("v_lshl_add_u32 v9, v3, 9, v9")
    a.i("s_mov_b32 s45, 0")
    a.label("L_A_sretry")
    a.i(f"buffer_load_dwordx4 {vr(ST)}, v9, s[32:35], s43 offen {opt.ld_flags}")
    a.i(f"buffer_load_dwordx4 {vr(ST+4)}, v9, s[32:35], s43 offen offset:256 {opt.ld_flags}")
    a.i("s_waitcnt vmcnt(0)")
    a.i(f"v_xor_b32 v10, v{ST+2}, v8"); a.i(f"v_xor_b32 v11, v{ST+3}, v8"); a.i("v_or_b32 v10, v10, v11")
    a.i(f"v_xor_b32 v11, v{ST+6}, v8"); a.i("v_or_b32 v10, v10, v11"); a.i(f"v_xor_b32 v11, v{ST+7}, v8"); a.i("v_or_b32 v10, v10, v11")
    a.i("v_cmp_ne_u32 vcc, 0, v10")
    g.retry_tail("L_A_sretry", "L_A_sok")
    a.i(f"v_max_f32 v10, v{ST}, v{ST+4}")
    a.i("v_mov_b32 v11, v10"); a.i("v_permlane16_swap_b32 v10, v11"); a.i("v_max_f32 v10, v10, v11")
    a.i("v_mov_b32 v11, v10"); a.i("v_permlane32_swap_b32 v10, v11"); a.i("v_max_f32 v10, v10, v11")
    a.i(f"v_sub_f32 v{ST}, v{ST}, v10"); a.i(f"v_sub_f32 v{ST+4}, v{ST+4}, v10")
    a.i(f"v_exp_f32 v{ST}, v{ST}"); a.i(f"v_exp_f32 v{ST+4}, v{ST+4}")
    a.i(f"v_mul_f32 v{ST+1}, v{ST+1}, v{ST}"); a.i(f"v_fmac_f32 v{ST+1}, v{ST+5}, v{ST+4}")
    a.i(f"v_mov_b32 v11, v{ST+1}"); a.i(f"v_permlane16_swap_b32 v{ST+1}, v11"); a.i(f"v_add_f32 v{ST+1}, v{ST+1}, v11")
    a.i(f"v_mov_b32 v11, v{ST+1}"); a.i(f"v_permlane32_swap_b32 v{ST+1}, v11"); a.i(f"v_add_f32 v11, v{ST+1}, v11")
    a.i("v_sub_f32 v12, v12, v10"); a.i("v_exp_f32 v12, v12"); a.i("v_rcp_f32 v11, v11"); a.i("v_mul_f32 v12, v12, v11")
    a.i("v_lshlrev_b32 v9, 2, v4"); a.i("s_lshl_b32 s14, s3, 6"); a.i(f"s_add_u32 s14, s14, {L_F}"); a.i("v_add_u32 v9, s14, v9")
    a.i("ds_write_b32 v9, v12")
    a.i("s_waitcnt lgkmcnt(0)")
    g.signal(CF)
    for st in range(opt.wo_early): wostep(st)
    if opt.wo_early < 4:
        g.wait_cnt(CV, 4)
        for st in range(opt.wo_early, 4): wostep(st)
    OG, CA = 192, 176
    a.i("v_add_u32 v10, s3, v4"); a.i("v_and_b32 v10, 3, v10")
    a.i("v_lshrrev_b32 v9, 2, v4"); a.i("v_lshlrev_b32 v9, 13, v9"); a.i("v_lshl_add_u32 v9, v10, 6, v9"); a.i("v_lshl_add_u32 v9, v3, 4, v9")
    a.i("s_lshl_b32 s43, s42, 12"); a.i("s_lshl_b32 s14, s3, 10"); a.i("s_add_u32 s43, s43, s14"); a.i(f"s_add_u32 s43, s43, {WS_OS}")
    a.i("s_add_u32 s44, s43, 4096")
    if opt.srot:
        for sp in range(2):
            for st in range(4):
                a.i(f"s_add_u32 s14, s6, {st}"); a.i("s_and_b32 s14, s14, 3"); a.i("s_lshl_b32 s14, s14, 8"); a.i(f"s_add_u32 s{80+4*sp+st}, s14, {'s43' if sp == 0 else 's44'}")
    a.i("s_lshl_b32 s46, s42, 4"); a.i(f"s_add_u32 s46, s46, {WS_OF}")
    a.i("v_lshlrev_b32 v7, 2, v2")
    for r in range(1, 4):
        a.i(f"s_add_u32 s14, s3, {r}"); a.i("s_and_b32 s14, s14, 3"); a.i("s_lshl_b32 s14, s14, 12"); a.i(f"s_add_u32 s14, s14, {L_CR + (r-1)*1024}"); a.i(f"v_add_u32 v{12+r}, s14, v7")
    a.i("s_lshl_b32 s14, s3, 12"); a.i(f"s_add_u32 s14, s14, {L_CR}"); a.i("v_add_u32 v12, s14, v7")
    a.i("v_lshlrev_b32 v17, 10, v3"); a.i("v_lshl_add_u32 v17, v4, 4, v17")
    a.i("s_lshl_b32 s47, s41, 12"); a.i("s_lshl_b32 s14, s3, 8"); a.i("s_add_u32 s47, s47, s14"); a.i(f"s_add_u32 s47, s47, {WS_PS}")
    for e in range(4): a.i(f"s_mov_b32 s{60+e}, {0x07060500+e:#x}")
    for st in range(opt.wo_early):
        a.i(f"s_waitcnt vmcnt({8*(3-st)})")
        transpose4(a, WF+16*st, lambda i, w: WR + 16*st + 2*i + w)
    if opt.t2: g.stamp(-1, tail=7)
    if not opt.bsync: a.i("s_barrier")
    g.stamp(-1, tail=1)
    for st in range(opt.wo_early, 4):
        a.i(f"s_waitcnt vmcnt({8*(3-st)})")
        transpose4(a, WF+16*st, lambda i, w: WR + 16*st + 2*i + w)
    g.stamp(5, tail=2)
    a.i("s_mov_b32 s45, 0")
    a.label("L_A_fretry")
    a.i("s_mov_b32 exec_hi, 0")
    a.i(f"buffer_load_dword v10, v7, s[32:35], s46 offen {opt.ld_flags}")
    a.i("s_waitcnt vmcnt(0)")
    a.i("v_cmp_ne_u32 vcc, v10, v8")
    a.i("s_mov_b64 exec, -1")
    g.retry_tail("L_A_fretry", "L_A_fok")
    g.stamp(-1, tail=3)
    if opt.dbgcnt: a.i("s_mov_b32 s92, s45")
    a.i("s_mov_b32 s45, 0")
    def ogather(fl):
        for sp in range(2):
            for st in range(4):
                if opt.srot:
                    a.i(f"buffer_load_dwordx4 {vr(OG+16*sp+4*st)}, v9, s[32:35], s{80+4*sp+st} offen {fl}")
                else:
                    a.i(f"buffer_load_dwordx4 {vr(OG+16*sp+4*st)}, v9, s[32:35], {'s43' if sp == 0 else 's44'} offen offset:{st*256} {fl}")
    if opt.o_plain:
        a.i("s_cmp_eq_u32 s58, 1"); a.i("s_cbranch_scc0 L_A_oretry")
        ogather("")
        a.i("s_branch L_A_ogo")
    a.label("L_A_oretry")
    ogather(opt.ld_flags)
    a.label("L_A_ogo")
    k = 0
    for sp in range(2):
        for st in range(4):
            a.i(f"s_waitcnt vmcnt({7-k})")
            for e in range(4):
                c = "0" if k == 0 else vr(CA+4*e)
                a.i(f"v_mfma_f32_16x16x32_bf16 {vr(CA+4*e)}, {vr(OG+16*sp+4*st)}, {vr(WF+16*st+4*e)}, {c}")
            b = OG+16*sp+4*st
            if k == 0: a.i(f"v_max3_u32 v10, v{b}, v{b+1}, v{b+2}"); a.i(f"v_max_u32 v10, v10, v{b+3}")
            else: a.i(f"v_max3_u32 v10, v10, v{b}, v{b+1}"); a.i(f"v_max3_u32 v10, v10, v{b+2}, v{b+3}")
            k += 1
    a.i("v_cmp_eq_u32 vcc, -1, v10")
    g.retry_tail("L_A_oretry", "L_A_ook")
    g.stamp(6, tail=4)
    if opt.regather:
        ogather("sc1")
        a.i("s_waitcnt vmcnt(0)")
        g.stamp(-1, tail=5)
    if opt.dbgcnt:
        a.i("s_mov_b64 exec, 1")
        a.i("v_mov_b32 v18, s45"); a.i("v_mov_b32 v19, s92")
        a.i("global_atomic_add v5, v18, s[28:29]"); a.i("global_atomic_add v5, v19, s[28:29] offset:4")
        a.i("global_atomic_add v5, v6, s[28:29] offset:8")
        a.i("s_mov_b64 exec, -1")
    for r in range(1, 4):
        for e in range(0, 4, 2):
            a.i(f"ds_write2st64_b32 v{12+r}, v{CA+4*e+r}, v{CA+4*(e+1)+r} offset0:{e} offset1:{e+1}")
    a.i("s_waitcnt lgkmcnt(0)")
    a.i("s_barrier")
    if not opt.regather: g.stamp(-1, tail=5)
    R = 20
    for slot in range(3):
        for e in range(0, 4, 2):
            a.i(f"ds_read2st64_b32 {vr(R+4*slot+e,2)}, v12 offset0:{slot*4+e} offset1:{slot*4+e+1}")
    a.i("s_waitcnt lgkmcnt(0)")
    for e in range(4):
        a.i(f"v_add_f32 v{R+e}, v{R+e}, v{R+4+e}"); a.i(f"v_add_f32 v{R+8+e}, v{R+8+e}, v{CA+4*e}")
    for e in range(4): a.i(f"v_add_f32 v{R+e}, v{R+e}, v{R+8+e}")
    for e in range(4): a.i(f"v_perm_b32 v{R+12+e}, v{R+e}, v8, s{60+e}")
    a.i(f"buffer_store_dwordx4 {vr(R+12)}, v17, s[32:35], s47 offen {opt.pst_flags}")
    g.stamp(7, tail=6)
    if opt.tstamps and not opt.t2:
        a.i("s_waitcnt vmcnt(0)")
        g.stamp(-1, tail=7)
    if opt.stamps:
        a.i("s_cmp_lg_u32 s3, 0"); a.i("s_cbranch_scc1 L_end")
        emit_stamps(g, 0, 8)
    a.i("s_branch L_end")

    a.label("L_B")
    a.i("s_sub_u32 s3, s3, 4")
    if opt.late_th or opt.dbgtime: a.i("s_memrealtime s[94:95]")
    if opt.b_exit:
        for k in range(1, 8): g.stamp(k)
        a.i("s_cmp_lg_u32 s3, 0"); a.i("s_cbranch_scc1 L_end")
        emit_stamps(g, 8, 8, first=1)
        a.i("s_branch L_end")
    VF, PF2, T2, OA = 16, 144, 160, 192
    kvbase(a)
    a.i("s_mov_b32 s57, s14")
    if opt.rot:
        a.i("s_add_u32 s56, s5, s3"); a.i("s_and_b32 s56, s56, 7"); a.i("s_lshl_b32 s56, s56, 12")
    else:
        a.i("s_mov_b32 s56, 0")
    for n in range(4):
        a.i(f"v_add_u32 v10, {4*n}, v3"); a.i("v_xor_b32 v10, v10, v4"); a.i("v_lshlrev_b32 v10, 4, v10"); a.i(f"v_lshl_add_u32 v{12+n}, v3, 8, v10")
    a.i("s_lshl_b32 s47, s3, 15")
    a.i("s_lshl_b32 s15, s6, 7")
    a.i("s_waitcnt lgkmcnt(0)")
    srd(a, 48, 18, 19, 128*256, add="s57")
    a.i("s_load_dword s10, s[30:31], s15")
    srd(a, 36, 20, 21, 128*256, add="s57")
    srd(a, 32, 30, 31, WS_SIZE)
    if opt.bpf:
        srd(a, 52, 22, 23, 4 << 20)
        srd(a, 60, 16, 17, 65536)
        a.i("v_lshlrev_b32 v8, 4, v2")
        a.i("s_lshl_b32 s14, s5, 4"); a.i("s_lshl_b32 s15, s3, 2"); a.i("s_add_u32 s14, s14, s15"); a.i("s_lshl_b32 s14, s14, 13"); a.i("s_lshl_b32 s15, s4, 10"); a.i("s_add_u32 s14, s14, s15")
        for k in range(4):
            a.i(f"buffer_load_dwordx4 {vr(16+4*k)}, v8, s[52:55], s14 offen {opt.bpf_flags}")
            if k < 3: a.i("s_add_u32 s14, s14, 8192")
        a.i("s_lshl_b32 s14, s5, 1"); a.i("s_and_b32 s15, s3, 1"); a.i("s_add_u32 s14, s14, s15"); a.i("s_lshl_b32 s14, s14, 10")
        a.i(f"buffer_load_dwordx4 {vr(32)}, v8, s[60:63], s14 offen")
    NPF = 0
    LO, HI = opt.thr, max(opt.thr3, opt.thr)
    a.i("s_cmp_eq_u32 s7, 3"); a.i("s_cselect_b64 vcc, -1, 0")
    if opt.late_th:
        a.i("s_or_b32 s14, s5, s3"); a.i("s_cmp_lg_u32 s14, 0"); a.i("s_cbranch_scc1 L_B_noat")
        a.i("s_not_b32 s14, s94"); a.i("v_mov_b32 v10, s14")
        a.i("s_mov_b64 exec, 1")
        a.i("global_atomic_umax v5, v10, s[28:29] sc1")
        a.i("s_mov_b64 exec, -1")
        a.label("L_B_noat")
    cnt = [0]
    def throttle():
        n = cnt[0]
        lo, hi = LO, HI
        if opt.thr_end and n >= 32 + opt.end_from:
            lo = max(lo, opt.thr_end); hi = max(hi, opt.thr_end)
        if n >= hi: a.i(f"s_waitcnt vmcnt({hi-1})")
        if n >= lo and lo < hi:
            L = g.lab("t")
            a.i(f"s_cbranch_vccnz {L}"); a.i(f"s_waitcnt vmcnt({lo-1})"); a.label(L)
        cnt[0] += 1
    for t in range(8):
        a.i(f"s_add_u32 s14, s47, {t*4096}"); a.i("s_mov_b32 m0, s14"); a.i(f"s_xor_b32 s14, s56, {t*4096}")
        for n in range(4):
            throttle()
            a.i(f"buffer_load_dwordx4 v{12+n}, s[48:51], s14 offen offset:{n*1024} {opt.kv_flags if opt.k_flags == 'same' else opt.k_flags} lds")
        if t == 0:
            a.i("s_barrier")
            a.i("v_add_u32 v7, s3, v4"); a.i("v_and_b32 v7, 3, v7"); a.i("v_and_b32 v10, 12, v4"); a.i("v_or_b32 v7, v7, v10")
            a.i("v_lshlrev_b32 v7, 4, v7"); a.i("v_lshl_add_u32 v7, v3, 10, v7")
            a.i("s_lshl_b32 s15, s3, 2"); a.i("v_add_u32 v11, s15, v1")
        if opt.late_th and t == opt.late_at - 1:
            a.i("s_load_dword s96, s[28:29], 0 glc")
        if opt.late_th and t == opt.late_at:
            a.i("s_waitcnt lgkmcnt(0)")
            a.i("s_not_b32 s14, s96"); a.i("s_sub_u32 s14, s94, s14")
            a.i("s_cmp_eq_u32 s96, 0"); a.i("s_cselect_b32 s14, 0, s14")
            a.i(f"s_cmp_gt_i32 s14, {opt.late_th}"); a.i("s_cselect_b64 s[96:97], -1, 0"); a.i("s_or_b64 vcc, vcc, s[96:97]")
    g.stamp(1)
    for u in range(4):
        for i in range(8):
            if i % 4 == 0: a.i(f"s_xor_b32 s14, s56, {u*8192 + (i>>2)*4096}")
            throttle()
            n = cnt[0] - 1
            if n - LO == 31:
                L = g.lab("k")
                if LO < HI: a.i(f"s_cbranch_vccnz {L}")
                g.signal(CKD, vaddr=11)
                a.label(L)
            if LO < HI and n - HI == 31:
                L = g.lab("k")
                a.i(f"s_cbranch_vccz {L}")
                g.signal(CKD, vaddr=11)
                a.label(L)
            a.i(f"buffer_load_dwordx4 {vr(VF+32*u+4*i)}, v7, s[36:39], s14 offen offset:{(i&3)*256} {opt.kv_flags if opt.v_flags == 'same' else opt.v_flags}")
    g.signal(CV)
    if opt.bstamps:
        a.i("s_waitcnt vmcnt(0)")
        a.i("s_cmp_lg_u32 s3, 0"); a.i("s_cbranch_scc1 L_end")
        emit_stamps(g, 8, 8, first=1)
        a.i("s_branch L_end")
    g.stamp(2, tail=1)
    if opt.bench:
        a.i("s_waitcnt vmcnt(0)")
        for k in range(3, 8): g.stamp(k)
        a.i("s_cmp_lg_u32 s3, 0"); a.i("s_cbranch_scc1 L_end")
        emit_stamps(g, 8, 8, first=1)
        a.i("s_branch L_end")
    g.wait_cnt(CP, 1, vaddr=11)
    a.i("v_lshlrev_b32 v9, 4, v2"); a.i("s_lshl_b32 s14, s3, 12"); a.i(f"s_add_u32 s14, s14, {L_P}"); a.i("v_add_u32 v9, s14, v9")
    for u in range(4): a.i(f"ds_read_b128 {vr(PF2+4*u)}, v9 offset:{u*1024}")
    a.i(f"ds_read_b32 v10, v1 offset:{FASTW}")
    a.i("s_waitcnt lgkmcnt(0)")
    a.i(f"s_add_u32 s10, s10, {TAGINC:#x}")
    a.i("v_mov_b32 v8, s10")
    a.i("v_readfirstlane_b32 s58, v10")
    if not opt.t2: g.stamp(3, tail=2)
    if opt.b_prio_pv: a.i(f"s_setprio {opt.b_prio_pv}")
    def factors(wait=True):
        if wait: g.wait_cnt(CF, 4)
        for k in range(4):
            a.i(f"s_sub_u32 s14, s3, {k}"); a.i("s_and_b32 s14, s14, 3"); a.i("s_lshl_b32 s14, s14, 6"); a.i(f"s_add_u32 s14, s14, {L_F}")
            a.i(f"v_lshl_add_u32 v10, v4, 2, s14"); a.i(f"ds_read_b32 v{148+k}, v10")
    for u in range(4):
        L = lambda i, w: VF + 32*u + 4*i + w
        if u < 3:
            a.i(f"s_waitcnt vmcnt({(3-u)*8})")
            for e in range(8):
                w = e >> 1; sel = 's11' if (e & 1) == 0 else 's12'
                for p in range(4):
                    a.i(f"v_perm_b32 v{T2+4*e+p}, v{L(2*p+1,w)}, v{L(2*p,w)}, {sel}")
        else:
            for p in range(4):
                a.i(f"s_waitcnt vmcnt({6-2*p})")
                for e in range(8):
                    w = e >> 1; sel = 's11' if (e & 1) == 0 else 's12'
                    a.i(f"v_perm_b32 v{T2+4*e+p}, v{L(2*p+1,w)}, v{L(2*p,w)}, {sel}")
        for e in range(8):
            c = "0" if u == 0 else vr(OA+4*e)
            a.i(f"v_mfma_f32_16x16x32_bf16 {vr(OA+4*e)}, {vr(T2+4*e)}, {vr(PF2+4*u)}, {c}")
        if u == 2:
            if not opt.cf_late: factors()
            if opt.cf_late == 2:
                a.i(f"ds_read_b32 v10, v1 offset:{CF}"); a.i("s_waitcnt lgkmcnt(0)"); a.i("v_readfirstlane_b32 s93, v10")
                a.i("s_cmp_ge_u32 s93, 4"); a.i("s_cbranch_scc0 L_B_fskip")
                factors(False)
                a.label("L_B_fskip")
            a.i("v_lshrrev_b32 v12, 2, v4"); a.i("v_lshlrev_b32 v12, 10, v12"); a.i("v_and_b32 v10, 3, v4"); a.i("v_lshl_add_u32 v12, v10, 6, v12"); a.i("v_lshl_add_u32 v12, v3, 4, v12")
            a.i("s_lshl_b32 s43, s41, 12"); a.i("s_lshl_b32 s14, s3, 8"); a.i("s_add_u32 s43, s43, s14"); a.i(f"s_add_u32 s43, s43, {WS_OS}")
            a.i("s_lshl_b32 s44, s41, 4"); a.i("s_lshl_b32 s14, s3, 2"); a.i("s_add_u32 s44, s44, s14"); a.i(f"s_add_u32 s44, s44, {WS_OF}")
            a.i("v_lshlrev_b32 v9, 2, v2")
            for r in range(1, 4):
                a.i(f"s_add_u32 s14, s3, {r}"); a.i("s_and_b32 s14, s14, 3"); a.i("s_lshl_b32 s14, s14, 13"); a.i(f"s_add_u32 s14, s14, {L_OR + (r-1)*2048}"); a.i(f"v_add_u32 v{12+r}, s14, v9")
            a.i("s_lshl_b32 s14, s3, 13"); a.i(f"s_add_u32 s14, s14, {L_OR}"); a.i("v_add_u32 v7, s14, v9")
    if opt.cf_late == 1: factors()
    if opt.cf_late == 2:
        a.i("s_cmp_ge_u32 s93, 4"); a.i("s_cbranch_scc1 L_B_fdone")
        factors()
        a.label("L_B_fdone")
    g.stamp(4, tail=3)
    for r in range(1, 4):
        for e in range(0, 8, 2):
            a.i(f"ds_write2st64_b32 v{12+r}, v{OA+4*e+r}, v{OA+4*(e+1)+r} offset0:{e} offset1:{e+1}")
    a.i("s_waitcnt lgkmcnt(0)")
    if opt.t2: g.stamp(-1, tail=2)
    if opt.bsync:
        g.signal(CO)
        g.wait_cnt(CO, 4)
    else:
        a.i("s_barrier")
    g.stamp(-1, tail=4)
    R = 16
    for slot in range(3):
        for e in range(0, 8, 2):
            a.i(f"ds_read2st64_b32 {vr(R+8*slot+e,2)}, v7 offset0:{slot*8+e} offset1:{slot*8+e+1}")
    FR = 148
    for e in range(8): a.i(f"v_mul_f32 v{OA+4*e}, v{OA+4*e}, v{FR}")
    for slot in range(3):
        a.i(f"s_waitcnt lgkmcnt({4*(2-slot)})")
        for e in range(8): a.i(f"v_fmac_f32 v{OA+4*e}, v{R+8*slot+e}, v{FR+1+slot}")
    for p in range(4): a.i(f"v_cvt_pk_bf16_f32 v{R+32+p}, v{OA+8*p}, v{OA+8*p+4}")
    g.store_var(f"buffer_store_dwordx4 {vr(R+32)}, v12, s[32:35], s43 offen")
    a.i("s_mov_b64 exec, 1")
    g.store_var("buffer_store_dword v8, v5, s[32:35], s44 offen")
    a.i("s_mov_b64 exec, -1")
    g.stamp(5, tail=5)
    if opt.wstamps:
        a.i("s_waitcnt lgkmcnt(0)")
        a.i(f"s_add_u32 s90, s30, {STAMPOFF}"); a.i("s_addc_u32 s91, s31, 0")
        a.i("s_lshl_b32 s14, s2, 7"); a.i("s_add_u32 s90, s90, s14"); a.i("s_addc_u32 s91, s91, 0")
        a.i("s_lshl_b32 s14, s3, 3"); a.i("s_add_u32 s90, s90, s14"); a.i("s_addc_u32 s91, s91, 0")
        a.i("s_mov_b64 exec, 1")
        a.i("v_mov_b32 v60, s72"); a.i("v_mov_b32 v61, s73")
        a.i("global_store_dwordx2 v5, v[60:61], s[90:91] offset:64")
        a.i("v_mov_b32 v62, s68"); a.i("v_mov_b32 v63, s69")
        a.i("global_store_dwordx2 v5, v[62:63], s[90:91] offset:96")
        a.i("s_mov_b64 exec, -1")
    a.i("s_cmp_lg_u32 s3, 0"); a.i("s_cbranch_scc1 L_end")
    a.i("v_lshrrev_b32 v9, 5, v2"); a.i("v_lshlrev_b32 v9, 19, v9")
    a.i("v_and_b32 v10, 1, v3"); a.i("v_lshl_add_u32 v9, v10, 8, v9"); a.i("v_lshl_add_u32 v9, v4, 4, v9")
    a.i("s_lshl_b32 s43, s5, 12"); a.i("s_lshl_b32 s14, s4, 9"); a.i("s_add_u32 s43, s43, s14"); a.i(f"s_add_u32 s43, s43, {WS_PS}")
    srd(a, 36, 26, 27, 65536)
    a.i("v_and_b32 v10, 1, v3"); a.i("v_lshlrev_b32 v13, 10, v10"); a.i("v_lshl_add_u32 v13, v4, 3, v13")
    a.i("s_lshl_b32 s46, s6, 14"); a.i("s_lshl_b32 s14, s4, 11"); a.i("s_add_u32 s46, s46, s14"); a.i("s_lshl_b32 s14, s59, 7"); a.i("s_add_u32 s46, s46, s14")
    a.i("s_barrier")
    NP = opt.ppoll
    a.i("s_mov_b32 s14, 0x0c0c0400"); a.i("s_mov_b32 s15, 0x04000c0c")
    for k in range(4): a.i(f"s_add_u32 s{48+k}, s43, {k*32*4096}")
    def pissue(z):
        for k in range(4):
            a.i(f"buffer_load_dwordx4 {vr(16+16*z+4*k)}, v9, s[32:35], s{48+k} offen {opt.pld_flags}")
    a.i("s_mov_b32 s45, 0")
    for z in range(NP):
        pissue(z)
        if z < NP - 1 and opt.psleep: a.i(f"s_sleep {opt.psleep}")
    a.label("L_B_pretry")
    for z in range(NP):
        R = 16 + 16*z
        a.i(f"s_waitcnt vmcnt({4*(NP-1)})")
        for k in range(4):
            d = 10 if k == 0 else 11
            a.i(f"v_perm_b32 v{d}, v{R+4*k+1}, v{R+4*k}, s14"); a.i(f"v_perm_b32 v12, v{R+4*k+3}, v{R+4*k+2}, s15")
            if k == 0:
                a.i("v_or_b32 v10, v10, v12"); a.i("v_xor_b32 v10, v10, v8")
            else:
                a.i("v_or_b32 v11, v11, v12"); a.i("v_xor_b32 v11, v11, v8"); a.i("v_or_b32 v10, v10, v11")
        a.i("v_cmp_ne_u32 vcc, 0, v10")
        a.i(f"s_cbranch_vccz L_B_pok{z}")
        pissue(z)
    a.i("s_add_u32 s45, s45, 1")
    a.i(f"s_cmp_le_u32 s45, {opt.spin_limit}")
    a.i("s_cbranch_scc1 L_B_pretry")
    a.i("s_waitcnt vmcnt(0)")
    for z in range(NP):
        R = 16 + 16*z
        a.label(f"L_B_pok{z}")
        for e in range(4):
            a.i(f"v_add_f32 v{80+e}, v{R+e}, v{R+4+e}"); a.i(f"v_add_f32 v{84+e}, v{R+8+e}, v{R+12+e}")
        if z < NP - 1: a.i("s_branch L_B_psum")
    a.label("L_B_psum")
    g.stamp(6, tail=6)
    R = 80
    for e in range(4): a.i(f"v_add_f32 v{R+e}, v{R+e}, v{R+4+e}")
    for e in range(4): a.i(f"v_mov_b32 v{R+4+e}, v{R+e}")
    for e in range(4): a.i(f"v_permlane32_swap_b32 v{R+e}, v{R+4+e}")
    for e in range(4): a.i(f"v_add_f32 v{R+e}, v{R+e}, v{R+4+e}")
    a.i(f"v_cvt_pk_bf16_f32 v{R+8}, v{R}, v{R+1}"); a.i(f"v_cvt_pk_bf16_f32 v{R+9}, v{R+2}, v{R+3}")
    a.i("s_mov_b32 exec_hi, 0")
    a.i(f"buffer_store_dwordx2 {vr(R+8,2)}, v13, s[36:39], s46 offen")
    a.i("s_or_b32 s14, s4, s7"); a.i("s_cmp_lg_u32 s14, 0"); a.i("s_cbranch_scc1 L_B_fin")
    a.i("s_mov_b64 exec, 1")
    a.i("s_lshl_b32 s14, s6, 7")
    a.i(f"buffer_store_dword v8, v5, s[32:35], s14 offen sc1")
    a.label("L_B_fin")
    if opt.dbgtime:
        a.i(f"s_cmp_lg_u32 s5, {opt.dbgtime - 1}"); a.i("s_cbranch_scc1 L_B_nodbg")
        a.i("s_waitcnt vmcnt(0)")
        a.i("s_memrealtime s[96:97]"); a.i("s_waitcnt lgkmcnt(0)")
        a.i("s_mov_b64 exec, 1")
        a.i("s_lshl_b32 s14, s4, 2"); a.i("v_mov_b32 v40, s14"); a.i("v_mov_b32 v41, s94"); a.i("v_mov_b32 v42, s96")
        a.i("global_store_dword v40, v41, s[28:29]"); a.i("global_store_dword v40, v42, s[28:29] offset:32")
        a.label("L_B_nodbg")
    a.i("s_mov_b64 exec, -1")
    if opt.stamps:
        a.i("s_waitcnt vmcnt(0)")
        a.i("s_memrealtime s[78:79]")
        if not opt.wstamps: emit_stamps(g, 8, 8, first=1)
    a.label("L_end"); a.i("s_endpgm")

    out = Asm()
    out(HEADER + f"; @launch grid=(256,1,1) block=(512,1,1) lds={L_END}")
    out('.amdgcn_target "amdgcn-amd-amdhsa--gfx950"\n.text')
    lines, n = hazard.fix(a.lines)
    out.lines += lines
    out('.section .rodata,"a"')
    out(kernel_desc(NAME, 256))
    return out.text(), n

def emit_stamps(g, slot0, n, first=0):
    a = g.a
    a.i("s_waitcnt lgkmcnt(0)")
    a.i(f"s_add_u32 s90, s30, {STAMPOFF}"); a.i("s_addc_u32 s91, s31, 0")
    a.i("s_lshl_b32 s14, s2, 7"); a.i("s_add_u32 s90, s90, s14"); a.i("s_addc_u32 s91, s91, 0")
    a.i("s_mov_b64 exec, 1")
    for k in range(first, n):
        a.i(f"v_mov_b32 v20, s{64+2*k}"); a.i(f"v_mov_b32 v21, s{65+2*k}")
        a.i(f"global_store_dwordx2 v5, v[20:21], s[90:91] offset:{(slot0+k-first)*8}")
        a.i("s_nop 1")
    a.i("s_mov_b64 exec, -1")

if __name__ == "__main__":
    o = Opt()
    out = sys.argv[1]
    for kv in sys.argv[2:]:
        k, v = kv.split("=")
        cur = getattr(o, k)
        if isinstance(cur, bool): v = v in ("1", "True", "true")
        elif isinstance(cur, int): v = int(v)
        else: v = v.replace("+", " ")
        setattr(o, k, v)
    t, n = gen(o)
    open(out, "w").write(t)
    print(out, "nops inserted:", n, "lines:", t.count("\n"))
```

```python
import sys, struct
from asmlib import *
import hazard

NAME = "standalone__sliding_block_cached__sampling_kernel"
def f2u(x): return struct.unpack('<I', struct.pack('<f', x))[0]
SCALE = 0.08838834764831845 * 1.4426950408889634

WS_XID = 0x8000
WS_OF = 0x9000
WS_QS = 0x10000
WS_ST = 0x200000
WS_OS = 0x300000
WS_PS = 0x500000
WS_SIZE = 0x800000
STAMPOFF = 256 << 20
TAGINC = 0x9E3779B9

L_K = 0
L_OR = 0
L_CR = 32768
L_QR = 131072
L_P = 131072
L_CNT = 147456
L_F = L_CNT + 64
L_Q = L_CNT + 512
L_END = L_Q + 4096
CQ, CKS, CV, CO, CC, CP, CF, CQ2, CKD, FASTW = 0, 4, 8, 12, 16, 20, 36, 40, 44, 60
CWP = CO
CX = CKS

class Opt:
    stamps = False
    kv_flags = "nt"
    w_flags = "nt"
    x_flags = ""
    ld_flags = "sc1"
    spin_limit = 30000
    a_prio = 2
    b_prio_pv = 3
    rot = 1
    thr = 7
    wo_mode = 1
    wq_ahead = 2
    force_slow = 0
    bench = 0
    a_stop = 0
    oflag = 1
    halfpoll = 0
    ptouch_late = 1
    cv_at = 32
    xdma = 0
    dbgtime = 0
    dyn = 1
    late_th = 0
    late_at = 3
    emu = 0
    bsync = 1
    t2 = 0
    perm = 0
    pst_flags = "sc1"
    pld_flags = "sc1"
    cf_late = 1
    wstamps = 0
    thr_end = 0
    end_from = 16
    wo_flags = "nt"
    srot = 1
    wq_ahead3 = 0
    k_flags = "same"
    v_flags = "same"
    cwpstamp = 0
    bpf = 0
    bpf_flags = ""
    wopf = 0
    ppoll = 3
    psleep = 6
    ptouch_flags = ""
    touch = 1
    regather = 0
    o_plain = 1
    dbgcnt = 0
    ntx = 4
    thr3 = 0
    pf = 0
    pf_flags = ""
    tstamps = 0
    wo_early = 2
    b_exit = 0
    wq_rowrot = 0
    wq_colxor = 0
    bstamps = 0
    stagger = 0
    thr_k = 0
    stag_bit = 0
    xid_tries = 4

def vr(b, n=4): return f"v[{b}:{b+n-1}]" if n > 1 else f"v{b}"

def srd(a, d, lo, hi, size, add=None):
    if add is None:
        a.i(f"s_mov_b32 s{d}, s{lo}"); a.i(f"s_mov_b32 s{d+1}, s{hi}")
    else:
        a.i(f"s_add_u32 s{d}, s{lo}, {add}"); a.i(f"s_addc_u32 s{d+1}, s{hi}, 0")
    a.i(f"s_mov_b32 s{d+2}, {size}"); a.i(f"s_mov_b32 s{d+3}, 0x20000")

class G:
    def __init__(self, opt):
        self.a = Asm(); self.o = opt; self.nl = 0
    def lab(self, p):
        self.nl += 1; return f"L{p}{self.nl}"
    def stamp(self, k, tail=None):
        if self.o.tstamps:
            if tail is None and k != 0: return
            if tail is not None: k = tail
            if k < 0: return
        elif tail is not None and k < 0: return
        if self.o.stamps:
            self.a.i(f"s_memrealtime s[{64+2*k}:{65+2*k}]")
    def signal(self, cnt, vaddr=1):
        a = self.a
        a.i("s_mov_b64 exec, 1")
        a.i(f"ds_add_u32 v{vaddr}, v6 offset:{cnt}")
        a.i("s_mov_b64 exec, -1")
    def wait_cnt(self, cnt, n, vt=10, vaddr=1, sleep=0):
        a = self.a
        L = self.lab("w")
        a.i("s_mov_b32 s15, 0")
        a.label(L)
        if sleep: a.i(f"s_sleep {sleep}")
        a.i(f"ds_read_b32 v{vt}, v{vaddr} offset:{cnt}")
        a.i("s_add_u32 s15, s15, 1")
        a.i("s_waitcnt lgkmcnt(0)")
        a.i(f"v_readfirstlane_b32 s14, v{vt}")
        a.i(f"s_cmp_gt_u32 s15, {self.o.spin_limit*16}")
        a.i(f"s_cbranch_scc1 {L}_o")
        a.i(f"s_cmp_ge_u32 s14, {n}")
        a.i(f"s_cbranch_scc0 {L}")
        a.label(f"{L}_o")
    def retry_tail(self, Lretry, Lok):
        a = self.a
        a.i("s_add_u32 s45, s45, 1")
        a.i(f"s_cmp_gt_u32 s45, {self.o.spin_limit}")
        a.i(f"s_cbranch_scc1 {Lok}")
        a.i(f"s_cbranch_vccnz {Lretry}")
        a.label(Lok)
    def store_var(self, ins):
        a = self.a; L = self.lab("s")
        a.i("s_cmp_eq_u32 s58, 1"); a.i(f"s_cbranch_scc1 {L}_f")
        a.i(ins + " sc1"); a.i(f"s_branch {L}_d")
        a.label(f"{L}_f"); a.i(ins); a.label(f"{L}_d")

def transpose4(a, dst, L):
    for e in range(4):
        w = e >> 1; sel = 's11' if (e & 1) == 0 else 's12'
        for p in range(4):
            a.i(f"v_perm_b32 v{dst+4*e+p}, v{L(2*p+1,w)}, v{L(2*p,w)}, {sel}")

def kvbase(a):
    a.i("s_lshr_b32 s14, s5, 1"); a.i("s_lshl_b32 s14, s14, 3"); a.i("s_add_u32 s14, s14, s4"); a.i("s_lshl_b32 s14, s14, 12")
    a.i("s_lshl_b32 s15, s9, 9"); a.i("s_add_u32 s14, s14, s15"); a.i("s_lshl_b32 s15, s3, 7"); a.i("s_add_u32 s14, s14, s15")
    a.i("s_add_u32 s14, s14, 3072"); a.i("s_lshl_b32 s14, s14, 8")

def astop(g, n):
    opt = g.o; a = g.a
    if opt.a_stop == n:
        for k in range(n + 1, 8): g.stamp(k)
        if opt.stamps:
            a.i("s_cmp_lg_u32 s3, 0"); a.i("s_cbranch_scc1 L_end")
            emit_stamps(g, 0, 8)
        a.i("s_branch L_end")

def gen(opt):
    g = G(opt); a = g.a
    kernel_begin(a, NAME)
    a.i("s_cmp_ge_u32 s2, 256"); a.i("s_cbranch_scc1 L_end")
    if opt.perm == 1:
        a.i("s_lshl_b32 s3, s2, 3"); a.i("s_lshr_b32 s4, s2, 5"); a.i("s_or_b32 s2, s3, s4"); a.i("s_and_b32 s2, s2, 255")
    if opt.perm == 2:
        a.i("s_xor_b32 s2, s2, 8"); a.i("s_lshr_b32 s3, s2, 6"); a.i("s_xor_b32 s2, s2, s3")
    g.stamp(0)
    a.i("s_load_dwordx16 s[16:31], s[0:1], 0")
    a.i("v_lshrrev_b32 v1, 6, v0"); a.i("v_and_b32 v2, 63, v0")
    a.i("v_readfirstlane_b32 s3, v1")
    a.i("s_and_b32 s4, s2, 7")
    a.i("s_lshr_b32 s5, s2, 3")
    a.i("s_lshr_b32 s6, s5, 3")
    a.i("s_and_b32 s7, s5, 7")
    a.i(f"s_xor_b32 s59, s7, {opt.ntx}")
    a.i("s_bfe_u32 s8, s5, 0x20001")
    a.i("s_and_b32 s9, s5, 1")
    a.i("v_lshrrev_b32 v3, 4, v2"); a.i("v_and_b32 v4, 15, v2")
    a.i("v_mov_b32 v5, 0"); a.i("v_mov_b32 v6, 1")
    a.i(f"v_mov_b32 v1, {L_CNT}")
    a.i("s_mov_b32 s11, 0x05040100"); a.i("s_mov_b32 s12, 0x07060302")
    a.i("s_lshl_b32 s40, s4, 5"); a.i("s_add_u32 s41, s40, s5")
    a.i("s_and_b32 s42, s41, 0xfffffff8")
    a.i("s_cmp_ge_u32 s3, 4"); a.i("s_cbranch_scc1 L_B")

    if opt.a_prio: a.i(f"s_setprio {opt.a_prio}")
    a.i("s_cmp_lg_u32 s3, 0"); a.i("s_cbranch_scc1 L_P1")
    a.i("v_lshl_add_u32 v7, v2, 2, v1"); a.i("ds_write_b32 v7, v5 offset:0")
    a.label("L_P1")
    XA, WB, T, ACC = 16, 32, 96, 128
    a.i("v_lshlrev_b32 v8, 10, v4"); a.i("v_lshl_add_u32 v8, v3, 4, v8")
    a.i("v_lshlrev_b32 v9, 16, v3"); a.i("v_lshl_add_u32 v9, v4, 3, v9")
    a.i("s_lshl_b32 s14, s6, 14"); a.i("s_lshl_b32 s15, s3, 8"); a.i("s_add_u32 s45, s14, s15")
    a.i("s_lshl_b32 s44, s3, 20"); a.i("s_lshl_b32 s14, s4, 10"); a.i("s_add_u32 s44, s44, s14"); a.i(f"s_xor_b32 s14, s7, {opt.wq_colxor}"); a.i("s_lshl_b32 s14, s14, 7"); a.i("s_add_u32 s44, s44, s14")
    a.i("s_lshl_b32 s47, s3, 15")
    a.i("s_lshl_b32 s15, s6, 7")
    a.i("s_waitcnt lgkmcnt(0)")
    a.i("s_load_dword s10, s[30:31], s15")
    srd(a, 48, 22, 23, 4 << 20)
    srd(a, 52, 16, 17, 65536)
    srd(a, 32, 30, 31, WS_SIZE)
    def xidpub():
        a.i("s_getreg_b32 s57, hwreg(HW_REG_XCC_ID, 0, 4)")
        a.i("s_waitcnt lgkmcnt(0)")
        a.i(f"s_add_u32 s10, s10, {TAGINC:#x}")
        a.i("s_and_b32 s14, s10, 0xfffffff0"); a.i("s_or_b32 s14, s14, s57"); a.i("v_mov_b32 v144, s14")
        a.i("s_lshl_b32 s14, s41, 2"); a.i(f"s_add_u32 s14, s14, {WS_XID}")
        a.i("s_mov_b64 exec, 1")
        a.i("buffer_store_dword v144, v5, s[32:35], s14 offen")
        a.i("s_mov_b64 exec, -1")
    if opt.stagger: xidpub()
    if opt.stagger:
        a.i(f"s_bitcmp1_b32 s5, {opt.stag_bit}"); a.i("s_cbranch_scc0 L_A_nostag")
        g.wait_cnt(CKS, 4)
        a.label("L_A_nostag")
    if opt.pf:
        a.i("s_lshl_b32 s14, s6, 7"); a.i("s_lshl_b32 s15, s3, 5"); a.i("s_add_u32 s14, s14, s15"); a.i("s_lshl_b32 s14, s14, 13")
        a.i("s_lshl_b32 s15, s4, 10"); a.i("s_add_u32 s14, s14, s15"); a.i("s_lshl_b32 s15, s7, 7"); a.i("s_add_u32 s14, s14, s15")
        a.i("v_lshlrev_b32 v10, 13, v2")
        a.i("s_mov_b32 exec_hi, 0")
        a.i(f"buffer_load_dword v146, v10, s[48:51], s14 offen {opt.pf_flags}")
        a.i("s_lshl_b32 s14, s6, 14"); a.i("s_lshl_b32 s15, s7, 11"); a.i("s_add_u32 s14, s14, s15"); a.i("s_lshl_b32 s15, s3, 9"); a.i("s_add_u32 s14, s14, s15")
        a.i("v_lshlrev_b32 v10, 7, v2")
        a.i("s_mov_b64 exec, 0xf")
        a.i(f"buffer_load_dword v147, v10, s[52:55], s14 offen")
        a.i("s_mov_b64 exec, -1")
        if not opt.stagger: xidpub()
        a.i("s_waitcnt vmcnt(0)")
    if opt.bpf:
        g.wait_cnt(CWP, 4)
        if opt.cwpstamp: g.stamp(1)
    if opt.emu == 2:
        a.i("s_barrier")
        for k in range(1, 8): g.stamp(k)
        a.i("s_cmp_lg_u32 s3, 0"); a.i("s_cbranch_scc1 L_end")
        emit_stamps(g, 0, 8)
        a.i("s_branch L_end")
    if opt.emu == 1:
        a.i("v_lshrrev_b32 v10, 3, v2"); a.i("v_and_b32 v11, 7, v2"); a.i("v_lshlrev_b32 v10, 13, v10"); a.i("v_lshl_add_u32 v10, v11, 4, v10")
        a.i("s_lshl_b32 s14, s6, 7"); a.i("s_lshl_b32 s15, s3, 5"); a.i("s_add_u32 s14, s14, s15"); a.i("s_lshl_b32 s14, s14, 13")
        a.i("s_lshl_b32 s15, s4, 10"); a.i("s_add_u32 s14, s14, s15"); a.i("s_lshl_b32 s15, s7, 7"); a.i("s_add_u32 s14, s14, s15")
        for k in range(4):
            a.i(f"buffer_load_dwordx4 {vr(32+4*k)}, v10, s[48:51], s14 offen {opt.w_flags}"); a.i("s_add_u32 s14, s14, 65536")
        a.i("v_lshlrev_b32 v10, 10, v3"); a.i("v_lshl_add_u32 v10, v4, 4, v10")
        a.i("s_lshl_b32 s14, s3, 14"); a.i("s_lshl_b32 s15, s6, 8"); a.i("s_add_u32 s14, s14, s15")
        for k in range(4):
            a.i(f"buffer_load_dwordx4 {vr(16+4*k)}, v10, s[52:55], s14 offen"); a.i("s_add_u32 s14, s14, 4096")
        a.i("s_barrier")
        a.i("s_waitcnt lgkmcnt(0)")
        a.i(f"s_add_u32 s10, s10, {TAGINC:#x}"); a.i("v_mov_b32 v8, s10"); a.i("s_mov_b32 s58, 1")
        a.i("s_waitcnt vmcnt(0)")
        g.stamp(1)
        a.i("v_lshlrev_b32 v7, 4, v2")
        a.i("s_lshl_b32 s14, s41, 14"); a.i("s_lshl_b32 s15, s3, 12"); a.i("s_add_u32 s14, s14, s15"); a.i("s_add_u32 s14, s14, 0x800000")
        a.i("s_mov_b32 s34, 0x2000000")
        for k in range(4):
            a.i(f"buffer_store_dwordx4 {vr(32+4*k)}, v7, s[32:35], s14 offen offset:{k*1024}")
        for k in range(4):
            a.i(f"s_and_b32 s14, s41, 0xffffffe7"); a.i(f"s_or_b32 s14, s14, {k*8}"); a.i("s_lshl_b32 s14, s14, 14"); a.i("s_lshl_b32 s15, s6, 12"); a.i("s_add_u32 s14, s14, s15"); a.i("s_lshl_b32 s15, s3, 10"); a.i("s_add_u32 s14, s14, s15"); a.i("s_add_u32 s14, s14, 0x800000")
            a.i(f"buffer_load_dwordx4 {vr(48+4*k)}, v7, s[32:35], s14 offen sc1")
        a.i("s_waitcnt vmcnt(0)")
        a.i("s_lshl_b32 s14, s41, 12"); a.i("s_lshl_b32 s15, s3, 10"); a.i("s_add_u32 s14, s14, s15"); a.i(f"s_add_u32 s14, s14, {WS_QS}")
        a.i(f"buffer_store_dwordx4 {vr(48)}, v7, s[32:35], s14 offen")
        g.stamp(2)
        for k in range(3, 8): g.stamp(k)
        a.i("s_cmp_lg_u32 s3, 0"); a.i("s_cbranch_scc1 L_end")
        emit_stamps(g, 0, 8)
        a.i("s_branch L_end")
    def qproj(AHEAD, SFX):
        seq = []
        def wqstep(s_):
            if opt.srot:
                a.i(f"s_add_u32 s14, s6, {s_}"); a.i("s_and_b32 s14, s14, 3"); a.i("s_lshl_b32 s14, s14, 18"); a.i("s_add_u32 s15, s44, s14")
                for i in range(8):
                    a.i(f"buffer_load_dwordx2 {vr(WB+16*s_+2*i,2)}, v9, s[48:51], s15 offen {opt.w_flags}")
                    if i < 7: a.i(f"s_add_u32 s15, s15, 8192")
                    seq.append(('w', s_))
                return
            for i in range(8):
                a.i(f"buffer_load_dwordx2 {vr(WB+16*s_+2*i,2)}, v9, s[48:51], s44 offen {opt.w_flags}")
                a.i(f"s_add_u32 s44, s44, 8192")
                seq.append(('w', s_))
            if s_ < 3: a.i(f"s_add_u32 s44, s44, {24*8192}")
        wqstep(0)
        if opt.xdma:
            a.i("s_lshl_b32 s14, s3, 12"); a.i(f"s_add_u32 s14, s14, {L_QR}"); a.i("s_mov_b32 m0, s14")
            for n in range(4):
                a.i(f"v_add_u32 v10, {4*n}, v3"); a.i("v_xor_b32 v10, v10, v4"); a.i("v_lshlrev_b32 v10, 4, v10"); a.i(f"v_lshl_add_u32 v10, v3, 10, v10")
                a.i(f"s_add_u32 s15, s45, {n*4096 - n*1024}")
                a.i(f"buffer_load_dwordx4 v10, s[52:55], s15 offen offset:{n*1024} {opt.x_flags} lds")
                seq.append(('x', 0))
        else:
            for s2 in range(4):
                a.i(f"buffer_load_dwordx4 {vr(XA+4*s2)}, v8, s[52:55], s45 offen offset:{s2*64} {opt.x_flags}")
                seq.append(('x', 0))
        a.i("s_barrier")
        a.i("s_lshl_b32 s46, s42, 2"); a.i(f"s_add_u32 s46, s46, {WS_XID}")
        a.i("v_lshlrev_b32 v145, 2, v2")
        def xidload():
            a.i("s_mov_b64 exec, 0xff")
            a.i("buffer_load_dword v146, v145, s[32:35], s46 offen sc1")
            a.i("s_mov_b64 exec, -1")
        issued = 1
        while issued < min(4, AHEAD):
            wqstep(issued); issued += 1
        xidpub(); seq.append(('s', 0))
        a.i("v_mov_b32 v8, s10")
        for s_ in range(4):
            last = max([i for i, e in enumerate(seq) if e == ('w', s_) or (s_ == 0 and e[0] == 'x') or (s_ == 2 and e[0] == 'i')])
            a.i(f"s_waitcnt vmcnt({len(seq)-1-last})")
            if s_ == 0 and opt.xdma:
                for st in range(4):
                    a.i(f"v_add_u32 v10, {4*st}, v3"); a.i("v_xor_b32 v10, v10, v4"); a.i("v_lshlrev_b32 v10, 4, v10"); a.i("v_lshl_add_u32 v10, v4, 8, v10")
                    a.i("s_lshl_b32 s14, s3, 12"); a.i(f"s_add_u32 s14, s14, {L_QR}"); a.i("v_add_u32 v10, s14, v10")
                    a.i(f"ds_read_b128 {vr(XA+4*st)}, v10")
            if s_ == 0:
                xidload(); seq.append(('i', 0))
                if opt.touch & 2:
                    a.i("v_lshlrev_b32 v7, 4, v2")
                    a.i("s_lshl_b32 s14, s41, 12"); a.i("s_lshl_b32 s15, s3, 10"); a.i("s_add_u32 s14, s14, s15"); a.i(f"s_add_u32 s14, s14, {WS_QS}")
                    a.i("buffer_load_dwordx4 v[240:243], v7, s[32:35], s14 offen sc1"); seq.append(('t', 0))
                    a.i("s_lshl_b32 s14, s41, 10"); a.i("s_lshl_b32 s15, s3, 8"); a.i("s_add_u32 s14, s14, s15"); a.i(f"s_add_u32 s14, s14, {WS_ST}")
                    a.i("s_mov_b64 exec, 0xffff")
                    a.i("buffer_load_dwordx4 v[244:247], v7, s[32:35], s14 offen sc1"); seq.append(('t', 0))
                    a.i("s_mov_b64 exec, -1")
            if issued < 4:
                wqstep(issued); issued += 1
            if s_ == 0 and not opt.cwpstamp: g.stamp(1)
            if s_ == 2:
                a.i("s_mov_b32 s45, 0"); a.i("s_mov_b32 s58, 0")
                a.i(f"s_branch L_A_xchk{SFX}")
                a.label(f"L_A_xretry{SFX}")
                xidload()
                a.i("s_waitcnt vmcnt(0)")
                a.label(f"L_A_xchk{SFX}")
                a.i("s_mov_b64 exec, 0xff")
                a.i("v_xor_b32 v147, v146, v8"); a.i("v_and_b32 v147, 0xfffffff0, v147"); a.i("v_cmp_ne_u32 vcc, 0, v147")
                a.i("s_mov_b64 exec, -1")
                a.i(f"s_cbranch_vccz L_A_xok{SFX}")
                a.i("s_add_u32 s45, s45, 1")
                a.i(f"s_cmp_lt_u32 s45, {opt.xid_tries}")
                a.i(f"s_cbranch_scc1 L_A_xretry{SFX}")
                a.i(f"s_branch L_A_xdone{SFX}")
                a.label(f"L_A_xok{SFX}")
                a.i("s_mov_b64 exec, 0xff")
                a.i("v_and_b32 v147, 15, v146"); a.i("v_cmp_ne_u32 vcc, s57, v147")
                a.i("s_mov_b64 exec, -1")
                a.i("s_cmp_eq_u64 vcc, 0"); a.i("s_cselect_b32 s58, 1, 0")
                a.label(f"L_A_xdone{SFX}")
                if opt.force_slow: a.i("s_mov_b32 s58, 0")
                for r in range(4): a.i(f"v_mov_b32 v{148+r}, -1")
                a.i("v_lshlrev_b32 v7, 4, v2")
                a.i("s_lshl_b32 s43, s41, 12"); a.i("s_lshl_b32 s14, s3, 10"); a.i("s_add_u32 s43, s43, s14"); a.i(f"s_add_u32 s46, s43, {WS_OS}")
                g.store_var("buffer_store_dwordx4 v[148:151], v7, s[32:35], s46 offen"); seq.append(('p', 0))
            tb = T + (s_ & 1) * 16
            transpose4(a, tb, lambda i, w: WB + 16*s_ + 2*i + w)
            if s_ == 0 and opt.xdma:
                a.i("s_waitcnt lgkmcnt(0)")
                g.signal(CX)
            for e in range(4):
                c = "0" if s_ == 0 else vr(ACC+4*e)
                a.i(f"v_mfma_f32_16x16x32_bf16 {vr(ACC+4*e)}, {vr(XA+4*s_)}, {vr(tb+4*e)}, {c}")
    if opt.wq_ahead3 and opt.wq_ahead3 != opt.wq_ahead:
        a.i("s_cmp_eq_u32 s7, 3"); a.i("s_cbranch_scc1 L_A_q3")
        qproj(opt.wq_ahead, "a")
        a.i("s_branch L_A_qdone")
        a.label("L_A_q3")
        qproj(opt.wq_ahead3, "b")
        a.label("L_A_qdone")
    else:
        qproj(opt.wq_ahead, "a")
    if opt.xdma: g.wait_cnt(CX, 4)
    a.i("v_lshlrev_b32 v9, 2, v2"); a.i("s_lshl_b32 s14, s3, 10"); a.i(f"s_add_u32 s14, s14, {L_QR}"); a.i("v_add_u32 v7, s14, v9")
    for r in range(4):
        for e in range(0, 4, 2):
            a.i(f"ds_write2st64_b32 v7, v{ACC+4*e+r}, v{ACC+4*(e+1)+r} offset0:{r*16+e} offset1:{r*16+e+1}")
    a.i("v_mov_b32 v10, s58"); a.i(f"ds_write_b32 v1, v10 offset:{FASTW}")
    a.i("s_waitcnt lgkmcnt(0)")
    g.signal(CQ)
    g.wait_cnt(CQ, 4)
    a.i("s_lshl_b32 s14, s3, 12"); a.i(f"s_add_u32 s14, s14, {L_QR}"); a.i("v_add_u32 v7, s14, v9")
    R = 152
    for src in range(4):
        for e in range(0, 4, 2):
            a.i(f"ds_read2st64_b32 {vr(R+4*src+e,2)}, v7 offset0:{src*4+e} offset1:{src*4+e+1}")
    a.i("v_lshlrev_b32 v9, 10, v3"); a.i("v_and_b32 v10, 1, v4"); a.i("v_lshl_add_u32 v9, v10, 9, v9")
    a.i("v_lshrrev_b32 v10, 3, v4"); a.i("v_lshl_add_u32 v9, v10, 8, v9"); a.i("v_bfe_u32 v10, v4, 1, 2"); a.i("v_lshl_add_u32 v9, v10, 4, v9")
    a.i("s_lshl_b32 s43, s41, 12"); a.i("s_lshl_b32 s14, s3, 6"); a.i("s_add_u32 s43, s43, s14"); a.i(f"s_add_u32 s43, s43, {WS_QS}")
    a.i("s_waitcnt lgkmcnt(0)")
    for e in range(4):
        a.i(f"v_add_f32 v{R+e}, v{R+e}, v{R+4+e}"); a.i(f"v_add_f32 v{R+8+e}, v{R+8+e}, v{R+12+e}")
    for e in range(4): a.i(f"v_add_f32 v{R+e}, v{R+e}, v{R+8+e}")
    a.i(f"v_cvt_pk_bf16_f32 v{R+4}, v{R}, v{R+1}"); a.i(f"v_cvt_pk_bf16_f32 v{R+5}, v{R+2}, v{R+3}")
    a.i(f"v_perm_b32 v{R+8}, v{R+4}, v8, s11"); a.i(f"v_perm_b32 v{R+9}, v{R+4}, v8, s12")
    a.i(f"v_perm_b32 v{R+10}, v{R+5}, v8, s11"); a.i(f"v_perm_b32 v{R+11}, v{R+5}, v8, s12")
    a.i("s_waitcnt vmcnt(0)")
    if opt.touch & 1:
        a.i("v_lshlrev_b32 v7, 4, v2")
        a.i("buffer_load_dwordx4 v[248:251], v7, s[32:35], s46 offen sc1")
    g.store_var(f"buffer_store_dwordx4 {vr(R+8)}, v9, s[32:35], s43 offen")
    g.stamp(2)
    astop(g, 2)
    QR = 176
    a.i("v_lshrrev_b32 v9, 2, v4"); a.i("v_lshlrev_b32 v9, 13, v9"); a.i("v_and_b32 v10, 3, v4"); a.i("v_lshl_add_u32 v9, v10, 6, v9"); a.i("v_lshl_add_u32 v9, v3, 4, v9")
    a.i("s_lshl_b32 s43, s42, 12"); a.i("s_lshl_b32 s14, s8, 10"); a.i("s_add_u32 s43, s43, s14"); a.i(f"s_add_u32 s43, s43, {WS_QS}")
    a.i("s_lshr_b32 s14, s3, 1"); a.i("s_lshl_b32 s14, s14, 12"); a.i("s_add_u32 s43, s43, s14")
    a.i("s_and_b32 s14, s3, 1"); a.i("s_lshl_b32 s14, s14, 8"); a.i("s_add_u32 s43, s43, s14")
    a.i("s_mov_b32 s45, 0")
    a.label("L_A_qretry")
    for u in range(2):
        a.i(f"buffer_load_dwordx4 {vr(QR+4*u)}, v9, s[32:35], s43 offen offset:{u*512} {opt.ld_flags}")
    a.i("v_mov_b32 v10, 0")
    a.i("s_waitcnt vmcnt(0)")
    for k in range(4):
        a.i(f"v_perm_b32 v11, v{QR+2*k+1}, v{QR+2*k}, s11")
        a.i(f"v_xor_b32 v11, v11, v8")
        a.i(f"v_or_b32 v10, v10, v11")
    a.i("v_cmp_ne_u32 vcc, 0, v10")
    g.retry_tail("L_A_qretry", "L_A_qok")
    for k in range(4):
        a.i(f"v_perm_b32 v{QR+8+k}, v{QR+2*k+1}, v{QR+2*k}, s12")
    a.i("v_lshlrev_b32 v9, 4, v2"); a.i("s_lshl_b32 s14, s3, 10"); a.i(f"s_add_u32 s14, s14, {L_Q}"); a.i("v_add_u32 v10, s14, v9")
    a.i(f"ds_write_b128 v10, {vr(QR+8)}")
    for st in range(4):
        a.i(f"v_add_u32 v10, {4*st}, v3"); a.i("v_xor_b32 v10, v10, v4"); a.i("v_lshlrev_b32 v10, 4, v10"); a.i("v_lshl_add_u32 v10, v4, 8, v10"); a.i(f"v_add_u32 v{12+st}, s47, v10")
    a.i("s_waitcnt lgkmcnt(0)")
    g.signal(CQ2)
    g.stamp(3)
    astop(g, 3)
    WR, WF = 32, 96
    srd(a, 48, 24, 25, 4 << 20)
    a.i("v_lshlrev_b32 v16, 15, v3"); a.i("v_lshl_add_u32 v16, v4, 3, v16")
    a.i("s_lshl_b32 s46, s4, 2"); a.i("s_add_u32 s46, s46, s3"); a.i("s_lshl_b32 s46, s46, 17"); a.i("s_lshl_b32 s15, s59, 7"); a.i("s_add_u32 s46, s46, s15")
    def wostep(st):
        if opt.srot:
            a.i(f"s_add_u32 s14, s6, {st}"); a.i("s_and_b32 s14, s14, 3"); a.i("s_lshl_b32 s14, s14, 13"); a.i("s_add_u32 s15, s46, s14")
            for i in range(8):
                if i == 4: a.i("s_add_u32 s15, s15, 4096")
                a.i(f"buffer_load_dwordx2 {vr(WR+16*st+2*i,2)}, v16, s[48:51], s15 offen offset:{(i&3)*1024} {opt.wo_flags}")
            return
        for i in range(8):
            if i % 4 == 0 and (st or i): a.i("s_add_u32 s46, s46, 4096")
            a.i(f"buffer_load_dwordx2 {vr(WR+16*st+2*i,2)}, v16, s[48:51], s46 offen offset:{(i&3)*1024} {opt.wo_flags}")
    KB = [96, 128]; QF = 160; SA = 192; PF = 224; ST = 240
    def kread(p):
        for tt in range(2):
            for st in range(4):
                a.i(f"ds_read_b128 {vr(KB[p&1]+16*tt+4*st)}, v{12+st} offset:{(2*p+tt)*4096}")
    g.wait_cnt(CQ2, 4)
    a.i(f"v_add_u32 v10, {L_Q}, v9")
    for st in range(4): a.i(f"ds_read_b128 {vr(QF+4*st)}, v10 offset:{st*1024}")
    a.i("s_lshl_b32 s14, s3, 2"); a.i("v_add_u32 v7, s14, v1")
    g.wait_cnt(CKD, 1, vaddr=7)
    kread(0); kread(1)
    for p in range(4):
        a.i(f"s_waitcnt lgkmcnt({8 if p < 3 else 0})")
        for tt in range(2):
            t = 2*p + tt
            for st in range(4):
                c = "0" if st == 0 else vr(SA+4*t)
                a.i(f"v_mfma_f32_16x16x32_bf16 {vr(SA+4*t)}, {vr(KB[p&1]+16*tt+4*st)}, {vr(QF+4*st)}, {c}")
        if p + 2 < 4: kread(p + 2)
    a.i(f"s_mov_b32 s13, {f2u(SCALE):#x}")
    a.i(f"v_max3_f32 v10, v{SA}, v{SA+1}, v{SA+2}")
    for r in range(3, 31, 2): a.i(f"v_max3_f32 v10, v10, v{SA+r}, v{SA+r+1}")
    a.i(f"v_max_f32 v10, v10, v{SA+31}")
    a.i("v_mov_b32 v11, v10"); a.i("v_permlane16_swap_b32 v10, v11"); a.i("v_max_f32 v10, v10, v11")
    a.i("v_mov_b32 v11, v10"); a.i("v_permlane32_swap_b32 v10, v11"); a.i("v_max_f32 v10, v10, v11")
    a.i("v_mul_f32 v12, s13, v10")
    for r in range(32): a.i(f"v_fma_f32 v{SA+r}, v{SA+r}, s13, -v12")
    for r in range(32): a.i(f"v_exp_f32 v{SA+r}, v{SA+r}")
    for k in range(16): a.i(f"v_cvt_pk_bf16_f32 v{PF+k}, v{SA+2*k}, v{SA+2*k+1}")
    a.i("v_lshlrev_b32 v9, 4, v2"); a.i("s_lshl_b32 s14, s3, 12"); a.i(f"s_add_u32 s14, s14, {L_P}"); a.i("v_add_u32 v9, s14, v9")
    for u in range(4): a.i(f"ds_write_b128 v9, {vr(PF+4*u)} offset:{u*1024}")
    a.i(f"v_add_f32 v10, v{SA}, v{SA+1}"); a.i(f"v_add_f32 v11, v{SA+2}, v{SA+3}")
    for r in range(4, 32, 2):
        a.i(f"v_add_f32 v10, v10, v{SA+r}"); a.i(f"v_add_f32 v11, v11, v{SA+r+1}")
    a.i("s_waitcnt lgkmcnt(0)")
    g.signal(CP, vaddr=7)
    a.i("v_add_f32 v10, v10, v11")
    a.i("v_mov_b32 v11, v10"); a.i("v_permlane16_swap_b32 v10, v11"); a.i("v_add_f32 v10, v10, v11")
    a.i("v_mov_b32 v11, v10"); a.i("v_permlane32_swap_b32 v10, v11"); a.i("v_add_f32 v13, v10, v11")
    a.i("v_mov_b32 v14, v8"); a.i("v_mov_b32 v15, v8")
    a.i("s_lshl_b32 s43, s41, 10"); a.i("s_lshl_b32 s14, s3, 8"); a.i("s_add_u32 s43, s43, s14"); a.i(f"s_add_u32 s43, s43, {WS_ST}")
    a.i("v_lshlrev_b32 v9, 4, v4")
    a.i("s_mov_b64 exec, 0xffff")
    g.store_var("buffer_store_dwordx4 v[12:15], v9, s[32:35], s43 offen")
    a.i("s_mov_b64 exec, -1")
    g.stamp(4)
    if opt.touch & 4:
        a.i("v_lshlrev_b32 v10, 4, v2")
        a.i("s_lshl_b32 s14, s41, 12"); a.i("s_lshl_b32 s15, s3, 10"); a.i("s_add_u32 s14, s14, s15"); a.i(f"s_add_u32 s14, s14, {WS_PS}")
        a.i(f"buffer_load_dwordx4 v[252:255], v10, s[32:35], s14 offen {opt.ptouch_flags}")
    if opt.pf:
        a.i("s_lshl_b32 s14, s4, 9"); a.i("s_lshl_b32 s15, s6, 7"); a.i("s_add_u32 s14, s14, s15"); a.i("s_lshl_b32 s15, s3, 5"); a.i("s_add_u32 s14, s14, s15"); a.i("s_lshl_b32 s14, s14, 10")
        a.i("s_lshl_b32 s15, s7, 7"); a.i("s_add_u32 s14, s14, s15")
        a.i("v_lshlrev_b32 v10, 10, v2")
        a.i("s_mov_b32 exec_hi, 0")
        a.i(f"buffer_load_dword v17, v10, s[48:51], s14 offen {opt.pf_flags}")
        a.i("s_mov_b64 exec, -1")
    a.i("s_and_b32 s43, s41, 0xfffffffe"); a.i("s_lshl_b32 s43, s43, 10"); a.i(f"s_add_u32 s43, s43, {WS_ST}")
    a.i("v_lshl_add_u32 v9, v3, 9, v9")
    a.i("s_mov_b32 s45, 0")
    a.label("L_A_sretry")
    a.i(f"buffer_load_dwordx4 {vr(ST)}, v9, s[32:35], s43 offen {opt.ld_flags}")
    a.i(f"buffer_load_dwordx4 {vr(ST+4)}, v9, s[32:35], s43 offen offset:256 {opt.ld_flags}")
    a.i("s_waitcnt vmcnt(0)")
    a.i(f"v_xor_b32 v10, v{ST+2}, v8"); a.i(f"v_xor_b32 v11, v{ST+3}, v8"); a.i("v_or_b32 v10, v10, v11")
    a.i(f"v_xor_b32 v11, v{ST+6}, v8"); a.i("v_or_b32 v10, v10, v11"); a.i(f"v_xor_b32 v11, v{ST+7}, v8"); a.i("v_or_b32 v10, v10, v11")
    a.i("v_cmp_ne_u32 vcc, 0, v10")
    g.retry_tail("L_A_sretry", "L_A_sok")
    a.i(f"v_max_f32 v10, v{ST}, v{ST+4}")
    a.i("v_mov_b32 v11, v10"); a.i("v_permlane16_swap_b32 v10, v11"); a.i("v_max_f32 v10, v10, v11")
    a.i("v_mov_b32 v11, v10"); a.i("v_permlane32_swap_b32 v10, v11"); a.i("v_max_f32 v10, v10, v11")
    a.i(f"v_sub_f32 v{ST}, v{ST}, v10"); a.i(f"v_sub_f32 v{ST+4}, v{ST+4}, v10")
    a.i(f"v_exp_f32 v{ST}, v{ST}"); a.i(f"v_exp_f32 v{ST+4}, v{ST+4}")
    a.i(f"v_mul_f32 v{ST+1}, v{ST+1}, v{ST}"); a.i(f"v_fmac_f32 v{ST+1}, v{ST+5}, v{ST+4}")
    a.i(f"v_mov_b32 v11, v{ST+1}"); a.i(f"v_permlane16_swap_b32 v{ST+1}, v11"); a.i(f"v_add_f32 v{ST+1}, v{ST+1}, v11")
    a.i(f"v_mov_b32 v11, v{ST+1}"); a.i(f"v_permlane32_swap_b32 v{ST+1}, v11"); a.i(f"v_add_f32 v11, v{ST+1}, v11")
    a.i("v_sub_f32 v12, v12, v10"); a.i("v_exp_f32 v12, v12"); a.i("v_rcp_f32 v11, v11"); a.i("v_mul_f32 v12, v12, v11")
    a.i("v_lshlrev_b32 v9, 2, v4"); a.i("s_lshl_b32 s14, s3, 6"); a.i(f"s_add_u32 s14, s14, {L_F}"); a.i("v_add_u32 v9, s14, v9")
    a.i("ds_write_b32 v9, v12")
    a.i("s_waitcnt lgkmcnt(0)")
    g.signal(CF)
    for st in range(opt.wo_early): wostep(st)
    if opt.wo_early < 4:
        g.wait_cnt(CV, 4)
        for st in range(opt.wo_early, 4): wostep(st)
    OG, CA = 192, 176
    a.i("v_add_u32 v10, s3, v4"); a.i("v_and_b32 v10, 3, v10")
    a.i("v_lshrrev_b32 v9, 2, v4"); a.i("v_lshlrev_b32 v9, 13, v9"); a.i("v_lshl_add_u32 v9, v10, 6, v9"); a.i("v_lshl_add_u32 v9, v3, 4, v9")
    a.i("s_lshl_b32 s43, s42, 12"); a.i("s_lshl_b32 s14, s3, 10"); a.i("s_add_u32 s43, s43, s14"); a.i(f"s_add_u32 s43, s43, {WS_OS}")
    a.i("s_add_u32 s44, s43, 4096")
    if opt.srot:
        for sp in range(2):
            for st in range(4):
                a.i(f"s_add_u32 s14, s6, {st}"); a.i("s_and_b32 s14, s14, 3"); a.i("s_lshl_b32 s14, s14, 8"); a.i(f"s_add_u32 s{80+4*sp+st}, s14, {'s43' if sp == 0 else 's44'}")
    a.i("s_lshl_b32 s46, s42, 4"); a.i(f"s_add_u32 s46, s46, {WS_OF}")
    a.i("v_lshlrev_b32 v7, 2, v2")
    for r in range(1, 4):
        a.i(f"s_add_u32 s14, s3, {r}"); a.i("s_and_b32 s14, s14, 3"); a.i("s_lshl_b32 s14, s14, 12"); a.i(f"s_add_u32 s14, s14, {L_CR + (r-1)*1024}"); a.i(f"v_add_u32 v{12+r}, s14, v7")
    a.i("s_lshl_b32 s14, s3, 12"); a.i(f"s_add_u32 s14, s14, {L_CR}"); a.i("v_add_u32 v12, s14, v7")
    a.i("v_lshlrev_b32 v17, 10, v3"); a.i("v_lshl_add_u32 v17, v4, 4, v17")
    a.i("s_lshl_b32 s47, s41, 12"); a.i("s_lshl_b32 s14, s3, 8"); a.i("s_add_u32 s47, s47, s14"); a.i(f"s_add_u32 s47, s47, {WS_PS}")
    for e in range(4): a.i(f"s_mov_b32 s{60+e}, {0x07060500+e:#x}")
    XO = 8 if opt.halfpoll == 2 else 0
    if opt.halfpoll == 2:
        for sp in range(2):
            for st in range(4):
                a.i(f"buffer_load_dwordx4 {vr(OG+16*sp+4*st)}, v9, s[32:35], {'s43' if sp == 0 else 's44'} offen offset:{st*256} {opt.ld_flags}")
    for st in range(opt.wo_early):
        a.i(f"s_waitcnt vmcnt({8*(3-st) + XO})")
        transpose4(a, WF+16*st, lambda i, w: WR + 16*st + 2*i + w)
    if opt.t2: g.stamp(-1, tail=7)
    if not opt.bsync: a.i("s_barrier")
    g.stamp(-1, tail=1)
    for st in range(opt.wo_early, 4):
        a.i(f"s_waitcnt vmcnt({8*(3-st) + XO})")
        transpose4(a, WF+16*st, lambda i, w: WR + 16*st + 2*i + w)
    if opt.halfpoll:
        g.stamp(5, tail=2)
        for r in range(16): a.i(f"v_mov_b32 v{CA+r}, 0")
        a.i("s_mov_b32 s45, 0"); a.i("s_mov_b32 s92, 0")
        if opt.halfpoll == 2: a.i("s_branch L_A_hi1")
        a.label("L_A_hl")
        for sp in range(2):
            a.i(f"s_bitcmp1_b32 s92, {sp}"); a.i(f"s_cbranch_scc1 L_A_hi{sp}")
            for st in range(4):
                a.i(f"buffer_load_dwordx4 {vr(OG+16*sp+4*st)}, v9, s[32:35], {'s43' if sp == 0 else 's44'} offen offset:{st*256} {opt.ld_flags}")
            a.label(f"L_A_hi{sp}")
        a.i("s_waitcnt vmcnt(0)")
        for sp in range(2):
            b = OG + 16*sp
            a.i(f"s_bitcmp1_b32 s92, {sp}"); a.i(f"s_cbranch_scc1 L_A_hc{sp}")
            a.i(f"v_max3_u32 v10, v{b}, v{b+1}, v{b+2}")
            for r in range(3, 15, 2): a.i(f"v_max3_u32 v10, v10, v{b+r}, v{b+r+1}")
            a.i(f"v_max_u32 v10, v10, v{b+15}")
            a.i("v_cmp_eq_u32 vcc, -1, v10")
            a.i(f"s_cbranch_vccnz L_A_hc{sp}")
            for st in range(4):
                for e in range(4):
                    a.i(f"v_mfma_f32_16x16x32_bf16 {vr(CA+4*e)}, {vr(OG+16*sp+4*st)}, {vr(WF+16*st+4*e)}, {vr(CA+4*e)}")
            a.i(f"s_bitset1_b32 s92, {sp}")
            a.label(f"L_A_hc{sp}")
        a.i("s_add_u32 s45, s45, 1")
        a.i(f"s_cmp_gt_u32 s45, {opt.spin_limit}"); a.i("s_cbranch_scc1 L_A_hdone")
        a.i("s_cmp_eq_u32 s92, 3"); a.i("s_cbranch_scc0 L_A_hl")
        a.label("L_A_hdone")
        a.i("s_nop 7")
    else:
        g.stamp(5, tail=2)
        a.i("s_mov_b32 s45, 0")
        a.label("L_A_fretry")
        a.i("s_mov_b32 exec_hi, 0")
        a.i(f"buffer_load_dword v10, v7, s[32:35], s46 offen {opt.ld_flags}")
        a.i("s_waitcnt vmcnt(0)")
        a.i("v_cmp_ne_u32 vcc, v10, v8")
        a.i("s_mov_b64 exec, -1")
        g.retry_tail("L_A_fretry", "L_A_fok")
        g.stamp(-1, tail=3)
        if opt.dbgcnt: a.i("s_mov_b32 s92, s45")
        a.i("s_mov_b32 s45, 0")
        def ogather(fl):
            for sp in range(2):
                for st in range(4):
                    if opt.srot:
                        a.i(f"buffer_load_dwordx4 {vr(OG+16*sp+4*st)}, v9, s[32:35], s{80+4*sp+st} offen {fl}")
                    else:
                        a.i(f"buffer_load_dwordx4 {vr(OG+16*sp+4*st)}, v9, s[32:35], {'s43' if sp == 0 else 's44'} offen offset:{st*256} {fl}")
        if opt.o_plain:
            a.i("s_cmp_eq_u32 s58, 1"); a.i("s_cbranch_scc0 L_A_oretry")
            ogather("")
            a.i("s_branch L_A_ogo")
        a.label("L_A_oretry")
        ogather(opt.ld_flags)
        a.label("L_A_ogo")
        k = 0
        for sp in range(2):
            for st in range(4):
                a.i(f"s_waitcnt vmcnt({7-k})")
                for e in range(4):
                    c = "0" if k == 0 else vr(CA+4*e)
                    a.i(f"v_mfma_f32_16x16x32_bf16 {vr(CA+4*e)}, {vr(OG+16*sp+4*st)}, {vr(WF+16*st+4*e)}, {c}")
                b = OG+16*sp+4*st
                if k == 0: a.i(f"v_max3_u32 v10, v{b}, v{b+1}, v{b+2}"); a.i(f"v_max_u32 v10, v10, v{b+3}")
                else: a.i(f"v_max3_u32 v10, v10, v{b}, v{b+1}"); a.i(f"v_max3_u32 v10, v10, v{b+2}, v{b+3}")
                k += 1
        a.i("v_cmp_eq_u32 vcc, -1, v10")
        g.retry_tail("L_A_oretry", "L_A_ook")
    g.stamp(6, tail=4)
    if opt.regather:
        ogather("sc1")
        a.i("s_waitcnt vmcnt(0)")
        g.stamp(-1, tail=5)
    if opt.dbgcnt:
        a.i("s_mov_b64 exec, 1")
        a.i("v_mov_b32 v18, s45"); a.i("v_mov_b32 v19, s92")
        a.i("global_atomic_add v5, v18, s[28:29]"); a.i("global_atomic_add v5, v19, s[28:29] offset:4")
        a.i("global_atomic_add v5, v6, s[28:29] offset:8")
        a.i("s_mov_b64 exec, -1")
    for r in range(1, 4):
        for e in range(0, 4, 2):
            a.i(f"ds_write2st64_b32 v{12+r}, v{CA+4*e+r}, v{CA+4*(e+1)+r} offset0:{e} offset1:{e+1}")
    a.i("s_waitcnt lgkmcnt(0)")
    a.i("s_barrier")
    if not opt.regather: g.stamp(-1, tail=5)
    R = 20
    for slot in range(3):
        for e in range(0, 4, 2):
            a.i(f"ds_read2st64_b32 {vr(R+4*slot+e,2)}, v12 offset0:{slot*4+e} offset1:{slot*4+e+1}")
    a.i("s_waitcnt lgkmcnt(0)")
    for e in range(4):
        a.i(f"v_add_f32 v{R+e}, v{R+e}, v{R+4+e}"); a.i(f"v_add_f32 v{R+8+e}, v{R+8+e}, v{CA+4*e}")
    for e in range(4): a.i(f"v_add_f32 v{R+e}, v{R+e}, v{R+8+e}")
    for e in range(4): a.i(f"v_perm_b32 v{R+12+e}, v{R+e}, v8, s{60+e}")
    a.i(f"buffer_store_dwordx4 {vr(R+12)}, v17, s[32:35], s47 offen {opt.pst_flags}")
    g.stamp(7, tail=6)
    if opt.tstamps and not opt.t2:
        a.i("s_waitcnt vmcnt(0)")
        g.stamp(-1, tail=7)
    if opt.stamps:
        a.i("s_cmp_lg_u32 s3, 0"); a.i("s_cbranch_scc1 L_end")
        emit_stamps(g, 0, 8)
    a.i("s_branch L_end")

    a.label("L_B")
    a.i("s_sub_u32 s3, s3, 4")
    if opt.late_th or opt.dbgtime: a.i("s_memrealtime s[94:95]")
    if opt.b_exit:
        for k in range(1, 8): g.stamp(k)
        a.i("s_cmp_lg_u32 s3, 0"); a.i("s_cbranch_scc1 L_end")
        emit_stamps(g, 8, 8, first=1)
        a.i("s_branch L_end")
    VF, PF2, T2, OA = 16, 144, 160, 192
    kvbase(a)
    a.i("s_mov_b32 s57, s14")
    if opt.rot:
        a.i("s_add_u32 s56, s5, s3"); a.i("s_and_b32 s56, s56, 7"); a.i("s_lshl_b32 s56, s56, 12")
    else:
        a.i("s_mov_b32 s56, 0")
    for n in range(4):
        a.i(f"v_add_u32 v10, {4*n}, v3"); a.i("v_xor_b32 v10, v10, v4"); a.i("v_lshlrev_b32 v10, 4, v10"); a.i(f"v_lshl_add_u32 v{12+n}, v3, 8, v10")
    a.i("s_lshl_b32 s47, s3, 15")
    a.i("s_lshl_b32 s15, s6, 7")
    a.i("s_waitcnt lgkmcnt(0)")
    srd(a, 48, 18, 19, 128*256, add="s57")
    a.i("s_load_dword s10, s[30:31], s15")
    srd(a, 36, 20, 21, 128*256, add="s57")
    srd(a, 32, 30, 31, WS_SIZE)
    if opt.bpf:
        srd(a, 52, 22, 23, 4 << 20)
        srd(a, 60, 16, 17, 65536)
        a.i("v_lshlrev_b32 v8, 4, v2")
        a.i("s_lshl_b32 s14, s5, 4"); a.i("s_lshl_b32 s15, s3, 2"); a.i("s_add_u32 s14, s14, s15"); a.i("s_lshl_b32 s14, s14, 13"); a.i("s_lshl_b32 s15, s4, 10"); a.i("s_add_u32 s14, s14, s15")
        for k in range(4):
            a.i(f"buffer_load_dwordx4 {vr(16+4*k)}, v8, s[52:55], s14 offen {opt.bpf_flags}")
            if k < 3: a.i("s_add_u32 s14, s14, 8192")
        a.i("s_lshl_b32 s14, s5, 1"); a.i("s_and_b32 s15, s3, 1"); a.i("s_add_u32 s14, s14, s15"); a.i("s_lshl_b32 s14, s14, 10")
        a.i(f"buffer_load_dwordx4 {vr(32)}, v8, s[60:63], s14 offen")
    NPF = 0
    LO, HI = opt.thr, max(opt.thr3, opt.thr)
    a.i("s_cmp_eq_u32 s7, 3"); a.i("s_cselect_b64 vcc, -1, 0")
    if opt.late_th:
        a.i("s_or_b32 s14, s5, s3"); a.i("s_cmp_lg_u32 s14, 0"); a.i("s_cbranch_scc1 L_B_noat")
        a.i("s_not_b32 s14, s94"); a.i("v_mov_b32 v10, s14")
        a.i("s_mov_b64 exec, 1")
        a.i("global_atomic_umax v5, v10, s[28:29] sc1")
        a.i("s_mov_b64 exec, -1")
        a.label("L_B_noat")
    cnt = [0]
    def throttle():
        n = cnt[0]
        lo, hi = LO, HI
        if opt.thr_end and n >= 32 + opt.end_from:
            lo = max(lo, opt.thr_end); hi = max(hi, opt.thr_end)
        if n >= hi: a.i(f"s_waitcnt vmcnt({hi-1})")
        if n >= lo and lo < hi:
            L = g.lab("t")
            a.i(f"s_cbranch_vccnz {L}"); a.i(f"s_waitcnt vmcnt({lo-1})"); a.label(L)
        cnt[0] += 1
    for t in range(8):
        a.i(f"s_add_u32 s14, s47, {t*4096}"); a.i("s_mov_b32 m0, s14"); a.i(f"s_xor_b32 s14, s56, {t*4096}")
        for n in range(4):
            throttle()
            a.i(f"buffer_load_dwordx4 v{12+n}, s[48:51], s14 offen offset:{n*1024} {opt.kv_flags if opt.k_flags == 'same' else opt.k_flags} lds")
        if t == 0:
            a.i("s_barrier")
            a.i("v_add_u32 v7, s3, v4"); a.i("v_and_b32 v7, 3, v7"); a.i("v_and_b32 v10, 12, v4"); a.i("v_or_b32 v7, v7, v10")
            a.i("v_lshlrev_b32 v7, 4, v7"); a.i("v_lshl_add_u32 v7, v3, 10, v7")
            a.i("s_lshl_b32 s15, s3, 2"); a.i("v_add_u32 v11, s15, v1")
        if opt.late_th and t == opt.late_at - 1:
            a.i("s_load_dword s96, s[28:29], 0 glc")
        if opt.late_th and t == opt.late_at:
            a.i("s_waitcnt lgkmcnt(0)")
            a.i("s_not_b32 s14, s96"); a.i("s_sub_u32 s14, s94, s14")
            a.i("s_cmp_eq_u32 s96, 0"); a.i("s_cselect_b32 s14, 0, s14")
            a.i(f"s_cmp_gt_i32 s14, {opt.late_th}"); a.i("s_cselect_b64 s[96:97], -1, 0"); a.i("s_or_b64 vcc, vcc, s[96:97]")
    g.stamp(1)
    for u in range(4):
        for i in range(8):
            if i % 4 == 0: a.i(f"s_xor_b32 s14, s56, {u*8192 + (i>>2)*4096}")
            throttle()
            n = cnt[0] - 1
            if n - LO == 31:
                L = g.lab("k")
                if LO < HI: a.i(f"s_cbranch_vccnz {L}")
                g.signal(CKD, vaddr=11)
                a.label(L)
            if LO < HI and n - HI == 31:
                L = g.lab("k")
                a.i(f"s_cbranch_vccz {L}")
                g.signal(CKD, vaddr=11)
                a.label(L)
            a.i(f"buffer_load_dwordx4 {vr(VF+32*u+4*i)}, v7, s[36:39], s14 offen offset:{(i&3)*256} {opt.kv_flags if opt.v_flags == 'same' else opt.v_flags}")
            if 8*u + i + 1 == 32 and opt.ptouch_late == 2:
                a.i("v_lshlrev_b32 v10, 4, v2")
                a.i("s_lshl_b32 s14, s41, 12"); a.i("s_lshl_b32 s15, s3, 10"); a.i("s_add_u32 s14, s14, s15"); a.i(f"s_add_u32 s14, s14, {WS_PS}")
                a.i(f"buffer_load_dwordx4 v[224:227], v10, s[32:35], s14 offen {opt.ptouch_flags}")
            if 8*u + i + 1 == opt.cv_at: g.signal(CV)
    if opt.bstamps:
        a.i("s_waitcnt vmcnt(0)")
        a.i("s_cmp_lg_u32 s3, 0"); a.i("s_cbranch_scc1 L_end")
        emit_stamps(g, 8, 8, first=1)
        a.i("s_branch L_end")
    g.stamp(2, tail=1)
    if opt.bench:
        a.i("s_waitcnt vmcnt(0)")
        for k in range(3, 8): g.stamp(k)
        a.i("s_cmp_lg_u32 s3, 0"); a.i("s_cbranch_scc1 L_end")
        emit_stamps(g, 8, 8, first=1)
        a.i("s_branch L_end")
    g.wait_cnt(CP, 1, vaddr=11)
    a.i("v_lshlrev_b32 v9, 4, v2"); a.i("s_lshl_b32 s14, s3, 12"); a.i(f"s_add_u32 s14, s14, {L_P}"); a.i("v_add_u32 v9, s14, v9")
    for u in range(4): a.i(f"ds_read_b128 {vr(PF2+4*u)}, v9 offset:{u*1024}")
    a.i(f"ds_read_b32 v10, v1 offset:{FASTW}")
    a.i("s_waitcnt lgkmcnt(0)")
    a.i(f"s_add_u32 s10, s10, {TAGINC:#x}")
    a.i("v_mov_b32 v8, s10")
    a.i("v_readfirstlane_b32 s58, v10")
    if not opt.t2: g.stamp(3, tail=2)
    if opt.b_prio_pv: a.i(f"s_setprio {opt.b_prio_pv}")
    XT = 1 if opt.ptouch_late == 2 else 0
    def factors(wait=True):
        if wait: g.wait_cnt(CF, 4)
        for k in range(4):
            a.i(f"s_sub_u32 s14, s3, {k}"); a.i("s_and_b32 s14, s14, 3"); a.i("s_lshl_b32 s14, s14, 6"); a.i(f"s_add_u32 s14, s14, {L_F}")
            a.i(f"v_lshl_add_u32 v10, v4, 2, s14"); a.i(f"ds_read_b32 v{148+k}, v10")
    for u in range(4):
        L = lambda i, w: VF + 32*u + 4*i + w
        if u < 3:
            a.i(f"s_waitcnt vmcnt({(3-u)*8 + XT})")
            for e in range(8):
                w = e >> 1; sel = 's11' if (e & 1) == 0 else 's12'
                for p in range(4):
                    a.i(f"v_perm_b32 v{T2+4*e+p}, v{L(2*p+1,w)}, v{L(2*p,w)}, {sel}")
        else:
            for p in range(4):
                a.i(f"s_waitcnt vmcnt({6-2*p + XT})")
                for e in range(8):
                    w = e >> 1; sel = 's11' if (e & 1) == 0 else 's12'
                    a.i(f"v_perm_b32 v{T2+4*e+p}, v{L(2*p+1,w)}, v{L(2*p,w)}, {sel}")
        for e in range(8):
            c = "0" if u == 0 else vr(OA+4*e)
            a.i(f"v_mfma_f32_16x16x32_bf16 {vr(OA+4*e)}, {vr(T2+4*e)}, {vr(PF2+4*u)}, {c}")
        if u == 2:
            if not opt.cf_late: factors()
            if opt.cf_late == 2:
                a.i(f"ds_read_b32 v10, v1 offset:{CF}"); a.i("s_waitcnt lgkmcnt(0)"); a.i("v_readfirstlane_b32 s93, v10")
                a.i("s_cmp_ge_u32 s93, 4"); a.i("s_cbranch_scc0 L_B_fskip")
                factors(False)
                a.label("L_B_fskip")
            a.i("v_lshrrev_b32 v12, 2, v4"); a.i("v_lshlrev_b32 v12, 10, v12"); a.i("v_and_b32 v10, 3, v4"); a.i("v_lshl_add_u32 v12, v10, 6, v12"); a.i("v_lshl_add_u32 v12, v3, 4, v12")
            a.i("s_lshl_b32 s43, s41, 12"); a.i("s_lshl_b32 s14, s3, 8"); a.i("s_add_u32 s43, s43, s14"); a.i(f"s_add_u32 s43, s43, {WS_OS}")
            a.i("s_lshl_b32 s44, s41, 4"); a.i("s_lshl_b32 s14, s3, 2"); a.i("s_add_u32 s44, s44, s14"); a.i(f"s_add_u32 s44, s44, {WS_OF}")
            a.i("v_lshlrev_b32 v9, 2, v2")
            for r in range(1, 4):
                a.i(f"s_add_u32 s14, s3, {r}"); a.i("s_and_b32 s14, s14, 3"); a.i("s_lshl_b32 s14, s14, 13"); a.i(f"s_add_u32 s14, s14, {L_OR + (r-1)*2048}"); a.i(f"v_add_u32 v{12+r}, s14, v9")
            a.i("s_lshl_b32 s14, s3, 13"); a.i(f"s_add_u32 s14, s14, {L_OR}"); a.i("v_add_u32 v7, s14, v9")
    if opt.cf_late == 1: factors()
    if opt.cf_late == 2:
        a.i("s_cmp_ge_u32 s93, 4"); a.i("s_cbranch_scc1 L_B_fdone")
        factors()
        a.label("L_B_fdone")
    g.stamp(4, tail=3)
    for r in range(1, 4):
        for e in range(0, 8, 2):
            a.i(f"ds_write2st64_b32 v{12+r}, v{OA+4*e+r}, v{OA+4*(e+1)+r} offset0:{e} offset1:{e+1}")
    a.i("s_waitcnt lgkmcnt(0)")
    if opt.t2: g.stamp(-1, tail=2)
    if opt.bsync:
        g.signal(CO)
        g.wait_cnt(CO, 4)
    else:
        a.i("s_barrier")
    g.stamp(-1, tail=4)
    R = 16
    for slot in range(3):
        for e in range(0, 8, 2):
            a.i(f"ds_read2st64_b32 {vr(R+8*slot+e,2)}, v7 offset0:{slot*8+e} offset1:{slot*8+e+1}")
    FR = 148
    for e in range(8): a.i(f"v_mul_f32 v{OA+4*e}, v{OA+4*e}, v{FR}")
    for slot in range(3):
        a.i(f"s_waitcnt lgkmcnt({4*(2-slot)})")
        for e in range(8): a.i(f"v_fmac_f32 v{OA+4*e}, v{R+8*slot+e}, v{FR+1+slot}")
    for p in range(4): a.i(f"v_cvt_pk_bf16_f32 v{R+32+p}, v{OA+8*p}, v{OA+8*p+4}")
    g.store_var(f"buffer_store_dwordx4 {vr(R+32)}, v12, s[32:35], s43 offen")
    if not opt.halfpoll:
        a.i("s_mov_b64 exec, 1")
        g.store_var("buffer_store_dword v8, v5, s[32:35], s44 offen")
        a.i("s_mov_b64 exec, -1")
    if opt.ptouch_late == 1:
        a.i("v_lshlrev_b32 v10, 4, v2")
        a.i("s_lshl_b32 s14, s41, 12"); a.i("s_lshl_b32 s15, s3, 10"); a.i("s_add_u32 s14, s14, s15"); a.i(f"s_add_u32 s14, s14, {WS_PS}")
        a.i(f"buffer_load_dwordx4 v[100:103], v10, s[32:35], s14 offen {opt.ptouch_flags}")
    g.stamp(5, tail=5)
    if opt.wstamps:
        a.i("s_waitcnt lgkmcnt(0)")
        a.i(f"s_add_u32 s90, s30, {STAMPOFF}"); a.i("s_addc_u32 s91, s31, 0")
        a.i("s_lshl_b32 s14, s2, 7"); a.i("s_add_u32 s90, s90, s14"); a.i("s_addc_u32 s91, s91, 0")
        a.i("s_lshl_b32 s14, s3, 3"); a.i("s_add_u32 s90, s90, s14"); a.i("s_addc_u32 s91, s91, 0")
        a.i("s_mov_b64 exec, 1")
        a.i("v_mov_b32 v60, s72"); a.i("v_mov_b32 v61, s73")
        a.i("global_store_dwordx2 v5, v[60:61], s[90:91] offset:64")
        a.i("v_mov_b32 v62, s68"); a.i("v_mov_b32 v63, s69")
        a.i("global_store_dwordx2 v5, v[62:63], s[90:91] offset:96")
        a.i("s_mov_b64 exec, -1")
    a.i("s_cmp_lg_u32 s3, 0"); a.i("s_cbranch_scc1 L_end")
    a.i("v_lshrrev_b32 v9, 5, v2"); a.i("v_lshlrev_b32 v9, 19, v9")
    a.i("v_and_b32 v10, 1, v3"); a.i("v_lshl_add_u32 v9, v10, 8, v9"); a.i("v_lshl_add_u32 v9, v4, 4, v9")
    a.i("s_lshl_b32 s43, s5, 12"); a.i("s_lshl_b32 s14, s4, 9"); a.i("s_add_u32 s43, s43, s14"); a.i(f"s_add_u32 s43, s43, {WS_PS}")
    srd(a, 36, 26, 27, 65536)
    a.i("v_and_b32 v10, 1, v3"); a.i("v_lshlrev_b32 v13, 10, v10"); a.i("v_lshl_add_u32 v13, v4, 3, v13")
    a.i("s_lshl_b32 s46, s6, 14"); a.i("s_lshl_b32 s14, s4, 11"); a.i("s_add_u32 s46, s46, s14"); a.i("s_lshl_b32 s14, s59, 7"); a.i("s_add_u32 s46, s46, s14")
    a.i("s_barrier")
    NP = opt.ppoll
    a.i("s_mov_b32 s14, 0x0c0c0400"); a.i("s_mov_b32 s15, 0x04000c0c")
    for k in range(4): a.i(f"s_add_u32 s{48+k}, s43, {k*32*4096}")
    def pissue(z):
        for k in range(4):
            a.i(f"buffer_load_dwordx4 {vr(16+16*z+4*k)}, v9, s[32:35], s{48+k} offen {opt.pld_flags}")
    a.i("s_mov_b32 s45, 0")
    for z in range(NP):
        pissue(z)
        if z < NP - 1 and opt.psleep: a.i(f"s_sleep {opt.psleep}")
    a.label("L_B_pretry")
    for z in range(NP):
        R = 16 + 16*z
        a.i(f"s_waitcnt vmcnt({4*(NP-1)})")
        for k in range(4):
            d = 10 if k == 0 else 11
            a.i(f"v_perm_b32 v{d}, v{R+4*k+1}, v{R+4*k}, s14"); a.i(f"v_perm_b32 v12, v{R+4*k+3}, v{R+4*k+2}, s15")
            if k == 0:
                a.i("v_or_b32 v10, v10, v12"); a.i("v_xor_b32 v10, v10, v8")
            else:
                a.i("v_or_b32 v11, v11, v12"); a.i("v_xor_b32 v11, v11, v8"); a.i("v_or_b32 v10, v10, v11")
        a.i("v_cmp_ne_u32 vcc, 0, v10")
        a.i(f"s_cbranch_vccz L_B_pok{z}")
        pissue(z)
    a.i("s_add_u32 s45, s45, 1")
    a.i(f"s_cmp_le_u32 s45, {opt.spin_limit}")
    a.i("s_cbranch_scc1 L_B_pretry")
    a.i("s_waitcnt vmcnt(0)")
    for z in range(NP):
        R = 16 + 16*z
        a.label(f"L_B_pok{z}")
        for e in range(4):
            a.i(f"v_add_f32 v{80+e}, v{R+e}, v{R+4+e}"); a.i(f"v_add_f32 v{84+e}, v{R+8+e}, v{R+12+e}")
        if z < NP - 1: a.i("s_branch L_B_psum")
    a.label("L_B_psum")
    g.stamp(6, tail=6)
    R = 80
    for e in range(4): a.i(f"v_add_f32 v{R+e}, v{R+e}, v{R+4+e}")
    for e in range(4): a.i(f"v_mov_b32 v{R+4+e}, v{R+e}")
    for e in range(4): a.i(f"v_permlane32_swap_b32 v{R+e}, v{R+4+e}")
    for e in range(4): a.i(f"v_add_f32 v{R+e}, v{R+e}, v{R+4+e}")
    a.i(f"v_cvt_pk_bf16_f32 v{R+8}, v{R}, v{R+1}"); a.i(f"v_cvt_pk_bf16_f32 v{R+9}, v{R+2}, v{R+3}")
    a.i("s_mov_b32 exec_hi, 0")
    a.i(f"buffer_store_dwordx2 {vr(R+8,2)}, v13, s[36:39], s46 offen")
    a.i("s_or_b32 s14, s4, s7"); a.i("s_cmp_lg_u32 s14, 0"); a.i("s_cbranch_scc1 L_B_fin")
    a.i("s_mov_b64 exec, 1")
    a.i("s_lshl_b32 s14, s6, 7")
    a.i(f"buffer_store_dword v8, v5, s[32:35], s14 offen sc1")
    a.label("L_B_fin")
    if opt.dbgtime:
        a.i(f"s_cmp_lg_u32 s5, {opt.dbgtime - 1}"); a.i("s_cbranch_scc1 L_B_nodbg")
        a.i("s_waitcnt vmcnt(0)")
        a.i("s_memrealtime s[96:97]"); a.i("s_waitcnt lgkmcnt(0)")
        a.i("s_mov_b64 exec, 1")
        a.i("s_lshl_b32 s14, s4, 2"); a.i("v_mov_b32 v40, s14"); a.i("v_mov_b32 v41, s94"); a.i("v_mov_b32 v42, s96")
        a.i("global_store_dword v40, v41, s[28:29]"); a.i("global_store_dword v40, v42, s[28:29] offset:32")
        a.label("L_B_nodbg")
    a.i("s_mov_b64 exec, -1")
    if opt.stamps:
        a.i("s_waitcnt vmcnt(0)")
        a.i("s_memrealtime s[78:79]")
        if not opt.wstamps: emit_stamps(g, 8, 8, first=1)
    a.label("L_end"); a.i("s_endpgm")

    out = Asm()
    out(HEADER + f"; @launch grid=(256,1,1) block=(512,1,1) lds={L_END}")
    out('.amdgcn_target "amdgcn-amd-amdhsa--gfx950"\n.text')
    lines, n = hazard.fix(a.lines)
    out.lines += lines
    out('.section .rodata,"a"')
    out(kernel_desc(NAME, 256))
    return out.text(), n

def emit_stamps(g, slot0, n, first=0):
    a = g.a
    a.i("s_waitcnt lgkmcnt(0)")
    a.i(f"s_add_u32 s90, s30, {STAMPOFF}"); a.i("s_addc_u32 s91, s31, 0")
    a.i("s_lshl_b32 s14, s2, 7"); a.i("s_add_u32 s90, s90, s14"); a.i("s_addc_u32 s91, s91, 0")
    a.i("s_mov_b64 exec, 1")
    for k in range(first, n):
        a.i(f"v_mov_b32 v20, s{64+2*k}"); a.i(f"v_mov_b32 v21, s{65+2*k}")
        a.i(f"global_store_dwordx2 v5, v[20:21], s[90:91] offset:{(slot0+k-first)*8}")
        a.i("s_nop 1")
    a.i("s_mov_b64 exec, -1")

if __name__ == "__main__":
    o = Opt()
    out = sys.argv[1]
    for kv in sys.argv[2:]:
        k, v = kv.split("=")
        cur = getattr(o, k)
        if isinstance(cur, bool): v = v in ("1", "True", "true")
        elif isinstance(cur, int): v = int(v)
        else: v = v.replace("+", " ")
        setattr(o, k, v)
    t, n = gen(o)
    open(out, "w").write(t)
    print(out, "nops inserted:", n, "lines:", t.count("\n"))
```

```python
import sys, struct
from asmlib import *
import hazard

NAME = "standalone__sliding_block_cached__sampling_kernel"
def f2u(x): return struct.unpack('<I', struct.pack('<f', x))[0]
SCALE = 0.08838834764831845 * 1.4426950408889634

WS_XID = 0x8000
WS_OF = 0x9000
WS_QS = 0x10000
WS_ST = 0x200000
WS_OS = 0x300000
WS_PS = 0x500000
WS_SIZE = 0x800000
STAMPOFF = 256 << 20
TAGINC = 0x9E3779B9

L_K = 0
L_OR = 0
L_CR = 32768
L_QR = 131072
L_P = 131072
L_CNT = 147456
L_F = L_CNT + 64
L_Q = L_CNT + 512
L_END = L_Q + 4096
CQ, CKS, CV, CO, CC, CP, CF, CQ2, CKD, FASTW = 0, 4, 8, 12, 16, 20, 36, 40, 44, 60
CWP = CO
CX = CKS

class Opt:
    stamps = False
    kv_flags = "nt"
    w_flags = "nt"
    x_flags = ""
    ld_flags = "sc1"
    spin_limit = 30000
    a_prio = 2
    b_prio_pv = 3
    rot = 1
    thr = 7
    wo_mode = 1
    wq_ahead = 2
    force_slow = 0
    bench = 0
    a_stop = 0
    oflag = 1
    b_prio0 = 0
    rolemap = 0
    bfirst = 0
    bfirst_tiles = 1
    halfpoll = 0
    ptouch_late = 1
    cv_at = 32
    xdma = 0
    dbgtime = 0
    dyn = 1
    late_th = 0
    late_at = 3
    emu = 0
    bsync = 1
    t2 = 0
    perm = 0
    pst_flags = "sc1"
    pld_flags = "sc1"
    cf_late = 1
    wstamps = 0
    thr_end = 0
    end_from = 16
    wo_flags = "nt"
    srot = 1
    wq_ahead3 = 0
    k_flags = "same"
    v_flags = "same"
    cwpstamp = 0
    bpf = 0
    bpf_flags = ""
    wopf = 0
    ppoll = 3
    psleep = 6
    ptouch_flags = ""
    touch = 1
    regather = 0
    o_plain = 1
    dbgcnt = 0
    ntx = 4
    thr3 = 0
    pf = 0
    pf_flags = ""
    tstamps = 0
    wo_early = 2
    b_exit = 0
    wq_rowrot = 0
    wq_colxor = 0
    bstamps = 0
    stagger = 0
    thr_k = 0
    stag_bit = 0
    xid_tries = 4

def vr(b, n=4): return f"v[{b}:{b+n-1}]" if n > 1 else f"v{b}"

def srd(a, d, lo, hi, size, add=None):
    if add is None:
        a.i(f"s_mov_b32 s{d}, s{lo}"); a.i(f"s_mov_b32 s{d+1}, s{hi}")
    else:
        a.i(f"s_add_u32 s{d}, s{lo}, {add}"); a.i(f"s_addc_u32 s{d+1}, s{hi}, 0")
    a.i(f"s_mov_b32 s{d+2}, {size}"); a.i(f"s_mov_b32 s{d+3}, 0x20000")

class G:
    def __init__(self, opt):
        self.a = Asm(); self.o = opt; self.nl = 0
    def lab(self, p):
        self.nl += 1; return f"L{p}{self.nl}"
    def stamp(self, k, tail=None):
        if self.o.tstamps:
            if tail is None and k != 0: return
            if tail is not None: k = tail
            if k < 0: return
        elif tail is not None and k < 0: return
        if self.o.stamps:
            self.a.i(f"s_memrealtime s[{64+2*k}:{65+2*k}]")
    def signal(self, cnt, vaddr=1):
        a = self.a
        a.i("s_mov_b64 exec, 1")
        a.i(f"ds_add_u32 v{vaddr}, v6 offset:{cnt}")
        a.i("s_mov_b64 exec, -1")
    def wait_cnt(self, cnt, n, vt=10, vaddr=1, sleep=0):
        a = self.a
        L = self.lab("w")
        a.i("s_mov_b32 s15, 0")
        a.label(L)
        if sleep: a.i(f"s_sleep {sleep}")
        a.i(f"ds_read_b32 v{vt}, v{vaddr} offset:{cnt}")
        a.i("s_add_u32 s15, s15, 1")
        a.i("s_waitcnt lgkmcnt(0)")
        a.i(f"v_readfirstlane_b32 s14, v{vt}")
        a.i(f"s_cmp_gt_u32 s15, {self.o.spin_limit*16}")
        a.i(f"s_cbranch_scc1 {L}_o")
        a.i(f"s_cmp_ge_u32 s14, {n}")
        a.i(f"s_cbranch_scc0 {L}")
        a.label(f"{L}_o")
    def retry_tail(self, Lretry, Lok):
        a = self.a
        a.i("s_add_u32 s45, s45, 1")
        a.i(f"s_cmp_gt_u32 s45, {self.o.spin_limit}")
        a.i(f"s_cbranch_scc1 {Lok}")
        a.i(f"s_cbranch_vccnz {Lretry}")
        a.label(Lok)
    def store_var(self, ins):
        a = self.a; L = self.lab("s")
        a.i("s_cmp_eq_u32 s58, 1"); a.i(f"s_cbranch_scc1 {L}_f")
        a.i(ins + " sc1"); a.i(f"s_branch {L}_d")
        a.label(f"{L}_f"); a.i(ins); a.label(f"{L}_d")

def transpose4(a, dst, L):
    for e in range(4):
        w = e >> 1; sel = 's11' if (e & 1) == 0 else 's12'
        for p in range(4):
            a.i(f"v_perm_b32 v{dst+4*e+p}, v{L(2*p+1,w)}, v{L(2*p,w)}, {sel}")

def kvbase(a):
    a.i("s_lshr_b32 s14, s5, 1"); a.i("s_lshl_b32 s14, s14, 3"); a.i("s_add_u32 s14, s14, s4"); a.i("s_lshl_b32 s14, s14, 12")
    a.i("s_lshl_b32 s15, s9, 9"); a.i("s_add_u32 s14, s14, s15"); a.i("s_lshl_b32 s15, s3, 7"); a.i("s_add_u32 s14, s14, s15")
    a.i("s_add_u32 s14, s14, 3072"); a.i("s_lshl_b32 s14, s14, 8")

def astop(g, n):
    opt = g.o; a = g.a
    if opt.a_stop == n:
        for k in range(n + 1, 8): g.stamp(k)
        if opt.stamps:
            a.i("s_cmp_lg_u32 s3, 0"); a.i("s_cbranch_scc1 L_end")
            emit_stamps(g, 0, 8)
        a.i("s_branch L_end")

def gen(opt):
    g = G(opt); a = g.a
    kernel_begin(a, NAME)
    a.i("s_cmp_ge_u32 s2, 256"); a.i("s_cbranch_scc1 L_end")
    if opt.perm == 1:
        a.i("s_lshl_b32 s3, s2, 3"); a.i("s_lshr_b32 s4, s2, 5"); a.i("s_or_b32 s2, s3, s4"); a.i("s_and_b32 s2, s2, 255")
    if opt.perm == 2:
        a.i("s_xor_b32 s2, s2, 8"); a.i("s_lshr_b32 s3, s2, 6"); a.i("s_xor_b32 s2, s2, s3")
    g.stamp(0)
    a.i("s_load_dwordx16 s[16:31], s[0:1], 0")
    a.i("v_lshrrev_b32 v1, 6, v0"); a.i("v_and_b32 v2, 63, v0")
    a.i("v_readfirstlane_b32 s3, v1")
    if opt.rolemap:
        a.i("s_bfe_u32 s4, s3, 0x10001"); a.i("s_lshl_b32 s4, s4, 2"); a.i("s_and_b32 s5, s3, 1"); a.i("s_or_b32 s4, s4, s5")
        a.i("s_lshr_b32 s5, s3, 2"); a.i("s_lshl_b32 s5, s5, 1"); a.i("s_or_b32 s3, s4, s5")
    a.i("s_and_b32 s4, s2, 7")
    a.i("s_lshr_b32 s5, s2, 3")
    a.i("s_lshr_b32 s6, s5, 3")
    a.i("s_and_b32 s7, s5, 7")
    a.i(f"s_xor_b32 s59, s7, {opt.ntx}")
    a.i("s_bfe_u32 s8, s5, 0x20001")
    a.i("s_and_b32 s9, s5, 1")
    a.i("v_lshrrev_b32 v3, 4, v2"); a.i("v_and_b32 v4, 15, v2")
    a.i("v_mov_b32 v5, 0"); a.i("v_mov_b32 v6, 1")
    a.i(f"v_mov_b32 v1, {L_CNT}")
    a.i("s_mov_b32 s11, 0x05040100"); a.i("s_mov_b32 s12, 0x07060302")
    a.i("s_lshl_b32 s40, s4, 5"); a.i("s_add_u32 s41, s40, s5")
    a.i("s_and_b32 s42, s41, 0xfffffff8")
    a.i("s_cmp_ge_u32 s3, 4"); a.i("s_cbranch_scc1 L_B")

    if opt.a_prio: a.i(f"s_setprio {opt.a_prio}")
    a.i("s_cmp_lg_u32 s3, 0"); a.i("s_cbranch_scc1 L_P1")
    a.i("v_lshl_add_u32 v7, v2, 2, v1"); a.i("ds_write_b32 v7, v5 offset:0")
    a.label("L_P1")
    XA, WB, T, ACC = 16, 32, 96, 128
    a.i("v_lshlrev_b32 v8, 10, v4"); a.i("v_lshl_add_u32 v8, v3, 4, v8")
    a.i("v_lshlrev_b32 v9, 16, v3"); a.i("v_lshl_add_u32 v9, v4, 3, v9")
    a.i("s_lshl_b32 s14, s6, 14"); a.i("s_lshl_b32 s15, s3, 8"); a.i("s_add_u32 s45, s14, s15")
    a.i("s_lshl_b32 s44, s3, 20"); a.i("s_lshl_b32 s14, s4, 10"); a.i("s_add_u32 s44, s44, s14"); a.i(f"s_xor_b32 s14, s7, {opt.wq_colxor}"); a.i("s_lshl_b32 s14, s14, 7"); a.i("s_add_u32 s44, s44, s14")
    a.i("s_lshl_b32 s47, s3, 15")
    a.i("s_lshl_b32 s15, s6, 7")
    a.i("s_waitcnt lgkmcnt(0)")
    a.i("s_load_dword s10, s[30:31], s15")
    srd(a, 48, 22, 23, 4 << 20)
    srd(a, 52, 16, 17, 65536)
    srd(a, 32, 30, 31, WS_SIZE)
    def xidpub():
        a.i("s_getreg_b32 s57, hwreg(HW_REG_XCC_ID, 0, 4)")
        a.i("s_waitcnt lgkmcnt(0)")
        a.i(f"s_add_u32 s10, s10, {TAGINC:#x}")
        a.i("s_and_b32 s14, s10, 0xfffffff0"); a.i("s_or_b32 s14, s14, s57"); a.i("v_mov_b32 v144, s14")
        a.i("s_lshl_b32 s14, s41, 2"); a.i(f"s_add_u32 s14, s14, {WS_XID}")
        a.i("s_mov_b64 exec, 1")
        a.i("buffer_store_dword v144, v5, s[32:35], s14 offen")
        a.i("s_mov_b64 exec, -1")
    if opt.stagger: xidpub()
    if opt.stagger:
        a.i(f"s_bitcmp1_b32 s5, {opt.stag_bit}"); a.i("s_cbranch_scc0 L_A_nostag")
        g.wait_cnt(CKS, 4)
        a.label("L_A_nostag")
    if opt.pf:
        a.i("s_lshl_b32 s14, s6, 7"); a.i("s_lshl_b32 s15, s3, 5"); a.i("s_add_u32 s14, s14, s15"); a.i("s_lshl_b32 s14, s14, 13")
        a.i("s_lshl_b32 s15, s4, 10"); a.i("s_add_u32 s14, s14, s15"); a.i("s_lshl_b32 s15, s7, 7"); a.i("s_add_u32 s14, s14, s15")
        a.i("v_lshlrev_b32 v10, 13, v2")
        a.i("s_mov_b32 exec_hi, 0")
        a.i(f"buffer_load_dword v146, v10, s[48:51], s14 offen {opt.pf_flags}")
        a.i("s_lshl_b32 s14, s6, 14"); a.i("s_lshl_b32 s15, s7, 11"); a.i("s_add_u32 s14, s14, s15"); a.i("s_lshl_b32 s15, s3, 9"); a.i("s_add_u32 s14, s14, s15")
        a.i("v_lshlrev_b32 v10, 7, v2")
        a.i("s_mov_b64 exec, 0xf")
        a.i(f"buffer_load_dword v147, v10, s[52:55], s14 offen")
        a.i("s_mov_b64 exec, -1")
        if not opt.stagger: xidpub()
        a.i("s_waitcnt vmcnt(0)")
    if opt.bpf:
        g.wait_cnt(CWP, 4)
        if opt.cwpstamp: g.stamp(1)
    if opt.emu == 2:
        a.i("s_barrier")
        for k in range(1, 8): g.stamp(k)
        a.i("s_cmp_lg_u32 s3, 0"); a.i("s_cbranch_scc1 L_end")
        emit_stamps(g, 0, 8)
        a.i("s_branch L_end")
    if opt.emu == 1:
        a.i("v_lshrrev_b32 v10, 3, v2"); a.i("v_and_b32 v11, 7, v2"); a.i("v_lshlrev_b32 v10, 13, v10"); a.i("v_lshl_add_u32 v10, v11, 4, v10")
        a.i("s_lshl_b32 s14, s6, 7"); a.i("s_lshl_b32 s15, s3, 5"); a.i("s_add_u32 s14, s14, s15"); a.i("s_lshl_b32 s14, s14, 13")
        a.i("s_lshl_b32 s15, s4, 10"); a.i("s_add_u32 s14, s14, s15"); a.i("s_lshl_b32 s15, s7, 7"); a.i("s_add_u32 s14, s14, s15")
        for k in range(4):
            a.i(f"buffer_load_dwordx4 {vr(32+4*k)}, v10, s[48:51], s14 offen {opt.w_flags}"); a.i("s_add_u32 s14, s14, 65536")
        a.i("v_lshlrev_b32 v10, 10, v3"); a.i("v_lshl_add_u32 v10, v4, 4, v10")
        a.i("s_lshl_b32 s14, s3, 14"); a.i("s_lshl_b32 s15, s6, 8"); a.i("s_add_u32 s14, s14, s15")
        for k in range(4):
            a.i(f"buffer_load_dwordx4 {vr(16+4*k)}, v10, s[52:55], s14 offen"); a.i("s_add_u32 s14, s14, 4096")
        a.i("s_barrier")
        a.i("s_waitcnt lgkmcnt(0)")
        a.i(f"s_add_u32 s10, s10, {TAGINC:#x}"); a.i("v_mov_b32 v8, s10"); a.i("s_mov_b32 s58, 1")
        a.i("s_waitcnt vmcnt(0)")
        g.stamp(1)
        a.i("v_lshlrev_b32 v7, 4, v2")
        a.i("s_lshl_b32 s14, s41, 14"); a.i("s_lshl_b32 s15, s3, 12"); a.i("s_add_u32 s14, s14, s15"); a.i("s_add_u32 s14, s14, 0x800000")
        a.i("s_mov_b32 s34, 0x2000000")
        for k in range(4):
            a.i(f"buffer_store_dwordx4 {vr(32+4*k)}, v7, s[32:35], s14 offen offset:{k*1024}")
        for k in range(4):
            a.i(f"s_and_b32 s14, s41, 0xffffffe7"); a.i(f"s_or_b32 s14, s14, {k*8}"); a.i("s_lshl_b32 s14, s14, 14"); a.i("s_lshl_b32 s15, s6, 12"); a.i("s_add_u32 s14, s14, s15"); a.i("s_lshl_b32 s15, s3, 10"); a.i("s_add_u32 s14, s14, s15"); a.i("s_add_u32 s14, s14, 0x800000")
            a.i(f"buffer_load_dwordx4 {vr(48+4*k)}, v7, s[32:35], s14 offen sc1")
        a.i("s_waitcnt vmcnt(0)")
        a.i("s_lshl_b32 s14, s41, 12"); a.i("s_lshl_b32 s15, s3, 10"); a.i("s_add_u32 s14, s14, s15"); a.i(f"s_add_u32 s14, s14, {WS_QS}")
        a.i(f"buffer_store_dwordx4 {vr(48)}, v7, s[32:35], s14 offen")
        g.stamp(2)
        for k in range(3, 8): g.stamp(k)
        a.i("s_cmp_lg_u32 s3, 0"); a.i("s_cbranch_scc1 L_end")
        emit_stamps(g, 0, 8)
        a.i("s_branch L_end")
    def qproj(AHEAD, SFX):
        seq = []
        def wqstep(s_):
            if opt.srot:
                a.i(f"s_add_u32 s14, s6, {s_}"); a.i("s_and_b32 s14, s14, 3"); a.i("s_lshl_b32 s14, s14, 18"); a.i("s_add_u32 s15, s44, s14")
                for i in range(8):
                    a.i(f"buffer_load_dwordx2 {vr(WB+16*s_+2*i,2)}, v9, s[48:51], s15 offen {opt.w_flags}")
                    if i < 7: a.i(f"s_add_u32 s15, s15, 8192")
                    seq.append(('w', s_))
                return
            for i in range(8):
                a.i(f"buffer_load_dwordx2 {vr(WB+16*s_+2*i,2)}, v9, s[48:51], s44 offen {opt.w_flags}")
                a.i(f"s_add_u32 s44, s44, 8192")
                seq.append(('w', s_))
            if s_ < 3: a.i(f"s_add_u32 s44, s44, {24*8192}")
        if opt.bfirst: a.i("s_barrier")
        wqstep(0)
        if opt.xdma:
            a.i("s_lshl_b32 s14, s3, 12"); a.i(f"s_add_u32 s14, s14, {L_QR}"); a.i("s_mov_b32 m0, s14")
            for n in range(4):
                a.i(f"v_add_u32 v10, {4*n}, v3"); a.i("v_xor_b32 v10, v10, v4"); a.i("v_lshlrev_b32 v10, 4, v10"); a.i(f"v_lshl_add_u32 v10, v3, 10, v10")
                a.i(f"s_add_u32 s15, s45, {n*4096 - n*1024}")
                a.i(f"buffer_load_dwordx4 v10, s[52:55], s15 offen offset:{n*1024} {opt.x_flags} lds")
                seq.append(('x', 0))
        else:
            for s2 in range(4):
                a.i(f"buffer_load_dwordx4 {vr(XA+4*s2)}, v8, s[52:55], s45 offen offset:{s2*64} {opt.x_flags}")
                seq.append(('x', 0))
        if not opt.bfirst: a.i("s_barrier")
        a.i("s_lshl_b32 s46, s42, 2"); a.i(f"s_add_u32 s46, s46, {WS_XID}")
        a.i("v_lshlrev_b32 v145, 2, v2")
        def xidload():
            a.i("s_mov_b64 exec, 0xff")
            a.i("buffer_load_dword v146, v145, s[32:35], s46 offen sc1")
            a.i("s_mov_b64 exec, -1")
        issued = 1
        while issued < min(4, AHEAD):
            wqstep(issued); issued += 1
        xidpub(); seq.append(('s', 0))
        a.i("v_mov_b32 v8, s10")
        for s_ in range(4):
            last = max([i for i, e in enumerate(seq) if e == ('w', s_) or (s_ == 0 and e[0] == 'x') or (s_ == 2 and e[0] == 'i')])
            a.i(f"s_waitcnt vmcnt({len(seq)-1-last})")
            if s_ == 0 and opt.xdma:
                for st in range(4):
                    a.i(f"v_add_u32 v10, {4*st}, v3"); a.i("v_xor_b32 v10, v10, v4"); a.i("v_lshlrev_b32 v10, 4, v10"); a.i("v_lshl_add_u32 v10, v4, 8, v10")
                    a.i("s_lshl_b32 s14, s3, 12"); a.i(f"s_add_u32 s14, s14, {L_QR}"); a.i("v_add_u32 v10, s14, v10")
                    a.i(f"ds_read_b128 {vr(XA+4*st)}, v10")
            if s_ == 0:
                xidload(); seq.append(('i', 0))
                if opt.touch & 2:
                    a.i("v_lshlrev_b32 v7, 4, v2")
                    a.i("s_lshl_b32 s14, s41, 12"); a.i("s_lshl_b32 s15, s3, 10"); a.i("s_add_u32 s14, s14, s15"); a.i(f"s_add_u32 s14, s14, {WS_QS}")
                    a.i("buffer_load_dwordx4 v[240:243], v7, s[32:35], s14 offen sc1"); seq.append(('t', 0))
                    a.i("s_lshl_b32 s14, s41, 10"); a.i("s_lshl_b32 s15, s3, 8"); a.i("s_add_u32 s14, s14, s15"); a.i(f"s_add_u32 s14, s14, {WS_ST}")
                    a.i("s_mov_b64 exec, 0xffff")
                    a.i("buffer_load_dwordx4 v[244:247], v7, s[32:35], s14 offen sc1"); seq.append(('t', 0))
                    a.i("s_mov_b64 exec, -1")
            if issued < 4:
                wqstep(issued); issued += 1
            if s_ == 0 and not opt.cwpstamp: g.stamp(1)
            if s_ == 2:
                a.i("s_mov_b32 s45, 0"); a.i("s_mov_b32 s58, 0")
                a.i(f"s_branch L_A_xchk{SFX}")
                a.label(f"L_A_xretry{SFX}")
                xidload()
                a.i("s_waitcnt vmcnt(0)")
                a.label(f"L_A_xchk{SFX}")
                a.i("s_mov_b64 exec, 0xff")
                a.i("v_xor_b32 v147, v146, v8"); a.i("v_and_b32 v147, 0xfffffff0, v147"); a.i("v_cmp_ne_u32 vcc, 0, v147")
                a.i("s_mov_b64 exec, -1")
                a.i(f"s_cbranch_vccz L_A_xok{SFX}")
                a.i("s_add_u32 s45, s45, 1")
                a.i(f"s_cmp_lt_u32 s45, {opt.xid_tries}")
                a.i(f"s_cbranch_scc1 L_A_xretry{SFX}")
                a.i(f"s_branch L_A_xdone{SFX}")
                a.label(f"L_A_xok{SFX}")
                a.i("s_mov_b64 exec, 0xff")
                a.i("v_and_b32 v147, 15, v146"); a.i("v_cmp_ne_u32 vcc, s57, v147")
                a.i("s_mov_b64 exec, -1")
                a.i("s_cmp_eq_u64 vcc, 0"); a.i("s_cselect_b32 s58, 1, 0")
                a.label(f"L_A_xdone{SFX}")
                if opt.force_slow: a.i("s_mov_b32 s58, 0")
                for r in range(4): a.i(f"v_mov_b32 v{148+r}, -1")
                a.i("v_lshlrev_b32 v7, 4, v2")
                a.i("s_lshl_b32 s43, s41, 12"); a.i("s_lshl_b32 s14, s3, 10"); a.i("s_add_u32 s43, s43, s14"); a.i(f"s_add_u32 s46, s43, {WS_OS}")
                g.store_var("buffer_store_dwordx4 v[148:151], v7, s[32:35], s46 offen"); seq.append(('p', 0))
            tb = T + (s_ & 1) * 16
            transpose4(a, tb, lambda i, w: WB + 16*s_ + 2*i + w)
            if s_ == 0 and opt.xdma:
                a.i("s_waitcnt lgkmcnt(0)")
                g.signal(CX)
            for e in range(4):
                c = "0" if s_ == 0 else vr(ACC+4*e)
                a.i(f"v_mfma_f32_16x16x32_bf16 {vr(ACC+4*e)}, {vr(XA+4*s_)}, {vr(tb+4*e)}, {c}")
    if opt.wq_ahead3 and opt.wq_ahead3 != opt.wq_ahead:
        a.i("s_cmp_eq_u32 s7, 3"); a.i("s_cbranch_scc1 L_A_q3")
        qproj(opt.wq_ahead, "a")
        a.i("s_branch L_A_qdone")
        a.label("L_A_q3")
        qproj(opt.wq_ahead3, "b")
        a.label("L_A_qdone")
    else:
        qproj(opt.wq_ahead, "a")
    if opt.xdma: g.wait_cnt(CX, 4)
    a.i("v_lshlrev_b32 v9, 2, v2"); a.i("s_lshl_b32 s14, s3, 10"); a.i(f"s_add_u32 s14, s14, {L_QR}"); a.i("v_add_u32 v7, s14, v9")
    for r in range(4):
        for e in range(0, 4, 2):
            a.i(f"ds_write2st64_b32 v7, v{ACC+4*e+r}, v{ACC+4*(e+1)+r} offset0:{r*16+e} offset1:{r*16+e+1}")
    a.i("v_mov_b32 v10, s58"); a.i(f"ds_write_b32 v1, v10 offset:{FASTW}")
    a.i("s_waitcnt lgkmcnt(0)")
    g.signal(CQ)
    g.wait_cnt(CQ, 4)
    a.i("s_lshl_b32 s14, s3, 12"); a.i(f"s_add_u32 s14, s14, {L_QR}"); a.i("v_add_u32 v7, s14, v9")
    R = 152
    for src in range(4):
        for e in range(0, 4, 2):
            a.i(f"ds_read2st64_b32 {vr(R+4*src+e,2)}, v7 offset0:{src*4+e} offset1:{src*4+e+1}")
    a.i("v_lshlrev_b32 v9, 10, v3"); a.i("v_and_b32 v10, 1, v4"); a.i("v_lshl_add_u32 v9, v10, 9, v9")
    a.i("v_lshrrev_b32 v10, 3, v4"); a.i("v_lshl_add_u32 v9, v10, 8, v9"); a.i("v_bfe_u32 v10, v4, 1, 2"); a.i("v_lshl_add_u32 v9, v10, 4, v9")
    a.i("s_lshl_b32 s43, s41, 12"); a.i("s_lshl_b32 s14, s3, 6"); a.i("s_add_u32 s43, s43, s14"); a.i(f"s_add_u32 s43, s43, {WS_QS}")
    a.i("s_waitcnt lgkmcnt(0)")
    for e in range(4):
        a.i(f"v_add_f32 v{R+e}, v{R+e}, v{R+4+e}"); a.i(f"v_add_f32 v{R+8+e}, v{R+8+e}, v{R+12+e}")
    for e in range(4): a.i(f"v_add_f32 v{R+e}, v{R+e}, v{R+8+e}")
    a.i(f"v_cvt_pk_bf16_f32 v{R+4}, v{R}, v{R+1}"); a.i(f"v_cvt_pk_bf16_f32 v{R+5}, v{R+2}, v{R+3}")
    a.i(f"v_perm_b32 v{R+8}, v{R+4}, v8, s11"); a.i(f"v_perm_b32 v{R+9}, v{R+4}, v8, s12")
    a.i(f"v_perm_b32 v{R+10}, v{R+5}, v8, s11"); a.i(f"v_perm_b32 v{R+11}, v{R+5}, v8, s12")
    a.i("s_waitcnt vmcnt(0)")
    if opt.touch & 1:
        a.i("v_lshlrev_b32 v7, 4, v2")
        a.i("buffer_load_dwordx4 v[248:251], v7, s[32:35], s46 offen sc1")
    g.store_var(f"buffer_store_dwordx4 {vr(R+8)}, v9, s[32:35], s43 offen")
    g.stamp(2)
    astop(g, 2)
    QR = 176
    a.i("v_lshrrev_b32 v9, 2, v4"); a.i("v_lshlrev_b32 v9, 13, v9"); a.i("v_and_b32 v10, 3, v4"); a.i("v_lshl_add_u32 v9, v10, 6, v9"); a.i("v_lshl_add_u32 v9, v3, 4, v9")
    a.i("s_lshl_b32 s43, s42, 12"); a.i("s_lshl_b32 s14, s8, 10"); a.i("s_add_u32 s43, s43, s14"); a.i(f"s_add_u32 s43, s43, {WS_QS}")
    a.i("s_lshr_b32 s14, s3, 1"); a.i("s_lshl_b32 s14, s14, 12"); a.i("s_add_u32 s43, s43, s14")
    a.i("s_and_b32 s14, s3, 1"); a.i("s_lshl_b32 s14, s14, 8"); a.i("s_add_u32 s43, s43, s14")
    a.i("s_mov_b32 s45, 0")
    a.label("L_A_qretry")
    for u in range(2):
        a.i(f"buffer_load_dwordx4 {vr(QR+4*u)}, v9, s[32:35], s43 offen offset:{u*512} {opt.ld_flags}")
    a.i("v_mov_b32 v10, 0")
    a.i("s_waitcnt vmcnt(0)")
    for k in range(4):
        a.i(f"v_perm_b32 v11, v{QR+2*k+1}, v{QR+2*k}, s11")
        a.i(f"v_xor_b32 v11, v11, v8")
        a.i(f"v_or_b32 v10, v10, v11")
    a.i("v_cmp_ne_u32 vcc, 0, v10")
    g.retry_tail("L_A_qretry", "L_A_qok")
    for k in range(4):
        a.i(f"v_perm_b32 v{QR+8+k}, v{QR+2*k+1}, v{QR+2*k}, s12")
    a.i("v_lshlrev_b32 v9, 4, v2"); a.i("s_lshl_b32 s14, s3, 10"); a.i(f"s_add_u32 s14, s14, {L_Q}"); a.i("v_add_u32 v10, s14, v9")
    a.i(f"ds_write_b128 v10, {vr(QR+8)}")
    for st in range(4):
        a.i(f"v_add_u32 v10, {4*st}, v3"); a.i("v_xor_b32 v10, v10, v4"); a.i("v_lshlrev_b32 v10, 4, v10"); a.i("v_lshl_add_u32 v10, v4, 8, v10"); a.i(f"v_add_u32 v{12+st}, s47, v10")
    a.i("s_waitcnt lgkmcnt(0)")
    g.signal(CQ2)
    g.stamp(3)
    astop(g, 3)
    WR, WF = 32, 96
    srd(a, 48, 24, 25, 4 << 20)
    a.i("v_lshlrev_b32 v16, 15, v3"); a.i("v_lshl_add_u32 v16, v4, 3, v16")
    a.i("s_lshl_b32 s46, s4, 2"); a.i("s_add_u32 s46, s46, s3"); a.i("s_lshl_b32 s46, s46, 17"); a.i("s_lshl_b32 s15, s59, 7"); a.i("s_add_u32 s46, s46, s15")
    def wostep(st):
        if opt.srot:
            a.i(f"s_add_u32 s14, s6, {st}"); a.i("s_and_b32 s14, s14, 3"); a.i("s_lshl_b32 s14, s14, 13"); a.i("s_add_u32 s15, s46, s14")
            for i in range(8):
                if i == 4: a.i("s_add_u32 s15, s15, 4096")
                a.i(f"buffer_load_dwordx2 {vr(WR+16*st+2*i,2)}, v16, s[48:51], s15 offen offset:{(i&3)*1024} {opt.wo_flags}")
            return
        for i in range(8):
            if i % 4 == 0 and (st or i): a.i("s_add_u32 s46, s46, 4096")
            a.i(f"buffer_load_dwordx2 {vr(WR+16*st+2*i,2)}, v16, s[48:51], s46 offen offset:{(i&3)*1024} {opt.wo_flags}")
    KB = [96, 128]; QF = 160; SA = 192; PF = 224; ST = 240
    def kread(p):
        for tt in range(2):
            for st in range(4):
                a.i(f"ds_read_b128 {vr(KB[p&1]+16*tt+4*st)}, v{12+st} offset:{(2*p+tt)*4096}")
    g.wait_cnt(CQ2, 4)
    a.i(f"v_add_u32 v10, {L_Q}, v9")
    for st in range(4): a.i(f"ds_read_b128 {vr(QF+4*st)}, v10 offset:{st*1024}")
    a.i("s_lshl_b32 s14, s3, 2"); a.i("v_add_u32 v7, s14, v1")
    g.wait_cnt(CKD, 1, vaddr=7)
    kread(0); kread(1)
    for p in range(4):
        a.i(f"s_waitcnt lgkmcnt({8 if p < 3 else 0})")
        for tt in range(2):
            t = 2*p + tt
            for st in range(4):
                c = "0" if st == 0 else vr(SA+4*t)
                a.i(f"v_mfma_f32_16x16x32_bf16 {vr(SA+4*t)}, {vr(KB[p&1]+16*tt+4*st)}, {vr(QF+4*st)}, {c}")
        if p + 2 < 4: kread(p + 2)
    a.i(f"s_mov_b32 s13, {f2u(SCALE):#x}")
    a.i(f"v_max3_f32 v10, v{SA}, v{SA+1}, v{SA+2}")
    for r in range(3, 31, 2): a.i(f"v_max3_f32 v10, v10, v{SA+r}, v{SA+r+1}")
    a.i(f"v_max_f32 v10, v10, v{SA+31}")
    a.i("v_mov_b32 v11, v10"); a.i("v_permlane16_swap_b32 v10, v11"); a.i("v_max_f32 v10, v10, v11")
    a.i("v_mov_b32 v11, v10"); a.i("v_permlane32_swap_b32 v10, v11"); a.i("v_max_f32 v10, v10, v11")
    a.i("v_mul_f32 v12, s13, v10")
    for r in range(32): a.i(f"v_fma_f32 v{SA+r}, v{SA+r}, s13, -v12")
    for r in range(32): a.i(f"v_exp_f32 v{SA+r}, v{SA+r}")
    for k in range(16): a.i(f"v_cvt_pk_bf16_f32 v{PF+k}, v{SA+2*k}, v{SA+2*k+1}")
    a.i("v_lshlrev_b32 v9, 4, v2"); a.i("s_lshl_b32 s14, s3, 12"); a.i(f"s_add_u32 s14, s14, {L_P}"); a.i("v_add_u32 v9, s14, v9")
    for u in range(4): a.i(f"ds_write_b128 v9, {vr(PF+4*u)} offset:{u*1024}")
    a.i(f"v_add_f32 v10, v{SA}, v{SA+1}"); a.i(f"v_add_f32 v11, v{SA+2}, v{SA+3}")
    for r in range(4, 32, 2):
        a.i(f"v_add_f32 v10, v10, v{SA+r}"); a.i(f"v_add_f32 v11, v11, v{SA+r+1}")
    a.i("s_waitcnt lgkmcnt(0)")
    g.signal(CP, vaddr=7)
    a.i("v_add_f32 v10, v10, v11")
    a.i("v_mov_b32 v11, v10"); a.i("v_permlane16_swap_b32 v10, v11"); a.i("v_add_f32 v10, v10, v11")
    a.i("v_mov_b32 v11, v10"); a.i("v_permlane32_swap_b32 v10, v11"); a.i("v_add_f32 v13, v10, v11")
    a.i("v_mov_b32 v14, v8"); a.i("v_mov_b32 v15, v8")
    a.i("s_lshl_b32 s43, s41, 10"); a.i("s_lshl_b32 s14, s3, 8"); a.i("s_add_u32 s43, s43, s14"); a.i(f"s_add_u32 s43, s43, {WS_ST}")
    a.i("v_lshlrev_b32 v9, 4, v4")
    a.i("s_mov_b64 exec, 0xffff")
    g.store_var("buffer_store_dwordx4 v[12:15], v9, s[32:35], s43 offen")
    a.i("s_mov_b64 exec, -1")
    g.stamp(4)
    if opt.touch & 4:
        a.i("v_lshlrev_b32 v10, 4, v2")
        a.i("s_lshl_b32 s14, s41, 12"); a.i("s_lshl_b32 s15, s3, 10"); a.i("s_add_u32 s14, s14, s15"); a.i(f"s_add_u32 s14, s14, {WS_PS}")
        a.i(f"buffer_load_dwordx4 v[252:255], v10, s[32:35], s14 offen {opt.ptouch_flags}")
    if opt.pf:
        a.i("s_lshl_b32 s14, s4, 9"); a.i("s_lshl_b32 s15, s6, 7"); a.i("s_add_u32 s14, s14, s15"); a.i("s_lshl_b32 s15, s3, 5"); a.i("s_add_u32 s14, s14, s15"); a.i("s_lshl_b32 s14, s14, 10")
        a.i("s_lshl_b32 s15, s7, 7"); a.i("s_add_u32 s14, s14, s15")
        a.i("v_lshlrev_b32 v10, 10, v2")
        a.i("s_mov_b32 exec_hi, 0")
        a.i(f"buffer_load_dword v17, v10, s[48:51], s14 offen {opt.pf_flags}")
        a.i("s_mov_b64 exec, -1")
    a.i("s_and_b32 s43, s41, 0xfffffffe"); a.i("s_lshl_b32 s43, s43, 10"); a.i(f"s_add_u32 s43, s43, {WS_ST}")
    a.i("v_lshl_add_u32 v9, v3, 9, v9")
    a.i("s_mov_b32 s45, 0")
    a.label("L_A_sretry")
    a.i(f"buffer_load_dwordx4 {vr(ST)}, v9, s[32:35], s43 offen {opt.ld_flags}")
    a.i(f"buffer_load_dwordx4 {vr(ST+4)}, v9, s[32:35], s43 offen offset:256 {opt.ld_flags}")
    a.i("s_waitcnt vmcnt(0)")
    a.i(f"v_xor_b32 v10, v{ST+2}, v8"); a.i(f"v_xor_b32 v11, v{ST+3}, v8"); a.i("v_or_b32 v10, v10, v11")
    a.i(f"v_xor_b32 v11, v{ST+6}, v8"); a.i("v_or_b32 v10, v10, v11"); a.i(f"v_xor_b32 v11, v{ST+7}, v8"); a.i("v_or_b32 v10, v10, v11")
    a.i("v_cmp_ne_u32 vcc, 0, v10")
    g.retry_tail("L_A_sretry", "L_A_sok")
    a.i(f"v_max_f32 v10, v{ST}, v{ST+4}")
    a.i("v_mov_b32 v11, v10"); a.i("v_permlane16_swap_b32 v10, v11"); a.i("v_max_f32 v10, v10, v11")
    a.i("v_mov_b32 v11, v10"); a.i("v_permlane32_swap_b32 v10, v11"); a.i("v_max_f32 v10, v10, v11")
    a.i(f"v_sub_f32 v{ST}, v{ST}, v10"); a.i(f"v_sub_f32 v{ST+4}, v{ST+4}, v10")
    a.i(f"v_exp_f32 v{ST}, v{ST}"); a.i(f"v_exp_f32 v{ST+4}, v{ST+4}")
    a.i(f"v_mul_f32 v{ST+1}, v{ST+1}, v{ST}"); a.i(f"v_fmac_f32 v{ST+1}, v{ST+5}, v{ST+4}")
    a.i(f"v_mov_b32 v11, v{ST+1}"); a.i(f"v_permlane16_swap_b32 v{ST+1}, v11"); a.i(f"v_add_f32 v{ST+1}, v{ST+1}, v11")
    a.i(f"v_mov_b32 v11, v{ST+1}"); a.i(f"v_permlane32_swap_b32 v{ST+1}, v11"); a.i(f"v_add_f32 v11, v{ST+1}, v11")
    a.i("v_sub_f32 v12, v12, v10"); a.i("v_exp_f32 v12, v12"); a.i("v_rcp_f32 v11, v11"); a.i("v_mul_f32 v12, v12, v11")
    a.i("v_lshlrev_b32 v9, 2, v4"); a.i("s_lshl_b32 s14, s3, 6"); a.i(f"s_add_u32 s14, s14, {L_F}"); a.i("v_add_u32 v9, s14, v9")
    a.i("ds_write_b32 v9, v12")
    a.i("s_waitcnt lgkmcnt(0)")
    g.signal(CF)
    for st in range(opt.wo_early): wostep(st)
    if opt.wo_early < 4:
        g.wait_cnt(CV, 4)
        for st in range(opt.wo_early, 4): wostep(st)
    OG, CA = 192, 176
    a.i("v_add_u32 v10, s3, v4"); a.i("v_and_b32 v10, 3, v10")
    a.i("v_lshrrev_b32 v9, 2, v4"); a.i("v_lshlrev_b32 v9, 13, v9"); a.i("v_lshl_add_u32 v9, v10, 6, v9"); a.i("v_lshl_add_u32 v9, v3, 4, v9")
    a.i("s_lshl_b32 s43, s42, 12"); a.i("s_lshl_b32 s14, s3, 10"); a.i("s_add_u32 s43, s43, s14"); a.i(f"s_add_u32 s43, s43, {WS_OS}")
    a.i("s_add_u32 s44, s43, 4096")
    if opt.srot:
        for sp in range(2):
            for st in range(4):
                a.i(f"s_add_u32 s14, s6, {st}"); a.i("s_and_b32 s14, s14, 3"); a.i("s_lshl_b32 s14, s14, 8"); a.i(f"s_add_u32 s{80+4*sp+st}, s14, {'s43' if sp == 0 else 's44'}")
    a.i("s_lshl_b32 s46, s42, 4"); a.i(f"s_add_u32 s46, s46, {WS_OF}")
    a.i("v_lshlrev_b32 v7, 2, v2")
    for r in range(1, 4):
        a.i(f"s_add_u32 s14, s3, {r}"); a.i("s_and_b32 s14, s14, 3"); a.i("s_lshl_b32 s14, s14, 12"); a.i(f"s_add_u32 s14, s14, {L_CR + (r-1)*1024}"); a.i(f"v_add_u32 v{12+r}, s14, v7")
    a.i("s_lshl_b32 s14, s3, 12"); a.i(f"s_add_u32 s14, s14, {L_CR}"); a.i("v_add_u32 v12, s14, v7")
    a.i("v_lshlrev_b32 v17, 10, v3"); a.i("v_lshl_add_u32 v17, v4, 4, v17")
    a.i("s_lshl_b32 s47, s41, 12"); a.i("s_lshl_b32 s14, s3, 8"); a.i("s_add_u32 s47, s47, s14"); a.i(f"s_add_u32 s47, s47, {WS_PS}")
    for e in range(4): a.i(f"s_mov_b32 s{60+e}, {0x07060500+e:#x}")
    XO = 8 if opt.halfpoll == 2 else 0
    if opt.halfpoll == 2:
        for sp in range(2):
            for st in range(4):
                a.i(f"buffer_load_dwordx4 {vr(OG+16*sp+4*st)}, v9, s[32:35], {'s43' if sp == 0 else 's44'} offen offset:{st*256} {opt.ld_flags}")
    for st in range(opt.wo_early):
        a.i(f"s_waitcnt vmcnt({8*(3-st) + XO})")
        transpose4(a, WF+16*st, lambda i, w: WR + 16*st + 2*i + w)
    if opt.t2: g.stamp(-1, tail=7)
    if not opt.bsync: a.i("s_barrier")
    g.stamp(-1, tail=1)
    for st in range(opt.wo_early, 4):
        a.i(f"s_waitcnt vmcnt({8*(3-st) + XO})")
        transpose4(a, WF+16*st, lambda i, w: WR + 16*st + 2*i + w)
    if opt.halfpoll:
        g.stamp(5, tail=2)
        for r in range(16): a.i(f"v_mov_b32 v{CA+r}, 0")
        a.i("s_mov_b32 s45, 0"); a.i("s_mov_b32 s92, 0")
        if opt.halfpoll == 2: a.i("s_branch L_A_hi1")
        a.label("L_A_hl")
        for sp in range(2):
            a.i(f"s_bitcmp1_b32 s92, {sp}"); a.i(f"s_cbranch_scc1 L_A_hi{sp}")
            for st in range(4):
                a.i(f"buffer_load_dwordx4 {vr(OG+16*sp+4*st)}, v9, s[32:35], {'s43' if sp == 0 else 's44'} offen offset:{st*256} {opt.ld_flags}")
            a.label(f"L_A_hi{sp}")
        a.i("s_waitcnt vmcnt(0)")
        for sp in range(2):
            b = OG + 16*sp
            a.i(f"s_bitcmp1_b32 s92, {sp}"); a.i(f"s_cbranch_scc1 L_A_hc{sp}")
            a.i(f"v_max3_u32 v10, v{b}, v{b+1}, v{b+2}")
            for r in range(3, 15, 2): a.i(f"v_max3_u32 v10, v10, v{b+r}, v{b+r+1}")
            a.i(f"v_max_u32 v10, v10, v{b+15}")
            a.i("v_cmp_eq_u32 vcc, -1, v10")
            a.i(f"s_cbranch_vccnz L_A_hc{sp}")
            for st in range(4):
                for e in range(4):
                    a.i(f"v_mfma_f32_16x16x32_bf16 {vr(CA+4*e)}, {vr(OG+16*sp+4*st)}, {vr(WF+16*st+4*e)}, {vr(CA+4*e)}")
            a.i(f"s_bitset1_b32 s92, {sp}")
            a.label(f"L_A_hc{sp}")
        a.i("s_add_u32 s45, s45, 1")
        a.i(f"s_cmp_gt_u32 s45, {opt.spin_limit}"); a.i("s_cbranch_scc1 L_A_hdone")
        a.i("s_cmp_eq_u32 s92, 3"); a.i("s_cbranch_scc0 L_A_hl")
        a.label("L_A_hdone")
        a.i("s_nop 7")
    else:
        g.stamp(5, tail=2)
        a.i("s_mov_b32 s45, 0")
        a.label("L_A_fretry")
        a.i("s_mov_b32 exec_hi, 0")
        a.i(f"buffer_load_dword v10, v7, s[32:35], s46 offen {opt.ld_flags}")
        a.i("s_waitcnt vmcnt(0)")
        a.i("v_cmp_ne_u32 vcc, v10, v8")
        a.i("s_mov_b64 exec, -1")
        g.retry_tail("L_A_fretry", "L_A_fok")
        g.stamp(-1, tail=3)
        if opt.dbgcnt: a.i("s_mov_b32 s92, s45")
        a.i("s_mov_b32 s45, 0")
        def ogather(fl):
            for sp in range(2):
                for st in range(4):
                    if opt.srot:
                        a.i(f"buffer_load_dwordx4 {vr(OG+16*sp+4*st)}, v9, s[32:35], s{80+4*sp+st} offen {fl}")
                    else:
                        a.i(f"buffer_load_dwordx4 {vr(OG+16*sp+4*st)}, v9, s[32:35], {'s43' if sp == 0 else 's44'} offen offset:{st*256} {fl}")
        if opt.o_plain:
            a.i("s_cmp_eq_u32 s58, 1"); a.i("s_cbranch_scc0 L_A_oretry")
            ogather("")
            a.i("s_branch L_A_ogo")
        a.label("L_A_oretry")
        ogather(opt.ld_flags)
        a.label("L_A_ogo")
        k = 0
        for sp in range(2):
            for st in range(4):
                a.i(f"s_waitcnt vmcnt({7-k})")
                for e in range(4):
                    c = "0" if k == 0 else vr(CA+4*e)
                    a.i(f"v_mfma_f32_16x16x32_bf16 {vr(CA+4*e)}, {vr(OG+16*sp+4*st)}, {vr(WF+16*st+4*e)}, {c}")
                b = OG+16*sp+4*st
                if k == 0: a.i(f"v_max3_u32 v10, v{b}, v{b+1}, v{b+2}"); a.i(f"v_max_u32 v10, v10, v{b+3}")
                else: a.i(f"v_max3_u32 v10, v10, v{b}, v{b+1}"); a.i(f"v_max3_u32 v10, v10, v{b+2}, v{b+3}")
                k += 1
        a.i("v_cmp_eq_u32 vcc, -1, v10")
        g.retry_tail("L_A_oretry", "L_A_ook")
    g.stamp(6, tail=4)
    if opt.regather:
        ogather("sc1")
        a.i("s_waitcnt vmcnt(0)")
        g.stamp(-1, tail=5)
    if opt.dbgcnt:
        a.i("s_mov_b64 exec, 1")
        a.i("v_mov_b32 v18, s45"); a.i("v_mov_b32 v19, s92")
        a.i("global_atomic_add v5, v18, s[28:29]"); a.i("global_atomic_add v5, v19, s[28:29] offset:4")
        a.i("global_atomic_add v5, v6, s[28:29] offset:8")
        a.i("s_mov_b64 exec, -1")
    for r in range(1, 4):
        for e in range(0, 4, 2):
            a.i(f"ds_write2st64_b32 v{12+r}, v{CA+4*e+r}, v{CA+4*(e+1)+r} offset0:{e} offset1:{e+1}")
    a.i("s_waitcnt lgkmcnt(0)")
    a.i("s_barrier")
    if not opt.regather: g.stamp(-1, tail=5)
    R = 20
    for slot in range(3):
        for e in range(0, 4, 2):
            a.i(f"ds_read2st64_b32 {vr(R+4*slot+e,2)}, v12 offset0:{slot*4+e} offset1:{slot*4+e+1}")
    a.i("s_waitcnt lgkmcnt(0)")
    for e in range(4):
        a.i(f"v_add_f32 v{R+e}, v{R+e}, v{R+4+e}"); a.i(f"v_add_f32 v{R+8+e}, v{R+8+e}, v{CA+4*e}")
    for e in range(4): a.i(f"v_add_f32 v{R+e}, v{R+e}, v{R+8+e}")
    for e in range(4): a.i(f"v_perm_b32 v{R+12+e}, v{R+e}, v8, s{60+e}")
    a.i(f"buffer_store_dwordx4 {vr(R+12)}, v17, s[32:35], s47 offen {opt.pst_flags}")
    g.stamp(7, tail=6)
    if opt.tstamps and not opt.t2:
        a.i("s_waitcnt vmcnt(0)")
        g.stamp(-1, tail=7)
    if opt.stamps:
        a.i("s_cmp_lg_u32 s3, 0"); a.i("s_cbranch_scc1 L_end")
        emit_stamps(g, 0, 8)
    a.i("s_branch L_end")

    a.label("L_B")
    a.i("s_sub_u32 s3, s3, 4")
    if opt.b_prio0: a.i(f"s_setprio {opt.b_prio0}")
    if opt.late_th or opt.dbgtime: a.i("s_memrealtime s[94:95]")
    if opt.b_exit:
        for k in range(1, 8): g.stamp(k)
        a.i("s_cmp_lg_u32 s3, 0"); a.i("s_cbranch_scc1 L_end")
        emit_stamps(g, 8, 8, first=1)
        a.i("s_branch L_end")
    VF, PF2, T2, OA = 16, 144, 160, 192
    kvbase(a)
    a.i("s_mov_b32 s57, s14")
    if opt.rot:
        if opt.rot == 1: a.i("s_add_u32 s56, s5, s3")
        elif opt.rot == 2: a.i("s_lshl_b32 s56, s3, 1"); a.i("s_add_u32 s56, s56, s5")
        elif opt.rot == 3: a.i("s_mul_i32 s56, s5, 3"); a.i("s_add_u32 s56, s56, s3")
        elif opt.rot == 4: a.i("s_mul_i32 s56, s5, 3"); a.i("s_lshl_b32 s15, s3, 1"); a.i("s_add_u32 s56, s56, s15")
        a.i("s_and_b32 s56, s56, 7"); a.i("s_lshl_b32 s56, s56, 12")
    else:
        a.i("s_mov_b32 s56, 0")
    for n in range(4):
        a.i(f"v_add_u32 v10, {4*n}, v3"); a.i("v_xor_b32 v10, v10, v4"); a.i("v_lshlrev_b32 v10, 4, v10"); a.i(f"v_lshl_add_u32 v{12+n}, v3, 8, v10")
    a.i("s_lshl_b32 s47, s3, 15")
    a.i("s_lshl_b32 s15, s6, 7")
    a.i("s_waitcnt lgkmcnt(0)")
    srd(a, 48, 18, 19, 128*256, add="s57")
    a.i("s_load_dword s10, s[30:31], s15")
    srd(a, 36, 20, 21, 128*256, add="s57")
    srd(a, 32, 30, 31, WS_SIZE)
    if opt.bpf:
        srd(a, 52, 22, 23, 4 << 20)
        srd(a, 60, 16, 17, 65536)
        a.i("v_lshlrev_b32 v8, 4, v2")
        a.i("s_lshl_b32 s14, s5, 4"); a.i("s_lshl_b32 s15, s3, 2"); a.i("s_add_u32 s14, s14, s15"); a.i("s_lshl_b32 s14, s14, 13"); a.i("s_lshl_b32 s15, s4, 10"); a.i("s_add_u32 s14, s14, s15")
        for k in range(4):
            a.i(f"buffer_load_dwordx4 {vr(16+4*k)}, v8, s[52:55], s14 offen {opt.bpf_flags}")
            if k < 3: a.i("s_add_u32 s14, s14, 8192")
        a.i("s_lshl_b32 s14, s5, 1"); a.i("s_and_b32 s15, s3, 1"); a.i("s_add_u32 s14, s14, s15"); a.i("s_lshl_b32 s14, s14, 10")
        a.i(f"buffer_load_dwordx4 {vr(32)}, v8, s[60:63], s14 offen")
    NPF = 0
    LO, HI = opt.thr, max(opt.thr3, opt.thr)
    a.i("s_cmp_eq_u32 s7, 3"); a.i("s_cselect_b64 vcc, -1, 0")
    if opt.late_th:
        a.i("s_or_b32 s14, s5, s3"); a.i("s_cmp_lg_u32 s14, 0"); a.i("s_cbranch_scc1 L_B_noat")
        a.i("s_not_b32 s14, s94"); a.i("v_mov_b32 v10, s14")
        a.i("s_mov_b64 exec, 1")
        a.i("global_atomic_umax v5, v10, s[28:29] sc1")
        a.i("s_mov_b64 exec, -1")
        a.label("L_B_noat")
    cnt = [0]
    def throttle():
        n = cnt[0]
        lo, hi = LO, HI
        if opt.thr_end and n >= 32 + opt.end_from:
            lo = max(lo, opt.thr_end); hi = max(hi, opt.thr_end)
        if n >= hi: a.i(f"s_waitcnt vmcnt({hi-1})")
        if n >= lo and lo < hi:
            L = g.lab("t")
            a.i(f"s_cbranch_vccnz {L}"); a.i(f"s_waitcnt vmcnt({lo-1})"); a.label(L)
        cnt[0] += 1
    for t in range(8):
        a.i(f"s_add_u32 s14, s47, {t*4096}"); a.i("s_mov_b32 m0, s14"); a.i(f"s_xor_b32 s14, s56, {t*4096}")
        for n in range(4):
            throttle()
            a.i(f"buffer_load_dwordx4 v{12+n}, s[48:51], s14 offen offset:{n*1024} {opt.kv_flags if opt.k_flags == 'same' else opt.k_flags} lds")
        if t == opt.bfirst_tiles - 1: a.i("s_barrier")
        if t == 0:
            a.i("v_add_u32 v7, s3, v4"); a.i("v_and_b32 v7, 3, v7"); a.i("v_and_b32 v10, 12, v4"); a.i("v_or_b32 v7, v7, v10")
            a.i("v_lshlrev_b32 v7, 4, v7"); a.i("v_lshl_add_u32 v7, v3, 10, v7")
            a.i("s_lshl_b32 s15, s3, 2"); a.i("v_add_u32 v11, s15, v1")
        if opt.late_th and t == opt.late_at - 1:
            a.i("s_load_dword s96, s[28:29], 0 glc")
        if opt.late_th and t == opt.late_at:
            a.i("s_waitcnt lgkmcnt(0)")
            a.i("s_not_b32 s14, s96"); a.i("s_sub_u32 s14, s94, s14")
            a.i("s_cmp_eq_u32 s96, 0"); a.i("s_cselect_b32 s14, 0, s14")
            a.i(f"s_cmp_gt_i32 s14, {opt.late_th}"); a.i("s_cselect_b64 s[96:97], -1, 0"); a.i("s_or_b64 vcc, vcc, s[96:97]")
    g.stamp(1)
    for u in range(4):
        for i in range(8):
            if i % 4 == 0: a.i(f"s_xor_b32 s14, s56, {u*8192 + (i>>2)*4096}")
            throttle()
            n = cnt[0] - 1
            if n - LO == 31:
                L = g.lab("k")
                if LO < HI: a.i(f"s_cbranch_vccnz {L}")
                g.signal(CKD, vaddr=11)
                a.label(L)
            if LO < HI and n - HI == 31:
                L = g.lab("k")
                a.i(f"s_cbranch_vccz {L}")
                g.signal(CKD, vaddr=11)
                a.label(L)
            a.i(f"buffer_load_dwordx4 {vr(VF+32*u+4*i)}, v7, s[36:39], s14 offen offset:{(i&3)*256} {opt.kv_flags if opt.v_flags == 'same' else opt.v_flags}")
            if 8*u + i + 1 == 32 and opt.ptouch_late == 2:
                a.i("v_lshlrev_b32 v10, 4, v2")
                a.i("s_lshl_b32 s14, s41, 12"); a.i("s_lshl_b32 s15, s3, 10"); a.i("s_add_u32 s14, s14, s15"); a.i(f"s_add_u32 s14, s14, {WS_PS}")
                a.i(f"buffer_load_dwordx4 v[224:227], v10, s[32:35], s14 offen {opt.ptouch_flags}")
            if 8*u + i + 1 == opt.cv_at: g.signal(CV)
    if opt.bstamps:
        a.i("s_waitcnt vmcnt(0)")
        a.i("s_cmp_lg_u32 s3, 0"); a.i("s_cbranch_scc1 L_end")
        emit_stamps(g, 8, 8, first=1)
        a.i("s_branch L_end")
    g.stamp(2, tail=1)
    if opt.bench:
        a.i("s_waitcnt vmcnt(0)")
        for k in range(3, 8): g.stamp(k)
        a.i("s_cmp_lg_u32 s3, 0"); a.i("s_cbranch_scc1 L_end")
        emit_stamps(g, 8, 8, first=1)
        a.i("s_branch L_end")
    g.wait_cnt(CP, 1, vaddr=11)
    a.i("v_lshlrev_b32 v9, 4, v2"); a.i("s_lshl_b32 s14, s3, 12"); a.i(f"s_add_u32 s14, s14, {L_P}"); a.i("v_add_u32 v9, s14, v9")
    for u in range(4): a.i(f"ds_read_b128 {vr(PF2+4*u)}, v9 offset:{u*1024}")
    a.i(f"ds_read_b32 v10, v1 offset:{FASTW}")
    a.i("s_waitcnt lgkmcnt(0)")
    a.i(f"s_add_u32 s10, s10, {TAGINC:#x}")
    a.i("v_mov_b32 v8, s10")
    a.i("v_readfirstlane_b32 s58, v10")
    if not opt.t2: g.stamp(3, tail=2)
    if opt.b_prio_pv: a.i(f"s_setprio {opt.b_prio_pv}")
    XT = 1 if opt.ptouch_late == 2 else 0
    def factors(wait=True):
        if wait: g.wait_cnt(CF, 4)
        for k in range(4):
            a.i(f"s_sub_u32 s14, s3, {k}"); a.i("s_and_b32 s14, s14, 3"); a.i("s_lshl_b32 s14, s14, 6"); a.i(f"s_add_u32 s14, s14, {L_F}")
            a.i(f"v_lshl_add_u32 v10, v4, 2, s14"); a.i(f"ds_read_b32 v{148+k}, v10")
    for u in range(4):
        L = lambda i, w: VF + 32*u + 4*i + w
        if u < 3:
            a.i(f"s_waitcnt vmcnt({(3-u)*8 + XT})")
            for e in range(8):
                w = e >> 1; sel = 's11' if (e & 1) == 0 else 's12'
                for p in range(4):
                    a.i(f"v_perm_b32 v{T2+4*e+p}, v{L(2*p+1,w)}, v{L(2*p,w)}, {sel}")
        else:
            for p in range(4):
                a.i(f"s_waitcnt vmcnt({6-2*p + XT})")
                for e in range(8):
                    w = e >> 1; sel = 's11' if (e & 1) == 0 else 's12'
                    a.i(f"v_perm_b32 v{T2+4*e+p}, v{L(2*p+1,w)}, v{L(2*p,w)}, {sel}")
        for e in range(8):
            c = "0" if u == 0 else vr(OA+4*e)
            a.i(f"v_mfma_f32_16x16x32_bf16 {vr(OA+4*e)}, {vr(T2+4*e)}, {vr(PF2+4*u)}, {c}")
        if u == 2:
            if not opt.cf_late: factors()
            if opt.cf_late == 2:
                a.i(f"ds_read_b32 v10, v1 offset:{CF}"); a.i("s_waitcnt lgkmcnt(0)"); a.i("v_readfirstlane_b32 s93, v10")
                a.i("s_cmp_ge_u32 s93, 4"); a.i("s_cbranch_scc0 L_B_fskip")
                factors(False)
                a.label("L_B_fskip")
            a.i("v_lshrrev_b32 v12, 2, v4"); a.i("v_lshlrev_b32 v12, 10, v12"); a.i("v_and_b32 v10, 3, v4"); a.i("v_lshl_add_u32 v12, v10, 6, v12"); a.i("v_lshl_add_u32 v12, v3, 4, v12")
            a.i("s_lshl_b32 s43, s41, 12"); a.i("s_lshl_b32 s14, s3, 8"); a.i("s_add_u32 s43, s43, s14"); a.i(f"s_add_u32 s43, s43, {WS_OS}")
            a.i("s_lshl_b32 s44, s41, 4"); a.i("s_lshl_b32 s14, s3, 2"); a.i("s_add_u32 s44, s44, s14"); a.i(f"s_add_u32 s44, s44, {WS_OF}")
            a.i("v_lshlrev_b32 v9, 2, v2")
            for r in range(1, 4):
                a.i(f"s_add_u32 s14, s3, {r}"); a.i("s_and_b32 s14, s14, 3"); a.i("s_lshl_b32 s14, s14, 13"); a.i(f"s_add_u32 s14, s14, {L_OR + (r-1)*2048}"); a.i(f"v_add_u32 v{12+r}, s14, v9")
            a.i("s_lshl_b32 s14, s3, 13"); a.i(f"s_add_u32 s14, s14, {L_OR}"); a.i("v_add_u32 v7, s14, v9")
    if opt.cf_late == 1: factors()
    if opt.cf_late == 2:
        a.i("s_cmp_ge_u32 s93, 4"); a.i("s_cbranch_scc1 L_B_fdone")
        factors()
        a.label("L_B_fdone")
    g.stamp(4, tail=3)
    for r in range(1, 4):
        for e in range(0, 8, 2):
            a.i(f"ds_write2st64_b32 v{12+r}, v{OA+4*e+r}, v{OA+4*(e+1)+r} offset0:{e} offset1:{e+1}")
    a.i("s_waitcnt lgkmcnt(0)")
    if opt.t2: g.stamp(-1, tail=2)
    if opt.bsync:
        g.signal(CO)
        g.wait_cnt(CO, 4)
    else:
        a.i("s_barrier")
    g.stamp(-1, tail=4)
    R = 16
    for slot in range(3):
        for e in range(0, 8, 2):
            a.i(f"ds_read2st64_b32 {vr(R+8*slot+e,2)}, v7 offset0:{slot*8+e} offset1:{slot*8+e+1}")
    FR = 148
    for e in range(8): a.i(f"v_mul_f32 v{OA+4*e}, v{OA+4*e}, v{FR}")
    for slot in range(3):
        a.i(f"s_waitcnt lgkmcnt({4*(2-slot)})")
        for e in range(8): a.i(f"v_fmac_f32 v{OA+4*e}, v{R+8*slot+e}, v{FR+1+slot}")
    for p in range(4): a.i(f"v_cvt_pk_bf16_f32 v{R+32+p}, v{OA+8*p}, v{OA+8*p+4}")
    g.store_var(f"buffer_store_dwordx4 {vr(R+32)}, v12, s[32:35], s43 offen")
    if not opt.halfpoll:
        a.i("s_mov_b64 exec, 1")
        g.store_var("buffer_store_dword v8, v5, s[32:35], s44 offen")
        a.i("s_mov_b64 exec, -1")
    if opt.ptouch_late == 1:
        a.i("v_lshlrev_b32 v10, 4, v2")
        a.i("s_lshl_b32 s14, s41, 12"); a.i("s_lshl_b32 s15, s3, 10"); a.i("s_add_u32 s14, s14, s15"); a.i(f"s_add_u32 s14, s14, {WS_PS}")
        a.i(f"buffer_load_dwordx4 v[100:103], v10, s[32:35], s14 offen {opt.ptouch_flags}")
    g.stamp(5, tail=5)
    if opt.wstamps:
        a.i("s_waitcnt lgkmcnt(0)")
        a.i(f"s_add_u32 s90, s30, {STAMPOFF}"); a.i("s_addc_u32 s91, s31, 0")
        a.i("s_lshl_b32 s14, s2, 7"); a.i("s_add_u32 s90, s90, s14"); a.i("s_addc_u32 s91, s91, 0")
        a.i("s_lshl_b32 s14, s3, 3"); a.i("s_add_u32 s90, s90, s14"); a.i("s_addc_u32 s91, s91, 0")
        a.i("s_mov_b64 exec, 1")
        a.i("v_mov_b32 v60, s72"); a.i("v_mov_b32 v61, s73")
        a.i("global_store_dwordx2 v5, v[60:61], s[90:91] offset:64")
        a.i("v_mov_b32 v62, s68"); a.i("v_mov_b32 v63, s69")
        a.i("global_store_dwordx2 v5, v[62:63], s[90:91] offset:96")
        a.i("s_mov_b64 exec, -1")
    a.i("s_cmp_lg_u32 s3, 0"); a.i("s_cbranch_scc1 L_end")
    a.i("v_lshrrev_b32 v9, 5, v2"); a.i("v_lshlrev_b32 v9, 19, v9")
    a.i("v_and_b32 v10, 1, v3"); a.i("v_lshl_add_u32 v9, v10, 8, v9"); a.i("v_lshl_add_u32 v9, v4, 4, v9")
    a.i("s_lshl_b32 s43, s5, 12"); a.i("s_lshl_b32 s14, s4, 9"); a.i("s_add_u32 s43, s43, s14"); a.i(f"s_add_u32 s43, s43, {WS_PS}")
    srd(a, 36, 26, 27, 65536)
    a.i("v_and_b32 v10, 1, v3"); a.i("v_lshlrev_b32 v13, 10, v10"); a.i("v_lshl_add_u32 v13, v4, 3, v13")
    a.i("s_lshl_b32 s46, s6, 14"); a.i("s_lshl_b32 s14, s4, 11"); a.i("s_add_u32 s46, s46, s14"); a.i("s_lshl_b32 s14, s59, 7"); a.i("s_add_u32 s46, s46, s14")
    a.i("s_barrier")
    NP = opt.ppoll
    a.i("s_mov_b32 s14, 0x0c0c0400"); a.i("s_mov_b32 s15, 0x04000c0c")
    for k in range(4): a.i(f"s_add_u32 s{48+k}, s43, {k*32*4096}")
    def pissue(z):
        for k in range(4):
            a.i(f"buffer_load_dwordx4 {vr(16+16*z+4*k)}, v9, s[32:35], s{48+k} offen {opt.pld_flags}")
    a.i("s_mov_b32 s45, 0")
    for z in range(NP):
        pissue(z)
        if z < NP - 1 and opt.psleep: a.i(f"s_sleep {opt.psleep}")
    a.label("L_B_pretry")
    for z in range(NP):
        R = 16 + 16*z
        a.i(f"s_waitcnt vmcnt({4*(NP-1)})")
        for k in range(4):
            d = 10 if k == 0 else 11
            a.i(f"v_perm_b32 v{d}, v{R+4*k+1}, v{R+4*k}, s14"); a.i(f"v_perm_b32 v12, v{R+4*k+3}, v{R+4*k+2}, s15")
            if k == 0:
                a.i("v_or_b32 v10, v10, v12"); a.i("v_xor_b32 v10, v10, v8")
            else:
                a.i("v_or_b32 v11, v11, v12"); a.i("v_xor_b32 v11, v11, v8"); a.i("v_or_b32 v10, v10, v11")
        a.i("v_cmp_ne_u32 vcc, 0, v10")
        a.i(f"s_cbranch_vccz L_B_pok{z}")
        pissue(z)
    a.i("s_add_u32 s45, s45, 1")
    a.i(f"s_cmp_le_u32 s45, {opt.spin_limit}")
    a.i("s_cbranch_scc1 L_B_pretry")
    a.i("s_waitcnt vmcnt(0)")
    for z in range(NP):
        R = 16 + 16*z
        a.label(f"L_B_pok{z}")
        for e in range(4):
            a.i(f"v_add_f32 v{80+e}, v{R+e}, v{R+4+e}"); a.i(f"v_add_f32 v{84+e}, v{R+8+e}, v{R+12+e}")
        if z < NP - 1: a.i("s_branch L_B_psum")
    a.label("L_B_psum")
    g.stamp(6, tail=6)
    R = 80
    for e in range(4): a.i(f"v_add_f32 v{R+e}, v{R+e}, v{R+4+e}")
    for e in range(4): a.i(f"v_mov_b32 v{R+4+e}, v{R+e}")
    for e in range(4): a.i(f"v_permlane32_swap_b32 v{R+e}, v{R+4+e}")
    for e in range(4): a.i(f"v_add_f32 v{R+e}, v{R+e}, v{R+4+e}")
    a.i(f"v_cvt_pk_bf16_f32 v{R+8}, v{R}, v{R+1}"); a.i(f"v_cvt_pk_bf16_f32 v{R+9}, v{R+2}, v{R+3}")
    a.i("s_mov_b32 exec_hi, 0")
    a.i(f"buffer_store_dwordx2 {vr(R+8,2)}, v13, s[36:39], s46 offen")
    a.i("s_or_b32 s14, s4, s7"); a.i("s_cmp_lg_u32 s14, 0"); a.i("s_cbranch_scc1 L_B_fin")
    a.i("s_mov_b64 exec, 1")
    a.i("s_lshl_b32 s14, s6, 7")
    a.i(f"buffer_store_dword v8, v5, s[32:35], s14 offen sc1")
    a.label("L_B_fin")
    if opt.dbgtime:
        a.i(f"s_cmp_lg_u32 s5, {opt.dbgtime - 1}"); a.i("s_cbranch_scc1 L_B_nodbg")
        a.i("s_waitcnt vmcnt(0)")
        a.i("s_memrealtime s[96:97]"); a.i("s_waitcnt lgkmcnt(0)")
        a.i("s_mov_b64 exec, 1")
        a.i("s_lshl_b32 s14, s4, 2"); a.i("v_mov_b32 v40, s14"); a.i("v_mov_b32 v41, s94"); a.i("v_mov_b32 v42, s96")
        a.i("global_store_dword v40, v41, s[28:29]"); a.i("global_store_dword v40, v42, s[28:29] offset:32")
        a.label("L_B_nodbg")
    a.i("s_mov_b64 exec, -1")
    if opt.stamps:
        a.i("s_waitcnt vmcnt(0)")
        a.i("s_memrealtime s[78:79]")
        if not opt.wstamps: emit_stamps(g, 8, 8, first=1)
    a.label("L_end"); a.i("s_endpgm")

    out = Asm()
    out(HEADER + f"; @launch grid=(256,1,1) block=(512,1,1) lds={L_END}")
    out('.amdgcn_target "amdgcn-amd-amdhsa--gfx950"\n.text')
    lines, n = hazard.fix(a.lines)
    out.lines += lines
    out('.section .rodata,"a"')
    out(kernel_desc(NAME, 256))
    return out.text(), n

def emit_stamps(g, slot0, n, first=0):
    a = g.a
    a.i("s_waitcnt lgkmcnt(0)")
    a.i(f"s_add_u32 s90, s30, {STAMPOFF}"); a.i("s_addc_u32 s91, s31, 0")
    a.i("s_lshl_b32 s14, s2, 7"); a.i("s_add_u32 s90, s90, s14"); a.i("s_addc_u32 s91, s91, 0")
    a.i("s_mov_b64 exec, 1")
    for k in range(first, n):
        a.i(f"v_mov_b32 v20, s{64+2*k}"); a.i(f"v_mov_b32 v21, s{65+2*k}")
        a.i(f"global_store_dwordx2 v5, v[20:21], s[90:91] offset:{(slot0+k-first)*8}")
        a.i("s_nop 1")
    a.i("s_mov_b64 exec, -1")

if __name__ == "__main__":
    o = Opt()
    out = sys.argv[1]
    for kv in sys.argv[2:]:
        k, v = kv.split("=")
        cur = getattr(o, k)
        if isinstance(cur, bool): v = v in ("1", "True", "true")
        elif isinstance(cur, int): v = int(v)
        else: v = v.replace("+", " ")
        setattr(o, k, v)
    t, n = gen(o)
    open(out, "w").write(t)
    print(out, "nops inserted:", n, "lines:", t.count("\n"))
```
